```python
import torch

def _softmax(x, axis=-1):
    return torch.softmax(x, dim=axis)
def _gelu(x):
    return torch.nn.functional.gelu(x, approximate="tanh")
def _silu(x):
    return torch.nn.functional.silu(x)
def _sigmoid(x):
    return torch.sigmoid(x)
def _layernorm(x, axis=-1, eps=1e-5):
    m = x.mean(dim=axis, keepdim=True)
    v = x.var(dim=axis, keepdim=True, unbiased=False)
    return (x - m) / torch.sqrt(v + eps)
def _scatter_add(tgt, idx, src, axis=0):
    return tgt.clone().index_add_(axis, idx, src)
def _segment_sum(src, seg, n):
    out = torch.zeros((n,) + src.shape[1:], dtype=src.dtype)
    return out.index_add_(0, seg, src)
def _pad(x, pw):
    flat = tuple(v for pair in reversed(pw) for v in pair)
    return torch.nn.functional.pad(x, flat)

kernel_name = 'standalone__kv_cache_quant_int4_int2_kv_with_per_channel_or_per_token_scales__decode'

def setup_inputs():

    _w = (lambda a: (lambda t: t.to(torch.bfloat16) if t.is_floating_point() else t)(torch.as_tensor(a)))
    B = 1
    Sq = 1
    Skv = 65536
    Hq = 32
    Hkv = 16
    Dh = 128
    bits = 4
    G = -1
    if G <= 0 or G >= Skv:
        G = max(1, Skv // 2)
    Skv = (Skv // G) * G
    ngk = Skv // G
    qmax = (1 << bits) - 1
    return {
        "q": _w((lambda *s: torch.randn(*s, dtype=torch.bfloat16) * 1.6)(B, Hq, Sq, Dh)),
        "qk": _w(torch.randint(0, qmax + 1, (B, Hkv, Skv, Dh)).to(torch.int32)),
        "qv": _w(torch.randint(0, qmax + 1, (B, Hkv, Skv, Dh)).to(torch.int32)),
        "k_scales": _w(torch.abs((lambda *s: torch.randn(*s, dtype=torch.bfloat16) * 1.6)(B, Hkv, ngk, Dh)) * 0.05 + 0.02),
        "k_zeros": _w((lambda *s: torch.randn(*s, dtype=torch.bfloat16) * 1.6)(B, Hkv, ngk, Dh) + float(qmax) / 2.0),
        "v_scales": _w(torch.abs((lambda *s: torch.randn(*s, dtype=torch.bfloat16) * 0.05)(B, Hkv, Skv, 1)) * 0.05 + 0.02),
        "v_zeros": _w((lambda *s: torch.randn(*s, dtype=torch.bfloat16) * 0.05)(B, Hkv, Skv, 1) + float(qmax) / 2.0),
    }

def reference(q, qk, qv, k_scales, k_zeros, v_scales, v_zeros):
    B, Hq, Sq, Dh = q.shape
    Hkv, Skv = qk.shape[1], qk.shape[2]
    ngk = k_scales.shape[2]
    G = Skv // ngk
    ks = (lambda x, n, axis: torch.repeat_interleave(x, n, dim=axis))(k_scales, G, axis=2)
    kz = (lambda x, n, axis: torch.repeat_interleave(x, n, dim=axis))(k_zeros, G, axis=2)
    k = ((lambda x, dt: x.to(dt))(qk, q.dtype) - kz) * ks
    v = ((lambda x, dt: x.to(dt))(qv, q.dtype) - v_zeros) * v_scales
    rep = Hq // Hkv
    if rep > 1:
        k = (lambda x, n, axis: torch.repeat_interleave(x, n, dim=axis))(k, rep, axis=1)
        v = (lambda x, n, axis: torch.repeat_interleave(x, n, dim=axis))(v, rep, axis=1)
    scale = float(Dh) ** -0.5
    logits = torch.einsum("bhqd,bhkd->bhqk", q, k) * scale
    p = _softmax(logits, axis=-1)
    o = torch.einsum("bhqk,bhkd->bhqd", p, v)
    return o
```

```python
import re
import sys
import struct
import argparse

NAME = "standalone__kv_cache_quant_int4_int2_kv_with_per_channel_or_per_token_scales__decode"


def f2u(x):
    return struct.unpack("<I", struct.pack("<f", x))[0]


REG_RE = re.compile(r"\b([vs])(\d+)\b|\b([vs])\[(\d+):(\d+)\]|\b(vcc)\b")


def regs_of(op):
    out = set()
    for m in REG_RE.finditer(op):
        if m.group(1):
            out.add((m.group(1), int(m.group(2))))
        elif m.group(3):
            for r in range(int(m.group(4)), int(m.group(5)) + 1):
                out.add((m.group(3), r))
        else:
            out.add(("vcc", 0))
    return out


TRANS = ("v_exp_f32", "v_log_f32", "v_rcp_f32", "v_rsq_f32", "v_sqrt_f32")


class Emit:
    def __init__(self):
        self.lines = []
        self.hist = []

    def raw(self, s):
        self.lines.append(s)

    def label(self, s):
        self.i("s_nop 4")
        self.lines.append(s + ":")
        self.hist = []

    def comment(self, s):
        self.lines.append("    ; " + s)

    def i(self, text):
        text = text.strip()
        mn = text.split()[0]
        rest = text[len(mn):].strip()
        ops = [o.strip() for o in rest.split(",")] if rest else []
        clean = []
        for o in ops:
            clean.append(o.split()[0] if o.split() else o)
        ops = clean
        is_valu = mn.startswith("v_")
        is_vmem = mn.startswith("buffer_") or mn.startswith("global_")
        is_dpp = "_dpp" in mn
        is_perm = mn.startswith("v_permlane")
        is_rl = mn.startswith("v_readlane") or mn.startswith("v_readfirstlane")
        writes, reads = set(), set()
        if is_valu:
            if is_perm:
                writes = regs_of(ops[0]) | regs_of(ops[1])
                reads = set(writes)
            else:
                writes = regs_of(ops[0])
                for o in ops[1:]:
                    reads |= regs_of(o)
                if "fmac" in mn or is_dpp:
                    reads |= regs_of(ops[0])
                if mn.startswith("v_cndmask") and len(ops) == 3:
                    reads.add(("vcc", 0))
        elif is_vmem:
            for o in ops:
                reads |= regs_of(o)
        elif mn.startswith("ds_"):
            for o in ops:
                reads |= regs_of(o)
        else:
            for o in ops:
                reads |= regs_of(o)
        need = 0
        for dist, h in enumerate(reversed(self.hist)):
            req = 0
            if h["valu"]:
                vw = {r for r in h["writes"] if r[0] == "v"}
                sw = {r for r in h["writes"] if r[0] in ("s", "vcc")}
                if (is_dpp or is_perm) and (vw & reads):
                    req = max(req, 2)
                if is_rl and (vw & reads):
                    req = max(req, 1)
                if is_valu and (sw & reads):
                    req = max(req, 4 if is_rl else 2)
                if is_vmem and (sw & reads):
                    req = max(req, 5)
                if (not is_valu) and (not is_vmem) and (sw & reads):
                    req = max(req, 4)
                if h["trans"] and is_valu and (vw & reads):
                    req = max(req, 1)
            if h["wide_store"] and is_valu and (h["reads"] & writes):
                req = max(req, 2)
            need = max(need, req - h["after"])
        if need > 0:
            self._push("s_nop %d" % (need - 1), need, dict(valu=False, writes=set(), reads=set(), trans=False, wide_store=False))
        wide = is_vmem and "store" in mn and ("x4" in mn or "x3" in mn)
        self._push(text, 1, dict(valu=is_valu, writes=writes, reads=reads, trans=mn.startswith(TRANS), wide_store=wide))

    def _push(self, text, states, info):
        if text.startswith("s_nop"):
            states = int(text.split()[1]) + 1
        for h in self.hist:
            h["after"] += states
        info["after"] = 0
        self.hist.append(info)
        self.hist = [h for h in self.hist if h["after"] < 8]
        self.lines.append("    " + text)

    def text(self):
        return "\n".join(self.lines) + "\n"


def gen(R=16, WPW=4, TPW=512, NT=True, VG=None):
    SKV = 65536
    HKV = 16
    WAVES_PER_HEAD = SKV // TPW
    NWAVES = WAVES_PER_HEAD * HKV
    NWG = NWAVES // WPW
    NSPLIT = WAVES_PER_HEAD // WPW
    NTILES = TPW // 64
    assert NSPLIT <= 64 and NTILES >= 2
    assert 64 % R == 0
    ntf = " nt" if NT else ""
    LOG_WPH = WAVES_PER_HEAD.bit_length() - 1
    LOG_WPW = WPW.bit_length() - 1
    LOG_NSPLIT = NSPLIT.bit_length() - 1
    CSCALE = (128.0 ** -0.5) * 1.4426950408889634

    e = Emit()
    vLoff, vSoff, vLdsW, vLdsR = 0, 1, 2, 3
    vM = 4
    vT0, vT1, vT2 = 6, 7, 5
    vL = 8
    vZ = 10
    vVS = 12
    vP = 14
    vPP = 16
    vLane = 18
    vT3 = 19
    QS = 20
    O = 52
    A = 84
    RING = 100
    NV = RING + 4 * R
    if VG is None:
        VG = NV

    def qs(sc):
        return "v[%d:%d]" % (QS + 2 * sc, QS + 2 * sc + 1)

    def o(sc):
        return "v[%d:%d]" % (O + 2 * sc, O + 2 * sc + 1)

    def a(i):
        return "v[%d:%d]" % (A + 2 * i, A + 2 * i + 1)

    def ring(slot):
        return RING + 4 * slot

    sK, sV, sVS, sVZ = 8, 12, 16, 20
    sQ, sKS, sKZ, sWS = 24, 28, 32, 36
    sKoff, sVoff, sSoff, sCnt = 40, 41, 42, 43
    sMask1, sMask0 = 44, 46
    sM0, sM1 = 48, 49
    sF = 50
    sC0, sC1 = 52, 53
    sWave, sGW, sKVH, sChunk, sT0, sT1 = 54, 55, 56, 57, 58, 59
    sPtr = 60
    sL0, sZ0, sL1, sZ1 = 80, 81, 82, 83
    sSplit = 84
    sEx = 86

    e.raw("%s_kernel:" % NAME)
    e.i("s_cmp_ge_u32 s2, %d" % NWG)
    e.i("s_cbranch_scc1 L_done1")
    e.i("s_load_dwordx16 s[%d:%d], s[0:1], 0" % (sPtr, sPtr + 15))
    e.i("s_load_dwordx4 s[%d:%d], s[0:1], 64" % (sPtr + 16, sPtr + 19))
    pq, pqk, pqv, pks, pkz, pvs, pvz, pout, pdbg, pws = [sPtr + 2 * k for k in range(10)]
    e.i("v_lshrrev_b32 v%d, 6, v0" % vT0)
    e.i("v_and_b32 v%d, 63, v0" % vLane)
    e.i("v_readfirstlane_b32 s%d, v%d" % (sWave, vT0))
    e.i("v_lshrrev_b32 v%d, 3, v%d" % (vT0, vLane))
    e.i("v_and_b32 v%d, 7, v%d" % (vT1, vLane))
    e.i("v_lshlrev_b32 v%d, 9, v%d" % (vLoff, vT0))
    e.i("v_lshl_add_u32 v%d, v%d, 4, v%d" % (vLoff, vT1, vLoff))
    e.i("v_lshrrev_b32 v%d, 2, v%d" % (vT2, vT1))
    e.i("v_and_b32 v%d, 2, v%d" % (vT3, vT1))
    e.i("v_add_u32 v%d, v%d, v%d" % (vT2, vT2, vT3))
    e.i("v_and_b32 v%d, 1, v%d" % (vT3, vT1))
    e.i("v_lshl_add_u32 v%d, v%d, 2, v%d" % (vT2, vT3, vT2))
    e.i("v_lshl_add_u32 v%d, v%d, 3, v%d" % (vSoff, vT2, vT0))
    e.i("v_lshlrev_b32 v%d, 1, v%d" % (vSoff, vSoff))
    e.i("s_lshl_b32 s%d, s%d, 9" % (sT0, sWave))
    e.i("v_lshlrev_b32 v%d, 6, v%d" % (vLdsR, vT0))
    e.i("v_add_u32 v%d, s%d, v%d" % (vLdsR, sT0, vLdsR))
    e.i("v_lshl_add_u32 v%d, v%d, 3, v%d" % (vLdsW, vT2, vLdsR))
    e.i("s_mov_b32 s%d, 0xcccccccc" % sMask1)
    e.i("s_mov_b32 s%d, 0xcccccccc" % (sMask1 + 1))
    e.i("s_mov_b32 s%d, 0xaaaaaaaa" % sMask0)
    e.i("s_mov_b32 s%d, 0xaaaaaaaa" % (sMask0 + 1))
    e.i("s_lshl_b32 s%d, s2, %d" % (sGW, LOG_WPW))
    e.i("s_add_u32 s%d, s%d, s%d" % (sGW, sGW, sWave))
    e.i("s_lshr_b32 s%d, s%d, %d" % (sKVH, sGW, LOG_WPH))
    e.i("s_and_b32 s%d, s%d, %d" % (sChunk, sGW, WAVES_PER_HEAD - 1))
    e.i("s_and_b32 s%d, s2, %d" % (sSplit, NSPLIT - 1))
    e.i("s_waitcnt lgkmcnt(0)")
    e.i("s_mul_i32 s%d, s%d, %d" % (sT0, sGW, TPW * 512))
    for srd, p in ((sK, pqk), (sV, pqv)):
        e.i("s_add_u32 s%d, s%d, s%d" % (srd, p, sT0))
        e.i("s_addc_u32 s%d, s%d, 0" % (srd + 1, p + 1))
        e.i("s_mov_b32 s%d, %d" % (srd + 2, TPW * 512))
        e.i("s_mov_b32 s%d, 0x00020000" % (srd + 3))
    e.i("s_mul_i32 s%d, s%d, %d" % (sT0, sGW, TPW * 2))
    for srd, p in ((sVS, pvs), (sVZ, pvz)):
        e.i("s_add_u32 s%d, s%d, s%d" % (srd, p, sT0))
        e.i("s_addc_u32 s%d, s%d, 0" % (srd + 1, p + 1))
        e.i("s_mov_b32 s%d, %d" % (srd + 2, TPW * 2))
        e.i("s_mov_b32 s%d, 0x00020000" % (srd + 3))
    for srd, p, n in ((sQ, pq, 8192), (sKS, pks, 8192), (sKZ, pkz, 8192), (sWS, pws, 1 << 24)):
        e.i("s_mov_b32 s%d, s%d" % (srd, p))
        e.i("s_mov_b32 s%d, s%d" % (srd + 1, p + 1))
        e.i("s_mov_b32 s%d, %d" % (srd + 2, n))
        e.i("s_mov_b32 s%d, 0x00020000" % (srd + 3))
    e.i("s_mov_b32 s%d, 0" % sKoff)
    e.i("s_mov_b32 s%d, 0" % sVoff)
    e.i("s_mov_b32 s%d, 0" % sSoff)

    e.i("v_lshlrev_b32 v%d, 3, v%d" % (vT3, vT1))
    e.i("s_lshl_b32 s%d, s%d, 9" % (sT0, sKVH))
    for h in range(2):
        for seg in range(4):
            r = O + (h * 4 + seg) * 2
            e.i("buffer_load_dwordx2 v[%d:%d], v%d, s[%d:%d], s%d offen offset:%d" % (r, r + 1, vT3, sQ, sQ + 3, sT0, h * 256 + seg * 64))
    e.i("s_mul_i32 s%d, s%d, %d" % (sT1, sChunk, TPW))
    e.i("s_lshr_b32 s%d, s%d, 15" % (sT1, sT1))
    e.i("s_lshl_b32 s%d, s%d, 8" % (sT1, sT1))
    e.i("s_add_u32 s%d, s%d, s%d" % (sT1, sT1, sT0))
    for seg in range(4):
        r = O + 16 + seg * 2
        e.i("buffer_load_dwordx2 v[%d:%d], v%d, s[%d:%d], s%d offen offset:%d" % (r, r + 1, vT3, sKS, sKS + 3, sT1, seg * 64))
    for seg in range(4):
        r = O + 24 + seg * 2
        e.i("buffer_load_dwordx2 v[%d:%d], v%d, s[%d:%d], s%d offen offset:%d" % (r, r + 1, vT3, sKZ, sKZ + 3, sT1, seg * 64))

    def issue_load(j):
        slot = j % R
        r = ring(slot)
        jj = j % 32
        seg = jj % 4
        if j < 32:
            e.i("buffer_load_dwordx4 v[%d:%d], v%d, s[%d:%d], s%d offen offset:%d%s" % (r, r + 3, vLoff, sK, sK + 3, sKoff, seg * 128, ntf))
            if seg == 3:
                e.i("s_add_u32 s%d, s%d, 4096" % (sKoff, sKoff))
        else:
            e.i("buffer_load_dwordx4 v[%d:%d], v%d, s[%d:%d], s%d offen offset:%d%s" % (r, r + 3, vLoff, sV, sV + 3, sVoff, seg * 128, ntf))
            if seg == 3:
                e.i("s_add_u32 s%d, s%d, 4096" % (sVoff, sVoff))

    def issue_scales():
        e.i("buffer_load_ushort v%d, v%d, s[%d:%d], s%d offen" % (vVS, vSoff, sVS, sVS + 3, sSoff))
        e.i("buffer_load_ushort v%d, v%d, s[%d:%d], s%d offen" % (vVS + 1, vSoff, sVZ, sVZ + 3, sSoff))
        e.i("s_add_u32 s%d, s%d, 128" % (sSoff, sSoff))

    issue_scales()
    for j in range(R):
        issue_load(j)

    e.i("s_waitcnt vmcnt(%d)" % (R + 2))
    e.i("s_mov_b32 s%d, 0x%08x" % (sT0, f2u(CSCALE)))
    for seg in range(4):
        for half in range(2):
            src = O + 16 + seg * 2 + half
            d0 = A + seg * 4 + half * 2
            e.i("v_lshlrev_b32 v%d, 16, v%d" % (d0, src))
            e.i("v_and_b32 v%d, 0xffff0000, v%d" % (d0 + 1, src))
    for k in range(16):
        e.i("v_mul_f32 v%d, s%d, v%d" % (A + k, sT0, A + k))
    for h in range(2):
        for seg in range(4):
            for half in range(2):
                src = O + (h * 4 + seg) * 2 + half
                sc0 = seg * 4 + half * 2
                e.i("v_lshlrev_b32 v%d, 16, v%d" % (QS + 2 * sc0 + h, src))
                e.i("v_and_b32 v%d, 0xffff0000, v%d" % (QS + 2 * (sc0 + 1) + h, src))
    for sc in range(16):
        for h in range(2):
            e.i("v_mul_f32 v%d, v%d, v%d" % (QS + 2 * sc + h, QS + 2 * sc + h, A + sc))
    for seg in range(4):
        for half in range(2):
            src = O + 24 + seg * 2 + half
            d0 = A + seg * 4 + half * 2
            e.i("v_lshlrev_b32 v%d, 16, v%d" % (d0, src))
            e.i("v_and_b32 v%d, 0xffff0000, v%d" % (d0 + 1, src))
    for h in range(2):
        t = vT0 + h
        e.i("v_mul_f32 v%d, v%d, v%d" % (t, QS + h, A))
        for sc in range(1, 16):
            e.i("v_fmac_f32 v%d, v%d, v%d" % (t, QS + 2 * sc + h, A + sc))
    for mod in ("quad_perm:[1,0,3,2]", "quad_perm:[2,3,0,1]", "row_half_mirror"):
        for h in range(2):
            t = vT0 + h
            e.i("v_add_f32_dpp v%d, v%d, v%d %s row_mask:0xf bank_mask:0xf" % (t, t, t, mod))
    e.i("v_readfirstlane_b32 s%d, v%d" % (sC0, vT0))
    e.i("v_readfirstlane_b32 s%d, v%d" % (sC1, vT1))
    for k in range(32):
        e.i("v_mov_b32 v%d, 0" % (O + k))
    for r in (vL, vL + 1, vZ, vZ + 1):
        e.i("v_mov_b32 v%d, 0" % r)
    e.i("v_mov_b32 v%d, 0x%08x" % (vM, f2u(-3.0e38)))
    e.i("s_mov_b32 s%d, %d" % (sCnt, NTILES - 1))

    def stepA(x, y):
        for k in range(2):
            e.i("v_add_f32_dpp v%d, v%d, v%d row_half_mirror row_mask:0xf bank_mask:0x5" % (A + 2 * x + k, A + 2 * x + k, A + 2 * x + k))
        for k in range(2):
            e.i("v_add_f32_dpp v%d, v%d, v%d row_half_mirror row_mask:0xf bank_mask:0xa" % (A + 2 * x + k, A + 2 * y + k, A + 2 * y + k))

    def stepQ(x, y, mask, perm, out):
        for k in range(2):
            X, Y = A + 2 * x + k, A + 2 * y + k
            t = vT0 + k
            e.i("v_cndmask_b32 v%d, v%d, v%d, s[%d:%d]" % (t, Y, X, mask, mask + 1))
            e.i("v_cndmask_b32 v%d, v%d, v%d, s[%d:%d]" % (Y, X, Y, mask, mask + 1))
        for k in range(2):
            Y = A + 2 * y + k
            t = vT0 + k
            e.i("v_add_f32_dpp v%d, v%d, v%d %s row_mask:0xf bank_mask:0xf" % (out + k, t, Y, perm))

    def softmax():
        S0, S1 = A, A + 1
        e.i("v_mov_b32 v%d, v%d" % (vT0, S0))
        e.i("v_mov_b32 v%d, v%d" % (vT1, S1))
        e.i("v_lshlrev_b32 v%d, 16, v%d" % (vVS, vVS))
        e.i("v_lshlrev_b32 v%d, 16, v%d" % (vVS + 1, vVS + 1))
        e.i("v_permlane32_swap_b32 v%d, v%d" % (vT0, vT1))
        e.i("v_max_f32 v%d, v%d, v%d" % (vT0, vT0, vT1))
        e.i("v_mov_b32 v%d, v%d" % (vT1, vT0))
        e.i("v_permlane16_swap_b32 v%d, v%d" % (vT0, vT1))
        e.i("v_max_f32 v%d, v%d, v%d" % (vT0, vT0, vT1))
        for rr in (8, 4, 2, 1):
            e.i("v_max_f32_dpp v%d, v%d, v%d row_ror:%d row_mask:0xf bank_mask:0xf" % (vT0, vT0, vT0, rr))
        e.i("v_max_f32 v%d, v%d, v%d" % (vT0, vT0, vM))
        e.i("v_sub_f32 v%d, v%d, v%d" % (vT1, vM, vT0))
        e.i("v_exp_f32 v%d, v%d" % (vT1, vT1))
        e.i("v_mov_b32 v%d, v%d" % (vM, vT0))
        e.i("v_readlane_b32 s%d, v%d, 0" % (sM0, vT0))
        e.i("v_readlane_b32 s%d, v%d, 32" % (sM1, vT0))
        e.i("v_readlane_b32 s%d, v%d, 0" % (sF, vT1))
        e.i("v_readlane_b32 s%d, v%d, 32" % (sF + 1, vT1))
        e.i("v_subrev_f32 v%d, s%d, v%d" % (vP, sM0, S0))
        e.i("v_subrev_f32 v%d, s%d, v%d" % (vP + 1, sM1, S1))
        e.i("v_exp_f32 v%d, v%d" % (vP, vP))
        e.i("v_exp_f32 v%d, v%d" % (vP + 1, vP + 1))
        P = "v[%d:%d]" % (vP, vP + 1)
        PP = "v[%d:%d]" % (vPP, vPP + 1)
        L = "v[%d:%d]" % (vL, vL + 1)
        Z = "v[%d:%d]" % (vZ, vZ + 1)
        VS = "v[%d:%d]" % (vVS, vVS + 1)
        F = "s[%d:%d]" % (sF, sF + 1)
        e.i("v_pk_mul_f32 %s, %s, %s" % (Z, Z, F))
        e.i("v_pk_mul_f32 %s, %s, %s op_sel:[0,0] op_sel_hi:[1,0]" % (PP, P, VS))
        e.i("v_pk_fma_f32 %s, %s, %s, %s" % (L, L, F, P))
        e.i("ds_write_b64 v%d, %s" % (vLdsW, PP))
        e.i("v_pk_fma_f32 %s, %s, %s, %s op_sel:[0,1,0] op_sel_hi:[1,1,1]" % (Z, PP, VS, Z))
        for k in range(4):
            e.i("ds_read_b128 v[%d:%d], v%d offset:%d" % (A + 4 * k, A + 4 * k + 3, vLdsR, 16 * k))
        for sc in range(16):
            e.i("v_pk_mul_f32 %s, %s, %s" % (o(sc), o(sc), F))

    def body(last):
        q = []
        sp = 31 + R - 64
        for j in range(R):
            q.append(("L", j))
            if j == sp:
                q.append(("S", 0))
                q.append(("S", 1))
        for j in range(64):
            if j == 32:
                softmax()
                if not last:
                    issue_scales()
                    q.append(("S", 0))
                    q.append(("S", 1))
                e.i("s_waitcnt lgkmcnt(0)")
            idx = q.index(("L", j))
            n_after = len(q) - idx - 1
            assert n_after <= 63
            e.i("s_waitcnt vmcnt(%d)" % n_after)
            q = q[idx + 1:]
            r = ring(j % R)
            for c in range(4):
                e.i("v_cvt_f32_i32 v%d, v%d" % (r + c, r + c))
            jj = j % 32
            g, seg = jj // 4, jj % 4
            for c in range(4):
                pr = "v[%d:%d]" % (r + (c & 2), r + (c & 2) + 1)
                b = c & 1
                sc = seg * 4 + c
                if j < 32:
                    if seg == 0 and c == 0:
                        e.i("v_pk_mul_f32 %s, %s, %s op_sel:[%d,0] op_sel_hi:[%d,1]" % (a(g), pr, qs(sc), b, b))
                    else:
                        e.i("v_pk_fma_f32 %s, %s, %s, %s op_sel:[%d,0,0] op_sel_hi:[%d,1,1]" % (a(g), pr, qs(sc), a(g), b, b))
                else:
                    e.i("v_pk_fma_f32 %s, %s, %s, %s op_sel:[%d,0,0] op_sel_hi:[%d,1,1]" % (o(sc), pr, a(g), o(sc), b, b))
            nj = j + R
            if nj < 64:
                issue_load(nj)
                q.append(("L", nj))
            elif not last:
                issue_load(nj - 64)
                q.append(("N", nj - 64))
            if j < 32 and seg == 3:
                if g % 2 == 1:
                    stepA(g - 1, g)
                if g % 4 == 3:
                    stepQ(g - 3, g - 1, sMask1, "quad_perm:[2,3,0,1]", A + 2 * (g - 3))
                if g == 7:
                    stepQ(0, 4, sMask0, "quad_perm:[1,0,3,2]", A)

    e.label("L_loop")
    body(False)
    e.i("s_sub_u32 s%d, s%d, 1" % (sCnt, sCnt))
    e.i("s_cmp_lg_u32 s%d, 0" % sCnt)
    e.i("s_cbranch_scc1 L_loop")
    e.i("s_nop 4")
    body(True)

    e.i("v_permlane32_swap_b32 v%d, v%d" % (vL, vL + 1))
    e.i("v_permlane32_swap_b32 v%d, v%d" % (vZ, vZ + 1))
    e.i("v_add_f32 v%d, v%d, v%d" % (vL, vL, vL + 1))
    e.i("v_add_f32 v%d, v%d, v%d" % (vZ, vZ, vZ + 1))
    e.i("v_permlane16_swap_b32 v%d, v%d" % (vL, vZ))
    e.i("v_add_f32 v%d, v%d, v%d" % (vL, vL, vZ))
    for rr in (8, 4, 2, 1):
        e.i("v_add_f32_dpp v%d, v%d, v%d row_ror:%d row_mask:0xf bank_mask:0xf" % (vL, vL, vL, rr))
    e.i("v_readlane_b32 s%d, v%d, 0" % (sL0, vL))
    e.i("v_readlane_b32 s%d, v%d, 16" % (sZ0, vL))
    e.i("v_readlane_b32 s%d, v%d, 32" % (sL1, vL))
    e.i("v_readlane_b32 s%d, v%d, 48" % (sZ1, vL))
    for sc in range(16):
        e.i("v_permlane32_swap_b32 v%d, v%d" % (O + 2 * sc, O + 2 * sc + 1))
    for sc in range(16):
        e.i("v_add_f32 v%d, v%d, v%d" % (O + 2 * sc, O + 2 * sc, O + 2 * sc + 1))
    for sc in range(8):
        e.i("v_permlane16_swap_b32 v%d, v%d" % (O + 2 * sc, O + 2 * (sc + 8)))
    for sc in range(8):
        e.i("v_add_f32 v%d, v%d, v%d" % (O + 2 * sc, O + 2 * sc, O + 2 * (sc + 8)))
    for sc in range(4):
        e.i("v_add_f32_dpp v%d, v%d, v%d row_ror:8 row_mask:0xf bank_mask:0x3" % (A + sc, O + 2 * sc, O + 2 * sc))
    for sc in range(4):
        e.i("v_add_f32_dpp v%d, v%d, v%d row_ror:8 row_mask:0xf bank_mask:0xc" % (A + sc, O + 2 * (sc + 4), O + 2 * (sc + 4)))
    e.i("s_mov_b32 s%d, 0" % sEx)
    e.i("s_mov_b32 s%d, -1" % (sEx + 1))
    e.i("v_mov_b32 v%d, s%d" % (vT0, sZ0))
    e.i("v_mov_b32 v%d, s%d" % (vT1, sZ1))
    e.i("v_cndmask_b32 v%d, v%d, v%d, s[%d:%d]" % (vT0, vT0, vT1, sEx, sEx + 1))
    for sc in range(4):
        e.i("v_sub_f32 v%d, v%d, v%d" % (A + sc, A + sc, vT0))
    e.i("v_mov_b32 v%d, s%d" % (vT0, sC0))
    e.i("v_mov_b32 v%d, s%d" % (vT1, sC1))
    e.i("v_cndmask_b32 v%d, v%d, v%d, s[%d:%d]" % (vT0, vT0, vT1, sEx, sEx + 1))
    e.i("v_sub_f32 v%d, v%d, v%d" % (vP, vM, vT0))
    e.i("v_mov_b32 v%d, s%d" % (vT0, sL0))
    e.i("v_mov_b32 v%d, s%d" % (vT1, sL1))
    e.i("v_cndmask_b32 v%d, v%d, v%d, s[%d:%d]" % (vP + 1, vT0, vT1, sEx, sEx + 1))
    OB = WPW * 512
    MB = OB + WPW * 1024
    LDS = MB + WPW * 16
    e.i("s_lshl_b32 s%d, s%d, 10" % (sT0, sWave))
    e.i("v_lshlrev_b32 v%d, 4, v%d" % (vT2, vLane))
    e.i("v_add_u32 v%d, s%d, v%d" % (vT0, sT0, vT2))
    e.i("ds_write_b128 v%d, v[%d:%d] offset:%d" % (vT0, A, A + 3, OB))
    e.i("s_lshl_b32 s%d, s%d, 4" % (sT0, sWave))
    e.i("v_lshrrev_b32 v%d, 5, v%d" % (vT3, vLane))
    e.i("v_lshlrev_b32 v%d, 3, v%d" % (vT3, vT3))
    e.i("v_add_u32 v%d, s%d, v%d" % (vT1, sT0, vT3))
    e.i("ds_write_b64 v%d, v[%d:%d] offset:%d" % (vT1, vP, vP + 1, MB))
    e.i("s_waitcnt lgkmcnt(0)")
    e.i("s_barrier")
    e.i("s_cmp_lg_u32 s%d, 0" % sWave)
    e.i("s_cbranch_scc1 L_done1")
    assert WPW <= 16
    for w in range(WPW):
        e.i("ds_read_b64 v[%d:%d], v%d offset:%d" % (QS + 2 * w, QS + 2 * w + 1, vT3, MB + 16 * w))
    OT = O
    assert O + 4 * WPW <= NV
    for w in range(WPW):
        e.i("ds_read_b128 v[%d:%d], v%d offset:%d" % (OT + 4 * w, OT + 4 * w + 3, vT2, OB + 1024 * w))
    e.i("s_waitcnt lgkmcnt(0)")
    e.i("v_mov_b32 v%d, v%d" % (vT0, QS))
    for w in range(1, WPW):
        e.i("v_max_f32 v%d, v%d, v%d" % (vT0, vT0, QS + 2 * w))
    for w in range(WPW):
        e.i("v_sub_f32 v%d, v%d, v%d" % (QS + 2 * w, QS + 2 * w, vT0))
    for w in range(WPW):
        e.i("v_exp_f32 v%d, v%d" % (QS + 2 * w, QS + 2 * w))
    e.i("v_mul_f32 v%d, v%d, v%d" % (vT1, QS, QS + 1))
    for w in range(1, WPW):
        e.i("v_fmac_f32 v%d, v%d, v%d" % (vT1, QS + 2 * w, QS + 2 * w + 1))
    for c in range(4):
        e.i("v_mul_f32 v%d, v%d, v%d" % (OT + c, OT + c, QS))
    for w in range(1, WPW):
        for c in range(4):
            e.i("v_fmac_f32 v%d, v%d, v%d" % (OT + c, OT + 4 * w + c, QS + 2 * w))
    MLB = 32 * NSPLIT * 512
    e.i("s_lshl_b32 s%d, s%d, %d" % (sT0, sKVH, LOG_NSPLIT + 1))
    e.i("s_add_u32 s%d, s%d, s%d" % (sT0, sT0, sSplit))
    e.i("v_lshrrev_b32 v%d, 5, v%d" % (vT3, vLane))
    e.i("v_lshlrev_b32 v%d, %d, v%d" % (vT3, LOG_NSPLIT, vT3))
    e.i("v_add_u32 v%d, s%d, v%d" % (vT3, sT0, vT3))
    e.i("v_and_b32 v%d, 31, v%d" % (vT2, vLane))
    e.i("v_lshlrev_b32 v%d, 4, v%d" % (vT2, vT2))
    e.i("v_lshl_add_u32 v%d, v%d, 9, v%d" % (vT2, vT3, vT2))
    e.i("buffer_store_dwordx4 v[%d:%d], v%d, s[%d:%d], 0 offen" % (OT, OT + 3, vT2, sWS, sWS + 3))
    e.i("v_lshlrev_b32 v%d, 3, v%d" % (vT3, vT3))
    e.i("s_mov_b32 s%d, %d" % (sT1, MLB))
    e.i("buffer_store_dwordx2 v[%d:%d], v%d, s[%d:%d], s%d offen" % (vT0, vT1, vT3, sWS, sWS + 3, sT1))
    e.raw("L_done1:")
    e.i("s_endpgm")
    k1 = e.text()

    e = Emit()
    e.raw(".p2align 8")
    e.raw(".globl combine_kernel")
    e.raw(".type combine_kernel,@function")
    e.raw("combine_kernel:")
    e.i("s_cmp_ge_u32 s2, 32")
    e.i("s_cbranch_scc1 L_done2")
    e.i("s_load_dwordx2 s[4:5], s[0:1], 56")
    e.i("s_load_dwordx2 s[6:7], s[0:1], 72")
    e.i("v_lshlrev_b32 v1, 3, v0")
    e.i("s_waitcnt lgkmcnt(0)")
    e.i("s_mov_b32 s8, s4")
    e.i("s_mov_b32 s9, s5")
    e.i("s_mov_b32 s10, 8192")
    e.i("s_mov_b32 s11, 0x00020000")
    e.i("s_mov_b32 s12, s6")
    e.i("s_mov_b32 s13, s7")
    e.i("s_mov_b32 s14, %d" % (1 << 24))
    e.i("s_mov_b32 s15, 0x00020000")
    e.i("s_mul_i32 s16, s2, %d" % (NSPLIT * 8))
    e.i("s_add_u32 s16, s16, %d" % MLB)
    e.i("v_and_b32 v2, %d, v0" % (NSPLIT - 1))
    e.i("v_lshlrev_b32 v2, 3, v2")
    e.i("buffer_load_dwordx2 v[4:5], v2, s[12:15], s16 offen")
    e.i("s_mul_i32 s17, s2, %d" % (NSPLIT * 512))
    for t in range(NSPLIT):
        if t and t % 8 == 0:
            e.i("s_add_u32 s17, s17, 4096")
        e.i("buffer_load_dwordx2 v[%d:%d], v1, s[12:15], s17 offen offset:%d" % (10 + 2 * t, 11 + 2 * t, (t % 8) * 512))
    e.i("s_waitcnt vmcnt(%d)" % min(NSPLIT, 63))
    if NSPLIT == 64:
        pass
    e.i("v_mov_b32 v6, v4")
    e.i("v_mov_b32 v7, v4")
    e.i("v_permlane32_swap_b32 v6, v7")
    e.i("v_max_f32 v6, v6, v7")
    e.i("v_mov_b32 v7, v6")
    e.i("v_permlane16_swap_b32 v6, v7")
    e.i("v_max_f32 v6, v6, v7")
    for rr in (8, 4, 2, 1):
        e.i("v_max_f32_dpp v6, v6, v6 row_ror:%d row_mask:0xf bank_mask:0xf" % rr)
    e.i("v_sub_f32 v4, v4, v6")
    e.i("v_exp_f32 v4, v4")
    e.i("v_mul_f32 v5, v4, v5")
    if NSPLIT < 64:
        e.i("v_cmp_gt_u32 vcc, %d, v0" % NSPLIT)
        e.i("v_cndmask_b32 v5, 0, v5, vcc")
    e.i("v_mov_b32 v6, v5")
    e.i("v_mov_b32 v7, v5")
    e.i("v_permlane32_swap_b32 v6, v7")
    e.i("v_add_f32 v6, v6, v7")
    e.i("v_mov_b32 v7, v6")
    e.i("v_permlane16_swap_b32 v6, v7")
    e.i("v_add_f32 v6, v6, v7")
    for rr in (8, 4, 2, 1):
        e.i("v_add_f32_dpp v6, v6, v6 row_ror:%d row_mask:0xf bank_mask:0xf" % rr)
    e.i("v_rcp_f32 v7, v6")
    e.i("v_mov_b32 v8, 0")
    e.i("v_mov_b32 v9, 0")
    e.i("s_waitcnt vmcnt(0)")
    for t in range(NSPLIT):
        e.i("v_readlane_b32 s%d, v4, %d" % (20 + (t % 8), t))
        if t >= 3:
            tt = t - 3
            e.i("v_pk_fma_f32 v[8:9], v[%d:%d], s[%d:%d], v[8:9] op_sel:[0,%d,0] op_sel_hi:[1,%d,1]" % (
                10 + 2 * tt, 11 + 2 * tt, 20 + ((tt % 8) & ~1), 21 + ((tt % 8) & ~1), tt & 1, tt & 1))
    for tt in range(max(NSPLIT - 3, 0), NSPLIT):
        e.i("v_pk_fma_f32 v[8:9], v[%d:%d], s[%d:%d], v[8:9] op_sel:[0,%d,0] op_sel_hi:[1,%d,1]" % (
            10 + 2 * tt, 11 + 2 * tt, 20 + ((tt % 8) & ~1), 21 + ((tt % 8) & ~1), tt & 1, tt & 1))
    e.i("v_mul_f32 v8, v8, v7")
    e.i("v_mul_f32 v9, v9, v7")
    e.i("v_cvt_pk_bf16_f32 v8, v8, v9")
    e.i("v_lshlrev_b32 v1, 2, v0")
    e.i("s_lshl_b32 s16, s2, 8")
    e.i("buffer_store_dword v8, v1, s[8:11], s16 offen")
    e.raw("L_done2:")
    e.i("s_endpgm")
    k2 = e.text()
    NV2 = 10 + 2 * NSPLIT

    hdr = open("cdna_kernels/%s.s.ref" % NAME).read().split("; Override launch geometry")[0]
    out = hdr
    out += "; @launch kernel=%s_kernel grid=(%d,1,1) block=(%d,1,1) lds=%d\n" % (NAME, NWG, WPW * 64, LDS)
    out += "; @launch kernel=combine_kernel grid=(32,1,1) block=(64,1,1) lds=0\n"
    out += '.amdgcn_target "amdgcn-amd-amdhsa--gfx950"\n.text\n'
    out += ".globl %s_kernel\n.p2align 8\n.type %s_kernel,@function\n" % (NAME, NAME)
    out += k1 + k2
    out += '.section .rodata,"a"\n'

    def kd(name, nv, ns):
        return (".p2align 6\n.amdhsa_kernel %s\n  .amdhsa_next_free_vgpr %d\n  .amdhsa_next_free_sgpr %d\n"
                "  .amdhsa_accum_offset %d\n  .amdhsa_group_segment_fixed_size 0\n  .amdhsa_kernarg_size 80\n"
                "  .amdhsa_user_sgpr_count 2\n  .amdhsa_user_sgpr_kernarg_segment_ptr 1\n"
                "  .amdhsa_system_sgpr_workgroup_id_x 1\n.end_amdhsa_kernel\n") % (name, nv, ns, (nv + 3) // 4 * 4)

    out += kd(NAME + "_kernel", VG, 96)
    out += kd("combine_kernel", NV2, 40)
    return out


if __name__ == "__main__":
    ap = argparse.ArgumentParser()
    ap.add_argument("-R", type=int, default=16)
    ap.add_argument("--wpw", type=int, default=4)
    ap.add_argument("--tpw", type=int, default=512)
    ap.add_argument("--nt", type=int, default=1)
    ap.add_argument("--vg", type=int, default=None)
    ap.add_argument("-o", default="cdna_kernels/%s.s" % NAME)
    args = ap.parse_args()
    s = gen(R=args.R, WPW=args.wpw, TPW=args.tpw, NT=bool(args.nt), VG=args.vg)
    open(args.o, "w").write(s)
    print("wrote", args.o, len(s), "bytes")
```

```python
import re
import sys
import struct
import argparse

NAME = "standalone__kv_cache_quant_int4_int2_kv_with_per_channel_or_per_token_scales__decode"


def f2u(x):
    return struct.unpack("<I", struct.pack("<f", x))[0]


REG_RE = re.compile(r"\b([vs])(\d+)\b|\b([vs])\[(\d+):(\d+)\]|\b(vcc)\b")


def regs_of(op):
    out = set()
    for m in REG_RE.finditer(op):
        if m.group(1):
            out.add((m.group(1), int(m.group(2))))
        elif m.group(3):
            for r in range(int(m.group(4)), int(m.group(5)) + 1):
                out.add((m.group(3), r))
        else:
            out.add(("vcc", 0))
    return out


TRANS = ("v_exp_f32", "v_log_f32", "v_rcp_f32", "v_rsq_f32", "v_sqrt_f32")


class Emit:
    def __init__(self):
        self.lines = []
        self.hist = []

    def raw(self, s):
        self.lines.append(s)

    def label(self, s):
        self.i("s_nop 4")
        self.lines.append(s + ":")
        self.hist = []

    def comment(self, s):
        self.lines.append("    ; " + s)

    def i(self, text):
        text = text.strip()
        mn = text.split()[0]
        rest = text[len(mn):].strip()
        ops = [o.strip() for o in rest.split(",")] if rest else []
        clean = []
        for o in ops:
            clean.append(o.split()[0] if o.split() else o)
        ops = clean
        is_valu = mn.startswith("v_")
        is_vmem = mn.startswith("buffer_") or mn.startswith("global_")
        is_dpp = "_dpp" in mn
        is_perm = mn.startswith("v_permlane")
        is_rl = mn.startswith("v_readlane") or mn.startswith("v_readfirstlane")
        writes, reads = set(), set()
        if is_valu:
            if is_perm:
                writes = regs_of(ops[0]) | regs_of(ops[1])
                reads = set(writes)
            else:
                writes = regs_of(ops[0])
                for o in ops[1:]:
                    reads |= regs_of(o)
                if "fmac" in mn or is_dpp:
                    reads |= regs_of(ops[0])
                if mn.startswith("v_cndmask") and len(ops) == 3:
                    reads.add(("vcc", 0))
        elif is_vmem:
            for o in ops:
                reads |= regs_of(o)
        elif mn.startswith("ds_"):
            for o in ops:
                reads |= regs_of(o)
        else:
            for o in ops:
                reads |= regs_of(o)
        need = 0
        for dist, h in enumerate(reversed(self.hist)):
            req = 0
            if h["valu"]:
                vw = {r for r in h["writes"] if r[0] == "v"}
                sw = {r for r in h["writes"] if r[0] in ("s", "vcc")}
                if (is_dpp or is_perm) and (vw & reads):
                    req = max(req, 2)
                if is_rl and (vw & reads):
                    req = max(req, 1)
                if is_valu and (sw & reads):
                    req = max(req, 4 if is_rl else 2)
                if is_vmem and (sw & reads):
                    req = max(req, 5)
                if (not is_valu) and (not is_vmem) and (sw & reads):
                    req = max(req, 4)
                if h["trans"] and is_valu and (vw & reads):
                    req = max(req, 1)
            if h["wide_store"] and is_valu and (h["reads"] & writes):
                req = max(req, 2)
            need = max(need, req - h["after"])
        if need > 0:
            self._push("s_nop %d" % (need - 1), need, dict(valu=False, writes=set(), reads=set(), trans=False, wide_store=False))
        wide = is_vmem and "store" in mn and ("x4" in mn or "x3" in mn)
        self._push(text, 1, dict(valu=is_valu, writes=writes, reads=reads, trans=mn.startswith(TRANS), wide_store=wide))

    def _push(self, text, states, info):
        if text.startswith("s_nop"):
            states = int(text.split()[1]) + 1
        for h in self.hist:
            h["after"] += states
        info["after"] = 0
        self.hist.append(info)
        self.hist = [h for h in self.hist if h["after"] < 8]
        self.lines.append("    " + text)

    def text(self):
        return "\n".join(self.lines) + "\n"


def gen(R=16, WPW=4, TPW=512, NT=True, VG=None, BW=0, POL=None, LAY=0, TILES=None, NOK2=0, MAP=0, STAMP=0, WGX=0, DYN=0, AT=None, DYNWS=0, PAT=None, BAR=0, FC=None, TK=5, FCV=0, FCT=None):
    SKV = 65536
    HKV = 16
    WAVES_PER_HEAD = SKV // TPW
    NWAVES = WAVES_PER_HEAD * HKV
    NWG = NWAVES // WPW
    NSPLIT = WAVES_PER_HEAD // WPW
    NTILES = TPW // 64
    if TILES:
        NTILES = TILES
    assert NSPLIT <= 64 and NTILES >= 2
    assert 64 % R == 0
    ntf = " nt" if NT else ""
    if POL is not None:
        ntf = (" " + POL) if POL else ""
    LOG_WPH = WAVES_PER_HEAD.bit_length() - 1
    LOG_WPW = WPW.bit_length() - 1
    LOG_NSPLIT = NSPLIT.bit_length() - 1
    CSCALE = (128.0 ** -0.5) * 1.4426950408889634

    e = Emit()
    vLoff, vSoff, vLdsW, vLdsR = 0, 1, 2, 3
    vM = 4
    vT0, vT1, vT2 = 6, 7, 5
    vL = 8
    vZ = 10
    vVS = 12
    vP = 14
    vPP = 16
    vLane = 18
    vT3 = 19
    QS = 20
    O = 52
    A = 84
    RING = 100
    NV = RING + 4 * R
    vStamp = NV
    if STAMP == 2:
        NV += 1
    vTk = NV
    if FC is not None:
        NV += 1
        assert WPW == 8 and TPW == 512 and not DYN and BAR and R <= 16
        PAT = (8, 0, 1, 64, 512)
    NS = 7
    if VG is None:
        VG = NV

    def qs(sc):
        return "v[%d:%d]" % (QS + 2 * sc, QS + 2 * sc + 1)

    def o(sc):
        return "v[%d:%d]" % (O + 2 * sc, O + 2 * sc + 1)

    def a(i):
        return "v[%d:%d]" % (A + 2 * i, A + 2 * i + 1)

    def ring(slot):
        return RING + 4 * slot

    sK, sV, sVS, sVZ = 8, 12, 16, 20
    sQ, sKS, sKZ, sWS = 24, 28, 32, 36
    sKoff, sVoff, sSoff, sCnt = 40, 41, 42, 43
    sMask1, sMask0 = 44, 46
    sM0, sM1 = 48, 49
    sF = 50
    sC0, sC1 = 52, 53
    sWave, sGW, sKVH, sChunk, sT0, sT1 = 54, 55, 56, 57, 58, 59
    sPtr = 60
    sL0, sZ0, sL1, sZ1 = 80, 81, 82, 83
    sSplit = 84
    sEx = 86
    sQi, sNext = 94, 95
    sDBG = 4
    sCur, sNT, sTkt, sD0, sD1, sBar = 95, 3, 85, 91, 92, 93
    assert not (STAMP and FC is not None) or True
    vAt = 1000

    e.raw("%s_kernel:" % NAME)
    e.i("s_cmp_ge_u32 s2, %d" % NWG)
    e.i("s_cbranch_scc1 L_done1")
    if WGX:
        e.i("s_xor_b32 s2, s2, %d" % WGX)
    if STAMP:
        e.i("s_memrealtime s[88:89]")
    e.i("s_load_dwordx16 s[%d:%d], s[0:1], 0" % (sPtr, sPtr + 15))
    e.i("s_load_dwordx4 s[%d:%d], s[0:1], 64" % (sPtr + 16, sPtr + 19))
    pq, pqk, pqv, pks, pkz, pvs, pvz, pout, pdbg, pws = [sPtr + 2 * k for k in range(10)]
    e.i("v_lshrrev_b32 v%d, 6, v0" % vT0)
    e.i("v_and_b32 v%d, 63, v0" % vLane)
    e.i("v_readfirstlane_b32 s%d, v%d" % (sWave, vT0))
    e.i("v_lshrrev_b32 v%d, 3, v%d" % (vT0, vLane))
    e.i("v_and_b32 v%d, 7, v%d" % (vT1, vLane))
    e.i("v_lshlrev_b32 v%d, 9, v%d" % (vLoff, vT0))
    e.i("v_lshl_add_u32 v%d, v%d, 4, v%d" % (vLoff, vT1, vLoff))
    if LAY == 1:
        e.i("v_lshlrev_b32 v%d, 4, v%d" % (vLoff, vLane))
    e.i("v_lshrrev_b32 v%d, 2, v%d" % (vT2, vT1))
    e.i("v_and_b32 v%d, 2, v%d" % (vT3, vT1))
    e.i("v_add_u32 v%d, v%d, v%d" % (vT2, vT2, vT3))
    e.i("v_and_b32 v%d, 1, v%d" % (vT3, vT1))
    e.i("v_lshl_add_u32 v%d, v%d, 2, v%d" % (vT2, vT3, vT2))
    GSTR = 8
    if PAT:
        P_W, P_WG, P_NWG, GSTR, P_T = PAT
        cover = sorted(w * P_W + g2 * P_WG + g * GSTR + t * P_T + k for w in range(WPW) for g2 in range(P_NWG) for g in range(8) for t in range(TPW // 64) for k in range(8))
        assert cover == list(range(P_NWG * WPW * TPW)), "pattern does not tile"
        assert (P_NWG * WPW * TPW) <= 32768
    e.i("v_lshl_add_u32 v%d, v%d, %d, v%d" % (vSoff, vT2, GSTR.bit_length() - 1, vT0))
    e.i("v_lshlrev_b32 v%d, 1, v%d" % (vSoff, vSoff))
    e.i("s_lshl_b32 s%d, s%d, 9" % (sT0, sWave))
    e.i("v_lshlrev_b32 v%d, 6, v%d" % (vLdsR, vT0))
    e.i("v_add_u32 v%d, s%d, v%d" % (vLdsR, sT0, vLdsR))
    e.i("v_lshl_add_u32 v%d, v%d, 3, v%d" % (vLdsW, vT2, vLdsR))
    e.i("s_mov_b32 s%d, 0xcccccccc" % sMask1)
    e.i("s_mov_b32 s%d, 0xcccccccc" % (sMask1 + 1))
    e.i("s_mov_b32 s%d, 0xaaaaaaaa" % sMask0)
    e.i("s_mov_b32 s%d, 0xaaaaaaaa" % (sMask0 + 1))
    e.i("s_lshl_b32 s%d, s2, %d" % (sGW, LOG_WPW))
    e.i("s_add_u32 s%d, s%d, s%d" % (sGW, sGW, sWave))
    e.i("s_lshr_b32 s%d, s%d, %d" % (sKVH, sGW, LOG_WPH))
    e.i("s_and_b32 s%d, s%d, %d" % (sChunk, sGW, WAVES_PER_HEAD - 1))
    e.i("s_and_b32 s%d, s2, %d" % (sSplit, NSPLIT - 1))
    e.i("s_waitcnt lgkmcnt(0)")
    if DYN:
        TSTRIDE = 64
        WPG = WAVES_PER_HEAD // 2
        e.i("s_lshr_b32 s%d, s%d, %d" % (sQi, sGW, LOG_WPH - 1))
        e.i("s_lshl_b32 s%d, s%d, 15" % (sT1, sQi))
        e.i("s_and_b32 s%d, s%d, %d" % (sNext, sGW, WPG - 1))
        e.i("s_lshl_b32 s%d, s%d, %d" % (sQi, sQi, (2 if DYN == 1 else 3) if not DYNWS else 12))
        if DYNWS:
            e.i("s_add_u32 s%d, s%d, %d" % (sQi, sQi, 12 << 20))
    elif FC is not None:
        TSTRIDE = 512
        e.i("s_lshr_b32 s%d, s2, 3" % sQi)
        e.i("s_lshl_b32 s%d, s%d, 15" % (sT1, sQi))
        e.i("s_lshl_b32 s%d, s%d, 3" % (sQi, sQi))
        e.i("s_and_b32 s%d, s2, 7" % sT0)
        e.i("s_lshl_b32 s%d, s%d, 12" % (sT0, sT0))
        e.i("s_lshl_b32 s%d, s%d, 3" % (sCur, sWave))
        e.i("s_add_u32 s%d, s%d, s%d" % (sCur, sCur, sT0))
        e.i("s_mov_b32 s%d, 100" % sNT)
        e.i("s_cmp_eq_u32 s%d, 0" % sWave)
        e.i("s_cselect_b32 s%d, %d, 1000" % (sTkt, TK if FCV < 2 else 1000))
    elif PAT:
        TSTRIDE = P_T
        e.i("s_and_b32 s%d, s2, %d" % (sT0, P_NWG - 1))
        e.i("s_andn2_b32 s%d, s2, %d" % (sT1, P_NWG - 1))
        e.i("s_mul_i32 s%d, s%d, %d" % (sT1, sT1, TPW * WPW))
        e.i("s_mul_i32 s%d, s%d, %d" % (sT0, sT0, P_WG))
        e.i("s_add_u32 s%d, s%d, s%d" % (sT1, sT1, sT0))
        e.i("s_mul_i32 s%d, s%d, %d" % (sT0, sWave, P_W))
        e.i("s_add_u32 s%d, s%d, s%d" % (sT1, sT1, sT0))
    elif MAP == 0:
        TSTRIDE = 64
        e.i("s_mul_i32 s%d, s%d, %d" % (sT1, sGW, TPW))
    else:
        IW = MAP
        TSTRIDE = 64 * IW
        e.i("s_and_b32 s%d, s%d, %d" % (sT0, sGW, IW - 1))
        e.i("s_andn2_b32 s%d, s%d, %d" % (sT1, sGW, IW - 1))
        e.i("s_mul_i32 s%d, s%d, %d" % (sT1, sT1, TPW))
        e.i("s_lshl_b32 s%d, s%d, 6" % (sT0, sT0))
        e.i("s_add_u32 s%d, s%d, s%d" % (sT1, sT1, sT0))
    SPAN = (TPW // 64 - 1) * TSTRIDE + 7 * GSTR + 8
    if DYN or FC is not None:
        SPAN = 32768
    e.i("s_lshl_b32 s%d, s%d, 9" % (sT0, sT1))
    for srd, p in ((sK, pqk), (sV, pqv)):
        e.i("s_add_u32 s%d, s%d, s%d" % (srd, p, sT0))
        e.i("s_addc_u32 s%d, s%d, 0" % (srd + 1, p + 1))
        e.i("s_mov_b32 s%d, %d" % (srd + 2, SPAN * 512))
        e.i("s_mov_b32 s%d, 0x00020000" % (srd + 3))
    e.i("s_lshl_b32 s%d, s%d, 1" % (sT0, sT1))
    for srd, p in ((sVS, pvs), (sVZ, pvz)):
        e.i("s_add_u32 s%d, s%d, s%d" % (srd, p, sT0))
        e.i("s_addc_u32 s%d, s%d, 0" % (srd + 1, p + 1))
        e.i("s_mov_b32 s%d, %d" % (srd + 2, SPAN * 2))
        e.i("s_mov_b32 s%d, 0x00020000" % (srd + 3))
    for srd, p, n in ((sQ, pq, 8192), (sKS, pks, 8192), (sKZ, pkz, 8192), (sWS, pws, 1 << 24)):
        e.i("s_mov_b32 s%d, s%d" % (srd, p))
        e.i("s_mov_b32 s%d, s%d" % (srd + 1, p + 1))
        e.i("s_mov_b32 s%d, %d" % (srd + 2, n))
        e.i("s_mov_b32 s%d, 0x00020000" % (srd + 3))
    if DYN:
        e.i("s_mov_b32 s%d, s%d" % (sDBG, pdbg if not DYNWS else pws))
        e.i("s_mov_b32 s%d, s%d" % (sDBG + 1, (pdbg if not DYNWS else pws) + 1))
        e.i("s_mov_b32 s%d, %d" % (sDBG + 2, 256 if not DYNWS else (1 << 24)))
        e.i("s_mov_b32 s%d, 0x00020000" % (sDBG + 3))
        e.i("s_lshl_b32 s%d, s%d, 15" % (sKoff, sNext))
        e.i("s_lshl_b32 s%d, s%d, 15" % (sVoff, sNext))
        e.i("s_lshl_b32 s%d, s%d, 7" % (sSoff, sNext))
    elif FC is not None:
        e.i("s_mov_b32 s%d, s%d" % (sDBG, pdbg))
        e.i("s_mov_b32 s%d, s%d" % (sDBG + 1, pdbg + 1))
        e.i("s_mov_b32 s%d, 256" % (sDBG + 2))
        e.i("s_mov_b32 s%d, 0x00020000" % (sDBG + 3))
        e.i("s_lshl_b32 s%d, s%d, 9" % (sKoff, sCur))
        e.i("s_lshl_b32 s%d, s%d, 9" % (sVoff, sCur))
        e.i("s_lshl_b32 s%d, s%d, 1" % (sSoff, sCur))
    else:
        e.i("s_mov_b32 s%d, 0" % sKoff)
        e.i("s_mov_b32 s%d, 0" % sVoff)
        e.i("s_mov_b32 s%d, 0" % sSoff)

    e.i("v_lshlrev_b32 v%d, 3, v%d" % (vT3, vT1))
    e.i("s_lshl_b32 s%d, s%d, 9" % (sT0, sKVH))
    for h in range(2):
        for seg in range(4):
            r = O + (h * 4 + seg) * 2
            e.i("buffer_load_dwordx2 v[%d:%d], v%d, s[%d:%d], s%d offen offset:%d" % (r, r + 1, vT3, sQ, sQ + 3, sT0, h * 256 + seg * 64))
    e.i("s_mul_i32 s%d, s%d, %d" % (sT1, sChunk, TPW))
    e.i("s_lshr_b32 s%d, s%d, 15" % (sT1, sT1))
    e.i("s_lshl_b32 s%d, s%d, 8" % (sT1, sT1))
    e.i("s_add_u32 s%d, s%d, s%d" % (sT1, sT1, sT0))
    for seg in range(4):
        r = O + 16 + seg * 2
        e.i("buffer_load_dwordx2 v[%d:%d], v%d, s[%d:%d], s%d offen offset:%d" % (r, r + 1, vT3, sKS, sKS + 3, sT1, seg * 64))
    for seg in range(4):
        r = O + 24 + seg * 2
        e.i("buffer_load_dwordx2 v[%d:%d], v%d, s[%d:%d], s%d offen offset:%d" % (r, r + 1, vT3, sKZ, sKZ + 3, sT1, seg * 64))

    def issue_load(j):
        slot = j % R
        r = ring(slot)
        jj = j % 32
        seg = jj % 4
        if j < 32:
            e.i("buffer_load_dwordx4 v[%d:%d], v%d, s[%d:%d], s%d offen offset:%d%s" % (r, r + 3, vLoff, sK, sK + 3, sKoff, seg * (1024 if LAY == 1 else 128), ntf))
            if seg == 3:
                e.i("s_add_u32 s%d, s%d, %d" % (sKoff, sKoff, (GSTR * 512 if jj != 31 else (TSTRIDE - 7 * GSTR) * 512) & 0xffffffff))
        else:
            e.i("buffer_load_dwordx4 v[%d:%d], v%d, s[%d:%d], s%d offen offset:%d%s" % (r, r + 3, vLoff, sV, sV + 3, sVoff, seg * (1024 if LAY == 1 else 128), ntf))
            if seg == 3:
                e.i("s_add_u32 s%d, s%d, %d" % (sVoff, sVoff, (GSTR * 512 if jj != 31 else (TSTRIDE - 7 * GSTR) * 512) & 0xffffffff))

    def issue_scales():
        e.i("buffer_load_ushort v%d, v%d, s[%d:%d], s%d offen" % (vVS, vSoff, sVS, sVS + 3, sSoff))
        e.i("buffer_load_ushort v%d, v%d, s[%d:%d], s%d offen" % (vVS + 1, vSoff, sVZ, sVZ + 3, sSoff))
        e.i("s_add_u32 s%d, s%d, %d" % (sSoff, sSoff, TSTRIDE * 2))

    issue_scales()
    for j in range(R):
        issue_load(j)

    e.i("s_waitcnt vmcnt(%d)" % (R + 2))
    e.i("s_mov_b32 s%d, 0x%08x" % (sT0, f2u(CSCALE)))
    for seg in range(4):
        for half in range(2):
            src = O + 16 + seg * 2 + half
            d0 = A + seg * 4 + half * 2
            e.i("v_lshlrev_b32 v%d, 16, v%d" % (d0, src))
            e.i("v_and_b32 v%d, 0xffff0000, v%d" % (d0 + 1, src))
    for k in range(16):
        e.i("v_mul_f32 v%d, s%d, v%d" % (A + k, sT0, A + k))
    for h in range(2):
        for seg in range(4):
            for half in range(2):
                src = O + (h * 4 + seg) * 2 + half
                sc0 = seg * 4 + half * 2
                e.i("v_lshlrev_b32 v%d, 16, v%d" % (QS + 2 * sc0 + h, src))
                e.i("v_and_b32 v%d, 0xffff0000, v%d" % (QS + 2 * (sc0 + 1) + h, src))
    for sc in range(16):
        for h in range(2):
            e.i("v_mul_f32 v%d, v%d, v%d" % (QS + 2 * sc + h, QS + 2 * sc + h, A + sc))
    for seg in range(4):
        for half in range(2):
            src = O + 24 + seg * 2 + half
            d0 = A + seg * 4 + half * 2
            e.i("v_lshlrev_b32 v%d, 16, v%d" % (d0, src))
            e.i("v_and_b32 v%d, 0xffff0000, v%d" % (d0 + 1, src))
    for h in range(2):
        t = vT0 + h
        e.i("v_mul_f32 v%d, v%d, v%d" % (t, QS + h, A))
        for sc in range(1, 16):
            e.i("v_fmac_f32 v%d, v%d, v%d" % (t, QS + 2 * sc + h, A + sc))
    for mod in ("quad_perm:[1,0,3,2]", "quad_perm:[2,3,0,1]", "row_half_mirror"):
        for h in range(2):
            t = vT0 + h
            e.i("v_add_f32_dpp v%d, v%d, v%d %s row_mask:0xf bank_mask:0xf" % (t, t, t, mod))
    e.i("v_readfirstlane_b32 s%d, v%d" % (sC0, vT0))
    e.i("v_readfirstlane_b32 s%d, v%d" % (sC1, vT1))
    for k in range(32):
        e.i("v_mov_b32 v%d, 0" % (O + k))
    for r in (vL, vL + 1, vZ, vZ + 1):
        e.i("v_mov_b32 v%d, 0" % r)
    e.i("v_mov_b32 v%d, 0x%08x" % (vM, f2u(-3.0e38)))
    e.i("s_mov_b32 s%d, %d" % (sCnt, NTILES - 1))
    if STAMP == 2:
        e.i("s_mov_b32 s98, 0")
        e.i("v_mov_b32 v%d, 0" % vStamp)

    def stepA(x, y):
        for k in range(2):
            e.i("v_add_f32_dpp v%d, v%d, v%d row_half_mirror row_mask:0xf bank_mask:0x5" % (A + 2 * x + k, A + 2 * x + k, A + 2 * x + k))
        for k in range(2):
            e.i("v_add_f32_dpp v%d, v%d, v%d row_half_mirror row_mask:0xf bank_mask:0xa" % (A + 2 * x + k, A + 2 * y + k, A + 2 * y + k))

    def stepQ(x, y, mask, perm, out):
        for k in range(2):
            X, Y = A + 2 * x + k, A + 2 * y + k
            t = vT0 + k
            e.i("v_cndmask_b32 v%d, v%d, v%d, s[%d:%d]" % (t, Y, X, mask, mask + 1))
            e.i("v_cndmask_b32 v%d, v%d, v%d, s[%d:%d]" % (Y, X, Y, mask, mask + 1))
        for k in range(2):
            Y = A + 2 * y + k
            t = vT0 + k
            e.i("v_add_f32_dpp v%d, v%d, v%d %s row_mask:0xf bank_mask:0xf" % (out + k, t, Y, perm))

    def softmax():
        S0, S1 = A, A + 1
        e.i("v_mov_b32 v%d, v%d" % (vT0, S0))
        e.i("v_mov_b32 v%d, v%d" % (vT1, S1))
        e.i("v_lshlrev_b32 v%d, 16, v%d" % (vVS, vVS))
        e.i("v_lshlrev_b32 v%d, 16, v%d" % (vVS + 1, vVS + 1))
        e.i("v_permlane32_swap_b32 v%d, v%d" % (vT0, vT1))
        e.i("v_max_f32 v%d, v%d, v%d" % (vT0, vT0, vT1))
        e.i("v_mov_b32 v%d, v%d" % (vT1, vT0))
        e.i("v_permlane16_swap_b32 v%d, v%d" % (vT0, vT1))
        e.i("v_max_f32 v%d, v%d, v%d" % (vT0, vT0, vT1))
        for rr in (8, 4, 2, 1):
            e.i("v_max_f32_dpp v%d, v%d, v%d row_ror:%d row_mask:0xf bank_mask:0xf" % (vT0, vT0, vT0, rr))
        e.i("v_max_f32 v%d, v%d, v%d" % (vT0, vT0, vM))
        e.i("v_sub_f32 v%d, v%d, v%d" % (vT1, vM, vT0))
        e.i("v_exp_f32 v%d, v%d" % (vT1, vT1))
        e.i("v_mov_b32 v%d, v%d" % (vM, vT0))
        e.i("v_readlane_b32 s%d, v%d, 0" % (sM0, vT0))
        e.i("v_readlane_b32 s%d, v%d, 32" % (sM1, vT0))
        e.i("v_readlane_b32 s%d, v%d, 0" % (sF, vT1))
        e.i("v_readlane_b32 s%d, v%d, 32" % (sF + 1, vT1))
        e.i("v_subrev_f32 v%d, s%d, v%d" % (vP, sM0, S0))
        e.i("v_subrev_f32 v%d, s%d, v%d" % (vP + 1, sM1, S1))
        e.i("v_exp_f32 v%d, v%d" % (vP, vP))
        e.i("v_exp_f32 v%d, v%d" % (vP + 1, vP + 1))
        P = "v[%d:%d]" % (vP, vP + 1)
        PP = "v[%d:%d]" % (vPP, vPP + 1)
        L = "v[%d:%d]" % (vL, vL + 1)
        Z = "v[%d:%d]" % (vZ, vZ + 1)
        VS = "v[%d:%d]" % (vVS, vVS + 1)
        F = "s[%d:%d]" % (sF, sF + 1)
        e.i("v_pk_mul_f32 %s, %s, %s" % (Z, Z, F))
        e.i("v_pk_mul_f32 %s, %s, %s op_sel:[0,0] op_sel_hi:[1,0]" % (PP, P, VS))
        e.i("v_pk_fma_f32 %s, %s, %s, %s" % (L, L, F, P))
        e.i("ds_write_b64 v%d, %s" % (vLdsW, PP))
        e.i("v_pk_fma_f32 %s, %s, %s, %s op_sel:[0,1,0] op_sel_hi:[1,1,1]" % (Z, PP, VS, Z))
        for k in range(4):
            e.i("ds_read_b128 v[%d:%d], v%d offset:%d" % (A + 4 * k, A + 4 * k + 3, vLdsR, 16 * k))
        for sc in range(16):
            e.i("v_pk_mul_f32 %s, %s, %s" % (o(sc), o(sc), F))

    def steps(q, j0, j1, last, dyn_at=None):
        for j in range(j0, j1):
            if FC is not None:
                uid = "%d_%d" % (j, 1 if last else 0)
                if j == 0:
                    e.i("s_cmp_lt_u32 s%d, %d" % (sCnt, NS))
                    e.i("s_cselect_b32 s%d, 1, 0" % sBar)
                if j % BAR == 0:
                    e.i("s_cmp_eq_u32 s%d, 0" % sBar)
                    e.i("s_cbranch_scc1 L_nb%s" % uid)
                    e.i("s_barrier")
                    e.label("L_nb%s" % uid)
                if j == 0:
                    e.i("s_cmp_lg_u32 s%d, s%d" % (sCnt, sTkt))
                    e.i("s_cbranch_scc1 L_nt0")
                    e.i("v_mov_b32 v%d, 1" % vT3)
                    e.i("s_mov_b64 exec, 1")
                    e.i("buffer_atomic_add v%d, v%d, s[%d:%d], s%d offen sc0" % (vT3, vT2, sDBG, sDBG + 3, sQi))
                    e.i("s_mov_b64 exec, -1")
                    e.label("L_nt0")
                if j == (33 if TK < NS - 1 else 26):
                    e.i("s_cmp_lg_u32 s%d, s%d" % (sCnt, sTkt))
                    e.i("s_cbranch_scc1 L_nt1")
                    e.i("s_mov_b64 exec, 1")
                    e.i("ds_write_b32 v%d, v%d offset:%d" % (vT2, vT3, TICKOFF))
                    e.i("s_mov_b64 exec, -1")
                    e.i("s_waitcnt lgkmcnt(0)")
                    e.label("L_nt1")
                if j == 32:
                    e.i("ds_read_b32 v%d, v%d offset:%d" % (vTk, vT2, TICKOFF))
            elif BAR and j % BAR == 0:
                e.i("s_barrier")
            if dyn_at is not None and j == dyn_at:
                e.i("v_mov_b32 v%d, 1" % vAtD)
                e.i("s_mov_b64 exec, 1")
                e.i("buffer_atomic_add v%d, v%d, s[%d:%d], s%d offen sc0" % (vAtD, vZero, sDBG, sDBG + 3, sQi))
                e.i("s_mov_b64 exec, -1")
                q.append(("A", 0))
            if j == 32:
                if STAMP == 2:
                    e.i("s_memrealtime s[96:97]")
                softmax()
                if not last and not DYN and FC is None:
                    issue_scales()
                    q.append(("S", 0))
                    q.append(("S", 1))
                e.i("s_waitcnt lgkmcnt(0)")
                if STAMP == 2:
                    e.i("s_mov_b32 m0, s98")
                    e.i("s_add_u32 s98, s98, 1")
                    e.i("s_and_b32 s98, s98, 63")
                    e.i("v_writelane_b32 v%d, s96, m0" % vStamp)
            idx = q.index(("L", j))
            n_after = len(q) - idx - 1
            assert n_after <= 63
            e.i("s_waitcnt vmcnt(%d)" % n_after)
            del q[:idx + 1]
            r = ring(j % R)
            for c in range(4 if not BW else 0):
                e.i("v_cvt_f32_i32 v%d, v%d" % (r + c, r + c))
            jj = j % 32
            g, seg = jj // 4, jj % 4
            for c in range(4 if not BW else 0):
                pr = "v[%d:%d]" % (r + (c & 2), r + (c & 2) + 1)
                b = c & 1
                sc = seg * 4 + c
                if j < 32:
                    if seg == 0 and c == 0:
                        e.i("v_pk_mul_f32 %s, %s, %s op_sel:[%d,0] op_sel_hi:[%d,1]" % (a(g), pr, qs(sc), b, b))
                    else:
                        e.i("v_pk_fma_f32 %s, %s, %s, %s op_sel:[%d,0,0] op_sel_hi:[%d,1,1]" % (a(g), pr, qs(sc), a(g), b, b))
                else:
                    e.i("v_pk_fma_f32 %s, %s, %s, %s op_sel:[%d,0,0] op_sel_hi:[%d,1,1]" % (o(sc), pr, a(g), o(sc), b, b))
            nj = j + R
            if nj < 64:
                issue_load(nj)
                q.append(("L", nj))
            elif not last:
                issue_load(nj - 64)
                q.append(("N", nj - 64))
            if j < 32 and seg == 3:
                if g % 2 == 1:
                    stepA(g - 1, g)
                if g % 4 == 3:
                    stepQ(g - 3, g - 1, sMask1, "quad_perm:[2,3,0,1]", A + 2 * (g - 3))
                if g == 7:
                    stepQ(0, 4, sMask0, "quad_perm:[1,0,3,2]", A)

    def body(last):
        q = [("L", j) for j in range(R)]
        steps(q, 0, 64, last)

    TICKOFF = WPW * 512 + WPW * 1024 + WPW * 16
    if FC is not None:
        X = FC
        DB = 8 * NS * 512
        e.i("v_mov_b32 v%d, 0" % vT2)
        e.i("s_mov_b32 s%d, 0" % sCnt)
        e.label("L_loop")
        q = [("L", j) for j in range(R)]
        steps(q, 0, 64 - R, False)
        e.i("s_cmp_lg_u32 s%d, %d" % (sCnt, NS - 1))
        e.i("s_cbranch_scc1 L_noc")
        e.i("v_readfirstlane_b32 s%d, v%d" % (sT0, vTk))
        e.i("s_and_b32 s%d, s%d, 7" % (sT0, sT0))
        if FCV:
            e.i("s_and_b32 s%d, s2, 7" % sT0)
        if FCT is None:
            e.i("s_and_b32 s%d, s%d, 3" % (sT1, sT0))
            e.i("s_lshl_b32 s%d, s%d, 12" % (sT1, sT1))
            e.i("s_lshl_b32 s%d, s%d, 3" % (sD0, sWave))
            e.i("s_add_u32 s%d, s%d, s%d" % (sD0, sD0, sT1))
            e.i("s_add_u32 s%d, s%d, %d" % (sD0, sD0, NS * 512))
            e.i("s_add_u32 s%d, s%d, %d" % (sD1, sD0, 4 * 4096))
            e.i("s_cmp_lt_u32 s%d, %d" % (sWave, X))
            e.i("s_cselect_b32 s%d, %d, %d" % (sNT, NS + 2, NS + 1))
            e.i("s_cmp_lt_u32 s%d, %d" % (sWave, 8 - X))
            e.i("s_cselect_b32 s%d, %d, %d" % (sT1, NS + 1, NS))
            e.i("s_cmp_lt_u32 s%d, 4" % sT0)
            e.i("s_cselect_b32 s%d, s%d, s%d" % (sNT, sNT, sT1))
            e.i("s_add_u32 s%d, s%d, %d" % (sT1, sD1, 8 * X))
            e.i("s_cmp_lt_u32 s%d, 4" % sT0)
            e.i("s_cselect_b32 s%d, s%d, s%d" % (sD0, sD0, sT1))
        else:
            assert len(FCT) == 8 and sum(FCT) == 0 and all(-8 <= d <= 8 for d in FCT)
            ns = [8 + d for d in FCT]
            ps = [sum(ns[:k]) for k in range(8)]
            tn = sum(n << (8 * k) for k, n in enumerate(ns))
            tp = sum(p << (8 * k) for k, p in enumerate(ps))
            e.i("s_lshl_b32 s%d, s%d, 3" % (sT0, sT0))
            e.i("s_mov_b32 s%d, 0x%08x" % (sEx, tn & 0xffffffff))
            e.i("s_mov_b32 s%d, 0x%08x" % (sEx + 1, tn >> 32))
            e.i("s_lshr_b64 s[%d:%d], s[%d:%d], s%d" % (sEx, sEx + 1, sEx, sEx + 1, sT0))
            e.i("s_and_b32 s%d, s%d, 0xff" % (sT1, sEx))
            e.i("s_mov_b32 s%d, 0x%08x" % (sEx, tp & 0xffffffff))
            e.i("s_mov_b32 s%d, 0x%08x" % (sEx + 1, tp >> 32))
            e.i("s_lshr_b64 s[%d:%d], s[%d:%d], s%d" % (sEx, sEx + 1, sEx, sEx + 1, sT0))
            e.i("s_and_b32 s%d, s%d, 0xff" % (sT0, sEx))
            e.i("s_add_u32 s%d, s%d, s%d" % (sT0, sT0, sWave))
            e.i("s_lshr_b32 s%d, s%d, 3" % (sEx, sT0))
            e.i("s_lshl_b32 s%d, s%d, 12" % (sEx, sEx))
            e.i("s_and_b32 s%d, s%d, 7" % (sT0, sT0))
            e.i("s_lshl_b32 s%d, s%d, 3" % (sT0, sT0))
            e.i("s_add_u32 s%d, s%d, s%d" % (sD0, sEx, sT0))
            e.i("s_add_u32 s%d, s%d, %d" % (sD0, sD0, NS * 512))
            e.i("s_add_u32 s%d, s%d, 4096" % (sD1, sD0))
            e.i("s_mov_b32 s%d, %d" % (sNT, NS))
            e.i("s_cmp_lt_u32 s%d, s%d" % (sWave, sT1))
            e.i("s_addc_u32 s%d, s%d, 0" % (sNT, sNT))
            e.i("s_add_u32 s%d, s%d, 8" % (sT0, sWave))
            e.i("s_cmp_lt_u32 s%d, s%d" % (sT0, sT1))
            e.i("s_addc_u32 s%d, s%d, 0" % (sNT, sNT))
        e.label("L_noc")
        e.i("s_add_u32 s%d, s%d, 1" % (sCnt, sCnt))
        e.i("s_cmp_ge_u32 s%d, s%d" % (sCnt, sNT))
        e.i("s_cbranch_scc1 L_last")
        e.i("s_add_u32 s%d, s%d, 512" % (sCur, sCur))
        e.i("s_cmp_eq_u32 s%d, %d" % (sCnt, NS))
        e.i("s_cselect_b32 s%d, s%d, s%d" % (sCur, sD0, sCur))
        e.i("s_cmp_eq_u32 s%d, %d" % (sCnt, NS + 1))
        e.i("s_cselect_b32 s%d, s%d, s%d" % (sCur, sD1, sCur))
        e.i("s_lshl_b32 s%d, s%d, 9" % (sKoff, sCur))
        e.i("s_lshl_b32 s%d, s%d, 9" % (sVoff, sCur))
        e.i("s_lshl_b32 s%d, s%d, 1" % (sSoff, sCur))
        q2 = list(q)
        issue_scales()
        q2.append(("S", 0))
        q2.append(("S", 1))
        steps(q2, 64 - R, 64, False)
        e.i("s_branch L_loop")
        e.label("L_last")
        steps(q, 64 - R, 64, True)
    elif not DYN:
        e.label("L_loop")
        body(False)
        e.i("s_sub_u32 s%d, s%d, 1" % (sCnt, sCnt))
        e.i("s_cmp_lg_u32 s%d, 0" % sCnt)
        e.i("s_cbranch_scc1 L_loop")
        e.i("s_nop 4")
        body(True)
    else:
        vAtD, vZero = vT3, vLane
        vZero = vT2
        at = AT if AT is not None else max(64 - 2 * R, 0)
        e.i("v_mov_b32 v%d, 0" % vZero)
        e.label("L_loop")
        q = [("L", j) for j in range(R)]
        steps(q, 0, 64 - R, False, dyn_at=at)
        if ("A", 0) in q:
            idx = q.index(("A", 0))
            e.i("s_waitcnt vmcnt(%d)" % (len(q) - idx - 1))
            del q[:idx + 1]
        e.i("v_readfirstlane_b32 s%d, v%d" % (sNext, vAtD))
        e.i("s_add_u32 s%d, s%d, %d" % (sNext, sNext, WPG))
        e.i("s_cmp_ge_u32 s%d, 512" % sNext)
        e.i("s_cbranch_scc1 L_last")
        e.i("s_lshl_b32 s%d, s%d, 15" % (sKoff, sNext))
        e.i("s_lshl_b32 s%d, s%d, 15" % (sVoff, sNext))
        e.i("s_lshl_b32 s%d, s%d, 7" % (sSoff, sNext))
        q2 = list(q)
        issue_scales()
        q2.append(("S", 0))
        q2.append(("S", 1))
        steps(q2, 64 - R, 64, False)
        e.i("s_branch L_loop")
        e.label("L_last")
        steps(q, 64 - R, 64, True)

    if STAMP:
        e.i("s_memrealtime s[90:91]")
        e.i("s_getreg_b32 s92, hwreg(HW_REG_XCC_ID)")
        e.i("s_getreg_b32 s93, hwreg(HW_REG_HW_ID)")
        e.i("s_waitcnt lgkmcnt(0)")
        e.i("v_mov_b32 v%d, s88" % (A + 8))
        e.i("v_mov_b32 v%d, s90" % (A + 9))
        e.i("v_mov_b32 v%d, s92" % (A + 10))
        e.i("v_mov_b32 v%d, s93" % (A + 11))
        e.i("s_lshl_b32 s%d, s%d, 4" % (sT0, sGW))
        e.i("s_add_u32 s%d, s%d, %d" % (sT0, sT0, 8 << 20))
        e.i("v_mov_b32 v%d, 0" % (A + 12))
        e.i("buffer_store_dwordx4 v[%d:%d], v%d, s[%d:%d], s%d offen" % (A + 8, A + 11, A + 12, sWS, sWS + 3, sT0))
        if STAMP == 2:
            e.i("s_lshl_b32 s%d, s%d, 8" % (sT0, sGW))
            e.i("s_add_u32 s%d, s%d, %d" % (sT0, sT0, 9 << 20))
            e.i("v_lshlrev_b32 v%d, 2, v%d" % (A + 13, vLane))
            e.i("buffer_store_dword v%d, v%d, s[%d:%d], s%d offen" % (vStamp, A + 13, sWS, sWS + 3, sT0))
    e.i("v_permlane32_swap_b32 v%d, v%d" % (vL, vL + 1))
    e.i("v_permlane32_swap_b32 v%d, v%d" % (vZ, vZ + 1))
    e.i("v_add_f32 v%d, v%d, v%d" % (vL, vL, vL + 1))
    e.i("v_add_f32 v%d, v%d, v%d" % (vZ, vZ, vZ + 1))
    e.i("v_permlane16_swap_b32 v%d, v%d" % (vL, vZ))
    e.i("v_add_f32 v%d, v%d, v%d" % (vL, vL, vZ))
    for rr in (8, 4, 2, 1):
        e.i("v_add_f32_dpp v%d, v%d, v%d row_ror:%d row_mask:0xf bank_mask:0xf" % (vL, vL, vL, rr))
    e.i("v_readlane_b32 s%d, v%d, 0" % (sL0, vL))
    e.i("v_readlane_b32 s%d, v%d, 16" % (sZ0, vL))
    e.i("v_readlane_b32 s%d, v%d, 32" % (sL1, vL))
    e.i("v_readlane_b32 s%d, v%d, 48" % (sZ1, vL))
    for sc in range(16):
        e.i("v_permlane32_swap_b32 v%d, v%d" % (O + 2 * sc, O + 2 * sc + 1))
    for sc in range(16):
        e.i("v_add_f32 v%d, v%d, v%d" % (O + 2 * sc, O + 2 * sc, O + 2 * sc + 1))
    for sc in range(8):
        e.i("v_permlane16_swap_b32 v%d, v%d" % (O + 2 * sc, O + 2 * (sc + 8)))
    for sc in range(8):
        e.i("v_add_f32 v%d, v%d, v%d" % (O + 2 * sc, O + 2 * sc, O + 2 * (sc + 8)))
    for sc in range(4):
        e.i("v_add_f32_dpp v%d, v%d, v%d row_ror:8 row_mask:0xf bank_mask:0x3" % (A + sc, O + 2 * sc, O + 2 * sc))
    for sc in range(4):
        e.i("v_add_f32_dpp v%d, v%d, v%d row_ror:8 row_mask:0xf bank_mask:0xc" % (A + sc, O + 2 * (sc + 4), O + 2 * (sc + 4)))
    e.i("s_mov_b32 s%d, 0" % sEx)
    e.i("s_mov_b32 s%d, -1" % (sEx + 1))
    e.i("v_mov_b32 v%d, s%d" % (vT0, sZ0))
    e.i("v_mov_b32 v%d, s%d" % (vT1, sZ1))
    e.i("v_cndmask_b32 v%d, v%d, v%d, s[%d:%d]" % (vT0, vT0, vT1, sEx, sEx + 1))
    for sc in range(4):
        e.i("v_sub_f32 v%d, v%d, v%d" % (A + sc, A + sc, vT0))
    e.i("v_mov_b32 v%d, s%d" % (vT0, sC0))
    e.i("v_mov_b32 v%d, s%d" % (vT1, sC1))
    e.i("v_cndmask_b32 v%d, v%d, v%d, s[%d:%d]" % (vT0, vT0, vT1, sEx, sEx + 1))
    e.i("v_sub_f32 v%d, v%d, v%d" % (vP, vM, vT0))
    e.i("v_mov_b32 v%d, s%d" % (vT0, sL0))
    e.i("v_mov_b32 v%d, s%d" % (vT1, sL1))
    e.i("v_cndmask_b32 v%d, v%d, v%d, s[%d:%d]" % (vP + 1, vT0, vT1, sEx, sEx + 1))
    OB = WPW * 512
    MB = OB + WPW * 1024
    LDS = MB + WPW * 16 + (16 if FC is not None else 0)
    e.i("s_lshl_b32 s%d, s%d, 10" % (sT0, sWave))
    e.i("v_lshlrev_b32 v%d, 4, v%d" % (vT2, vLane))
    e.i("v_add_u32 v%d, s%d, v%d" % (vT0, sT0, vT2))
    e.i("ds_write_b128 v%d, v[%d:%d] offset:%d" % (vT0, A, A + 3, OB))
    e.i("s_lshl_b32 s%d, s%d, 4" % (sT0, sWave))
    e.i("v_lshrrev_b32 v%d, 5, v%d" % (vT3, vLane))
    e.i("v_lshlrev_b32 v%d, 3, v%d" % (vT3, vT3))
    e.i("v_add_u32 v%d, s%d, v%d" % (vT1, sT0, vT3))
    e.i("ds_write_b64 v%d, v[%d:%d] offset:%d" % (vT1, vP, vP + 1, MB))
    e.i("s_waitcnt lgkmcnt(0)")
    e.i("s_barrier")
    e.i("s_cmp_lg_u32 s%d, 0" % sWave)
    e.i("s_cbranch_scc1 L_done1")
    assert WPW <= 16
    for w in range(WPW):
        e.i("ds_read_b64 v[%d:%d], v%d offset:%d" % (QS + 2 * w, QS + 2 * w + 1, vT3, MB + 16 * w))
    OT = O
    assert O + 4 * WPW <= NV
    for w in range(WPW):
        e.i("ds_read_b128 v[%d:%d], v%d offset:%d" % (OT + 4 * w, OT + 4 * w + 3, vT2, OB + 1024 * w))
    e.i("s_waitcnt lgkmcnt(0)")
    e.i("v_mov_b32 v%d, v%d" % (vT0, QS))
    for w in range(1, WPW):
        e.i("v_max_f32 v%d, v%d, v%d" % (vT0, vT0, QS + 2 * w))
    for w in range(WPW):
        e.i("v_sub_f32 v%d, v%d, v%d" % (QS + 2 * w, QS + 2 * w, vT0))
    for w in range(WPW):
        e.i("v_exp_f32 v%d, v%d" % (QS + 2 * w, QS + 2 * w))
    e.i("v_mul_f32 v%d, v%d, v%d" % (vT1, QS, QS + 1))
    for w in range(1, WPW):
        e.i("v_fmac_f32 v%d, v%d, v%d" % (vT1, QS + 2 * w, QS + 2 * w + 1))
    for c in range(4):
        e.i("v_mul_f32 v%d, v%d, v%d" % (OT + c, OT + c, QS))
    for w in range(1, WPW):
        for c in range(4):
            e.i("v_fmac_f32 v%d, v%d, v%d" % (OT + c, OT + 4 * w + c, QS + 2 * w))
    MLB = 32 * NSPLIT * 512
    e.i("s_lshl_b32 s%d, s%d, %d" % (sT0, sKVH, LOG_NSPLIT + 1))
    e.i("s_add_u32 s%d, s%d, s%d" % (sT0, sT0, sSplit))
    e.i("v_lshrrev_b32 v%d, 5, v%d" % (vT3, vLane))
    e.i("v_lshlrev_b32 v%d, %d, v%d" % (vT3, LOG_NSPLIT, vT3))
    e.i("v_add_u32 v%d, s%d, v%d" % (vT3, sT0, vT3))
    e.i("v_and_b32 v%d, 31, v%d" % (vT2, vLane))
    e.i("v_lshlrev_b32 v%d, 4, v%d" % (vT2, vT2))
    e.i("v_lshl_add_u32 v%d, v%d, 9, v%d" % (vT2, vT3, vT2))
    e.i("buffer_store_dwordx4 v[%d:%d], v%d, s[%d:%d], 0 offen" % (OT, OT + 3, vT2, sWS, sWS + 3))
    e.i("v_lshlrev_b32 v%d, 3, v%d" % (vT3, vT3))
    e.i("s_mov_b32 s%d, %d" % (sT1, MLB))
    e.i("buffer_store_dwordx2 v[%d:%d], v%d, s[%d:%d], s%d offen" % (vT0, vT1, vT3, sWS, sWS + 3, sT1))
    e.raw("L_done1:")
    e.i("s_endpgm")
    k1 = e.text()

    e = Emit()
    e.raw(".p2align 8")
    e.raw(".globl combine_kernel")
    e.raw(".type combine_kernel,@function")
    e.raw("combine_kernel:")
    e.i("s_cmp_ge_u32 s2, 32")
    e.i("s_cbranch_scc1 L_done2")
    e.i("s_load_dwordx2 s[4:5], s[0:1], 56")
    e.i("s_load_dwordx2 s[6:7], s[0:1], 72")
    e.i("v_lshlrev_b32 v1, 3, v0")
    e.i("s_waitcnt lgkmcnt(0)")
    e.i("s_mov_b32 s8, s4")
    e.i("s_mov_b32 s9, s5")
    e.i("s_mov_b32 s10, 8192")
    e.i("s_mov_b32 s11, 0x00020000")
    e.i("s_mov_b32 s12, s6")
    e.i("s_mov_b32 s13, s7")
    e.i("s_mov_b32 s14, %d" % (1 << 24))
    e.i("s_mov_b32 s15, 0x00020000")
    e.i("s_mul_i32 s16, s2, %d" % (NSPLIT * 8))
    e.i("s_add_u32 s16, s16, %d" % MLB)
    e.i("v_and_b32 v2, %d, v0" % (NSPLIT - 1))
    e.i("v_lshlrev_b32 v2, 3, v2")
    e.i("buffer_load_dwordx2 v[4:5], v2, s[12:15], s16 offen")
    e.i("s_mul_i32 s17, s2, %d" % (NSPLIT * 512))
    for t in range(NSPLIT):
        if t and t % 8 == 0:
            e.i("s_add_u32 s17, s17, 4096")
        e.i("buffer_load_dwordx2 v[%d:%d], v1, s[12:15], s17 offen offset:%d" % (10 + 2 * t, 11 + 2 * t, (t % 8) * 512))
    e.i("s_waitcnt vmcnt(%d)" % min(NSPLIT, 63))
    if NSPLIT == 64:
        pass
    e.i("v_mov_b32 v6, v4")
    e.i("v_mov_b32 v7, v4")
    e.i("v_permlane32_swap_b32 v6, v7")
    e.i("v_max_f32 v6, v6, v7")
    e.i("v_mov_b32 v7, v6")
    e.i("v_permlane16_swap_b32 v6, v7")
    e.i("v_max_f32 v6, v6, v7")
    for rr in (8, 4, 2, 1):
        e.i("v_max_f32_dpp v6, v6, v6 row_ror:%d row_mask:0xf bank_mask:0xf" % rr)
    e.i("v_sub_f32 v4, v4, v6")
    e.i("v_exp_f32 v4, v4")
    e.i("v_mul_f32 v5, v4, v5")
    if NSPLIT < 64:
        e.i("v_cmp_gt_u32 vcc, %d, v0" % NSPLIT)
        e.i("v_cndmask_b32 v5, 0, v5, vcc")
    e.i("v_mov_b32 v6, v5")
    e.i("v_mov_b32 v7, v5")
    e.i("v_permlane32_swap_b32 v6, v7")
    e.i("v_add_f32 v6, v6, v7")
    e.i("v_mov_b32 v7, v6")
    e.i("v_permlane16_swap_b32 v6, v7")
    e.i("v_add_f32 v6, v6, v7")
    for rr in (8, 4, 2, 1):
        e.i("v_add_f32_dpp v6, v6, v6 row_ror:%d row_mask:0xf bank_mask:0xf" % rr)
    e.i("v_rcp_f32 v7, v6")
    e.i("v_mov_b32 v8, 0")
    e.i("v_mov_b32 v9, 0")
    e.i("s_waitcnt vmcnt(0)")
    for t in range(NSPLIT):
        e.i("v_readlane_b32 s%d, v4, %d" % (20 + (t % 8), t))
        if t >= 3:
            tt = t - 3
            e.i("v_pk_fma_f32 v[8:9], v[%d:%d], s[%d:%d], v[8:9] op_sel:[0,%d,0] op_sel_hi:[1,%d,1]" % (
                10 + 2 * tt, 11 + 2 * tt, 20 + ((tt % 8) & ~1), 21 + ((tt % 8) & ~1), tt & 1, tt & 1))
    for tt in range(max(NSPLIT - 3, 0), NSPLIT):
        e.i("v_pk_fma_f32 v[8:9], v[%d:%d], s[%d:%d], v[8:9] op_sel:[0,%d,0] op_sel_hi:[1,%d,1]" % (
            10 + 2 * tt, 11 + 2 * tt, 20 + ((tt % 8) & ~1), 21 + ((tt % 8) & ~1), tt & 1, tt & 1))
    e.i("v_mul_f32 v8, v8, v7")
    e.i("v_mul_f32 v9, v9, v7")
    e.i("v_cvt_pk_bf16_f32 v8, v8, v9")
    e.i("v_lshlrev_b32 v1, 2, v0")
    e.i("s_lshl_b32 s16, s2, 8")
    e.i("buffer_store_dword v8, v1, s[8:11], s16 offen")
    e.raw("L_done2:")
    e.i("s_endpgm")
    k2 = e.text()
    NV2 = 10 + 2 * NSPLIT

    hdr = open("cdna_kernels/%s.s.ref" % NAME).read().split("; Override launch geometry")[0]
    out = hdr
    out += "; @launch kernel=%s_kernel grid=(%d,1,1) block=(%d,1,1) lds=%d\n" % (NAME, NWG, WPW * 64, LDS)
    if not NOK2:
        out += "; @launch kernel=combine_kernel grid=(32,1,1) block=(64,1,1) lds=0\n"
    out += '.amdgcn_target "amdgcn-amd-amdhsa--gfx950"\n.text\n'
    out += ".globl %s_kernel\n.p2align 8\n.type %s_kernel,@function\n" % (NAME, NAME)
    out += k1 + k2
    out += '.section .rodata,"a"\n'

    def kd(name, nv, ns):
        return (".p2align 6\n.amdhsa_kernel %s\n  .amdhsa_next_free_vgpr %d\n  .amdhsa_next_free_sgpr %d\n"
                "  .amdhsa_accum_offset %d\n  .amdhsa_group_segment_fixed_size 0\n  .amdhsa_kernarg_size 80\n"
                "  .amdhsa_user_sgpr_count 2\n  .amdhsa_user_sgpr_kernarg_segment_ptr 1\n"
                "  .amdhsa_system_sgpr_workgroup_id_x 1\n.end_amdhsa_kernel\n") % (name, nv, ns, (nv + 3) // 4 * 4)

    out += kd(NAME + "_kernel", VG, 96 if STAMP != 2 else 100)
    out += kd("combine_kernel", NV2, 40)
    return out


if __name__ == "__main__":
    ap = argparse.ArgumentParser()
    ap.add_argument("-R", type=int, default=16)
    ap.add_argument("--wpw", type=int, default=4)
    ap.add_argument("--tpw", type=int, default=512)
    ap.add_argument("--nt", type=int, default=1)
    ap.add_argument("--vg", type=int, default=None)
    ap.add_argument("--bw", type=int, default=0)
    ap.add_argument("--pol", default=None)
    ap.add_argument("--lay", type=int, default=0)
    ap.add_argument("--tiles", type=int, default=None)
    ap.add_argument("--nok2", type=int, default=0)
    ap.add_argument("--map", type=int, default=0)
    ap.add_argument("--stamp", type=int, default=0)
    ap.add_argument("--wgx", type=int, default=0)
    ap.add_argument("--dyn", type=int, default=0)
    ap.add_argument("--at", type=int, default=None)
    ap.add_argument("--dynws", type=int, default=0)
    ap.add_argument("--pat", default=None)
    ap.add_argument("--bar", type=int, default=0)
    ap.add_argument("--fc", type=int, default=None)
    ap.add_argument("--tk", type=int, default=5)
    ap.add_argument("--fcv", type=int, default=0)
    ap.add_argument("--fct", default=None)
    ap.add_argument("-o", default="cdna_kernels/%s.s" % NAME)
    args = ap.parse_args()
    s = gen(R=args.R, WPW=args.wpw, TPW=args.tpw, NT=bool(args.nt), VG=args.vg, BW=args.bw, POL=args.pol, LAY=args.lay, TILES=args.tiles, NOK2=args.nok2, MAP=args.map, STAMP=args.stamp, WGX=args.wgx, DYN=args.dyn, AT=args.at, DYNWS=args.dynws, PAT=tuple(int(x) for x in args.pat.split(',')) if args.pat else None, BAR=args.bar, FC=args.fc, TK=args.tk, FCV=args.fcv, FCT=[int(x) for x in args.fct.split(',')] if args.fct else None)
    open(args.o, "w").write(s)
    print("wrote", args.o, len(s), "bytes")
```

```python
import re
import sys
import struct
import argparse

NAME = "standalone__kv_cache_quant_int4_int2_kv_with_per_channel_or_per_token_scales__decode"


def f2u(x):
    return struct.unpack("<I", struct.pack("<f", x))[0]


REG_RE = re.compile(r"\b([vs])(\d+)\b|\b([vs])\[(\d+):(\d+)\]|\b(vcc)\b")


def regs_of(op):
    out = set()
    for m in REG_RE.finditer(op):
        if m.group(1):
            out.add((m.group(1), int(m.group(2))))
        elif m.group(3):
            for r in range(int(m.group(4)), int(m.group(5)) + 1):
                out.add((m.group(3), r))
        else:
            out.add(("vcc", 0))
    return out


TRANS = ("v_exp_f32", "v_log_f32", "v_rcp_f32", "v_rsq_f32", "v_sqrt_f32")


class Emit:
    def __init__(self):
        self.lines = []
        self.hist = []

    def raw(self, s):
        self.lines.append(s)

    def label(self, s):
        self.i("s_nop 4")
        self.lines.append(s + ":")
        self.hist = []

    def comment(self, s):
        self.lines.append("    ; " + s)

    def i(self, text):
        text = text.strip()
        mn = text.split()[0]
        rest = text[len(mn):].strip()
        ops = [o.strip() for o in rest.split(",")] if rest else []
        clean = []
        for o in ops:
            clean.append(o.split()[0] if o.split() else o)
        ops = clean
        is_valu = mn.startswith("v_")
        is_vmem = mn.startswith("buffer_") or mn.startswith("global_")
        is_dpp = "_dpp" in mn
        is_perm = mn.startswith("v_permlane")
        is_rl = mn.startswith("v_readlane") or mn.startswith("v_readfirstlane")
        writes, reads = set(), set()
        if is_valu:
            if is_perm:
                writes = regs_of(ops[0]) | regs_of(ops[1])
                reads = set(writes)
            else:
                writes = regs_of(ops[0])
                for o in ops[1:]:
                    reads |= regs_of(o)
                if "fmac" in mn or is_dpp:
                    reads |= regs_of(ops[0])
                if mn.startswith("v_cndmask") and len(ops) == 3:
                    reads.add(("vcc", 0))
        elif is_vmem:
            for o in ops:
                reads |= regs_of(o)
        elif mn.startswith("ds_"):
            for o in ops:
                reads |= regs_of(o)
        else:
            for o in ops:
                reads |= regs_of(o)
        need = 0
        for dist, h in enumerate(reversed(self.hist)):
            req = 0
            if h["valu"]:
                vw = {r for r in h["writes"] if r[0] == "v"}
                sw = {r for r in h["writes"] if r[0] in ("s", "vcc")}
                if (is_dpp or is_perm) and (vw & reads):
                    req = max(req, 2)
                if is_rl and (vw & reads):
                    req = max(req, 1)
                if is_valu and (sw & reads):
                    req = max(req, 4 if is_rl else 2)
                if is_vmem and (sw & reads):
                    req = max(req, 5)
                if (not is_valu) and (not is_vmem) and (sw & reads):
                    req = max(req, 4)
                if h["trans"] and is_valu and (vw & reads):
                    req = max(req, 1)
            if h["wide_store"] and is_valu and (h["reads"] & writes):
                req = max(req, 2)
            need = max(need, req - h["after"])
        if need > 0:
            self._push("s_nop %d" % (need - 1), need, dict(valu=False, writes=set(), reads=set(), trans=False, wide_store=False))
        wide = is_vmem and "store" in mn and ("x4" in mn or "x3" in mn)
        self._push(text, 1, dict(valu=is_valu, writes=writes, reads=reads, trans=mn.startswith(TRANS), wide_store=wide))

    def _push(self, text, states, info):
        if text.startswith("s_nop"):
            states = int(text.split()[1]) + 1
        for h in self.hist:
            h["after"] += states
        info["after"] = 0
        self.hist.append(info)
        self.hist = [h for h in self.hist if h["after"] < 8]
        self.lines.append("    " + text)

    def text(self):
        return "\n".join(self.lines) + "\n"


def gen(R=16, WPW=4, TPW=512, NT=True, VG=None, BW=0, POL=None, LAY=0, TILES=None, NOK2=0, MAP=0, STAMP=0, WGX=0, DYN=0, AT=None, DYNWS=0, PAT=None, BAR=0, FC=None, TK=5, FCV=0, FCT=None, NOSC=0, SCL=0, GS=None, NSTAT=6, FUSE=0):
    SKV = 65536
    HKV = 16
    WAVES_PER_HEAD = SKV // TPW
    NWAVES = WAVES_PER_HEAD * HKV
    NWG = NWAVES // WPW
    NSPLIT = WAVES_PER_HEAD // WPW
    NTILES = TPW // 64
    if TILES:
        NTILES = TILES
    assert NSPLIT <= 64 and NTILES >= 2
    assert 64 % R == 0
    ntf = " nt" if NT else ""
    if POL is not None:
        ntf = (" " + POL) if POL else ""
    LOG_WPH = WAVES_PER_HEAD.bit_length() - 1
    LOG_WPW = WPW.bit_length() - 1
    LOG_NSPLIT = NSPLIT.bit_length() - 1
    CSCALE = (128.0 ** -0.5) * 1.4426950408889634

    e = Emit()
    vLoff, vSoff, vLdsW, vLdsR = 0, 1, 2, 3
    vM = 4
    vT0, vT1, vT2 = 6, 7, 5
    vL = 8
    vZ = 10
    vVS = 12
    vP = 14
    vPP = 16
    vLane = 18
    vT3 = 19
    QS = 20
    O = 52
    A = 84
    RING = 100
    NV = RING + 4 * R
    vStamp = NV
    if STAMP == 2:
        NV += 1
    if GS is not None:
        FC = 0
        SCL = 1
    vTk = NV
    if FC is not None:
        NV += 1
        assert WPW == 8 and TPW == 512 and not DYN and BAR in (2, 4, 8, 16) and R == 16
        PAT = (8, 0, 1, 64, 512)
    vSL = NV
    if SCL:
        assert FC is not None
        NV += 1
    NS = 7
    vTab, vSoffD = NV, NV + 1
    if GS is not None:
        NV += 2
        NS = NSTAT
        DT = (8 - NS) * 8
        assert DT & (DT - 1) == 0
        assert sum(GS) == 8 * DT and all(1 <= x <= 8 for x in GS) and all(GS[k] >= GS[k + 1] for k in range(len(GS) - 1)) and len(GS) <= 60
    TICKOFF = WPW * 512 + WPW * 1024 + WPW * 16
    SCB = TICKOFF + 16
    CNTOFF = TICKOFF + 4
    sGstr = 96
    if VG is None:
        VG = NV

    def qs(sc):
        return "v[%d:%d]" % (QS + 2 * sc, QS + 2 * sc + 1)

    def o(sc):
        return "v[%d:%d]" % (O + 2 * sc, O + 2 * sc + 1)

    def a(i):
        return "v[%d:%d]" % (A + 2 * i, A + 2 * i + 1)

    def ring(slot):
        return RING + 4 * slot

    sK, sV, sVS, sVZ = 8, 12, 16, 20
    sQ, sKS, sKZ, sWS = 24, 28, 32, 36
    sKoff, sVoff, sSoff, sCnt = 40, 41, 42, 43
    sMask1, sMask0 = 44, 46
    sM0, sM1 = 48, 49
    sF = 50
    sC0, sC1 = 52, 53
    sWave, sGW, sKVH, sChunk, sT0, sT1 = 54, 55, 56, 57, 58, 59
    sPtr = 60
    sL0, sZ0, sL1, sZ1 = 80, 81, 82, 83
    sSplit = 84
    sEx = 86
    sQi, sNext = 94, 95
    sDBG = 4
    sCur, sNT, sTkt, sD0, sD1, sBar = 95, 3, 85, 91, 92, 93
    assert not (STAMP and FC is not None) or True
    vAt = 1000

    e.raw("%s_kernel:" % NAME)
    e.i("s_cmp_ge_u32 s2, %d" % NWG)
    e.i("s_cbranch_scc1 L_done1")
    if WGX:
        e.i("s_xor_b32 s2, s2, %d" % WGX)
    if STAMP:
        e.i("s_memrealtime s[88:89]")
    e.i("s_load_dwordx16 s[%d:%d], s[0:1], 0" % (sPtr, sPtr + 15))
    e.i("s_load_dwordx4 s[%d:%d], s[0:1], 64" % (sPtr + 16, sPtr + 19))
    pq, pqk, pqv, pks, pkz, pvs, pvz, pout, pdbg, pws = [sPtr + 2 * k for k in range(10)]
    e.i("v_lshrrev_b32 v%d, 6, v0" % vT0)
    e.i("v_and_b32 v%d, 63, v0" % vLane)
    e.i("v_readfirstlane_b32 s%d, v%d" % (sWave, vT0))
    e.i("v_lshrrev_b32 v%d, 3, v%d" % (vT0, vLane))
    e.i("v_and_b32 v%d, 7, v%d" % (vT1, vLane))
    e.i("v_lshlrev_b32 v%d, 9, v%d" % (vLoff, vT0))
    e.i("v_lshl_add_u32 v%d, v%d, 4, v%d" % (vLoff, vT1, vLoff))
    if LAY == 1:
        e.i("v_lshlrev_b32 v%d, 4, v%d" % (vLoff, vLane))
    e.i("v_lshrrev_b32 v%d, 2, v%d" % (vT2, vT1))
    e.i("v_and_b32 v%d, 2, v%d" % (vT3, vT1))
    e.i("v_add_u32 v%d, v%d, v%d" % (vT2, vT2, vT3))
    e.i("v_and_b32 v%d, 1, v%d" % (vT3, vT1))
    e.i("v_lshl_add_u32 v%d, v%d, 2, v%d" % (vT2, vT3, vT2))
    GSTR = 8
    if PAT:
        P_W, P_WG, P_NWG, GSTR, P_T = PAT
        cover = sorted(w * P_W + g2 * P_WG + g * GSTR + t * P_T + k for w in range(WPW) for g2 in range(P_NWG) for g in range(8) for t in range(TPW // 64) for k in range(8))
        assert cover == list(range(P_NWG * WPW * TPW)), "pattern does not tile"
        assert (P_NWG * WPW * TPW) <= 32768
    e.i("v_lshl_add_u32 v%d, v%d, %d, v%d" % (vSoff, vT2, GSTR.bit_length() - 1, vT0))
    e.i("v_lshlrev_b32 v%d, 1, v%d" % (vSoff, vSoff))
    if GS is not None:
        e.i("v_lshl_add_u32 v%d, v%d, 3, v%d" % (vSoffD, vT2, vT0))
        e.i("v_lshlrev_b32 v%d, 1, v%d" % (vSoffD, vSoffD))
        e.i("s_mov_b32 s%d, 32768" % sGstr)
    e.i("s_lshl_b32 s%d, s%d, 9" % (sT0, sWave))
    e.i("v_lshlrev_b32 v%d, 6, v%d" % (vLdsR, vT0))
    e.i("v_add_u32 v%d, s%d, v%d" % (vLdsR, sT0, vLdsR))
    e.i("v_lshl_add_u32 v%d, v%d, 3, v%d" % (vLdsW, vT2, vLdsR))
    e.i("s_mov_b32 s%d, 0xcccccccc" % sMask1)
    e.i("s_mov_b32 s%d, 0xcccccccc" % (sMask1 + 1))
    e.i("s_mov_b32 s%d, 0xaaaaaaaa" % sMask0)
    e.i("s_mov_b32 s%d, 0xaaaaaaaa" % (sMask0 + 1))
    e.i("s_lshl_b32 s%d, s2, %d" % (sGW, LOG_WPW))
    e.i("s_add_u32 s%d, s%d, s%d" % (sGW, sGW, sWave))
    e.i("s_lshr_b32 s%d, s%d, %d" % (sKVH, sGW, LOG_WPH))
    e.i("s_and_b32 s%d, s%d, %d" % (sChunk, sGW, WAVES_PER_HEAD - 1))
    e.i("s_and_b32 s%d, s2, %d" % (sSplit, NSPLIT - 1))
    e.i("s_waitcnt lgkmcnt(0)")
    if DYN:
        TSTRIDE = 64
        WPG = WAVES_PER_HEAD // 2
        e.i("s_lshr_b32 s%d, s%d, %d" % (sQi, sGW, LOG_WPH - 1))
        e.i("s_lshl_b32 s%d, s%d, 15" % (sT1, sQi))
        e.i("s_and_b32 s%d, s%d, %d" % (sNext, sGW, WPG - 1))
        e.i("s_lshl_b32 s%d, s%d, %d" % (sQi, sQi, (2 if DYN == 1 else 3) if not DYNWS else 12))
        if DYNWS:
            e.i("s_add_u32 s%d, s%d, %d" % (sQi, sQi, 12 << 20))
    elif FC is not None:
        TSTRIDE = 512
        e.i("s_lshr_b32 s%d, s2, 3" % sQi)
        e.i("s_lshl_b32 s%d, s%d, 15" % (sT1, sQi))
        e.i("s_lshl_b32 s%d, s%d, %d" % (sQi, sQi, 3 if not FUSE else 2))
        e.i("s_and_b32 s%d, s2, 7" % sT0)
        e.i("s_lshl_b32 s%d, s%d, 12" % (sT0, sT0))
        e.i("s_lshl_b32 s%d, s%d, 3" % (sCur, sWave))
        e.i("s_add_u32 s%d, s%d, s%d" % (sCur, sCur, sT0))
        e.i("s_mov_b32 s%d, 100" % sNT)
        e.i("s_cmp_eq_u32 s%d, 0" % sWave)
        e.i("s_cselect_b32 s%d, %d, 1000" % (sTkt, (TK if FCV < 2 else 1000) if GS is None else NS - 1))
    elif PAT:
        TSTRIDE = P_T
        e.i("s_and_b32 s%d, s2, %d" % (sT0, P_NWG - 1))
        e.i("s_andn2_b32 s%d, s2, %d" % (sT1, P_NWG - 1))
        e.i("s_mul_i32 s%d, s%d, %d" % (sT1, sT1, TPW * WPW))
        e.i("s_mul_i32 s%d, s%d, %d" % (sT0, sT0, P_WG))
        e.i("s_add_u32 s%d, s%d, s%d" % (sT1, sT1, sT0))
        e.i("s_mul_i32 s%d, s%d, %d" % (sT0, sWave, P_W))
        e.i("s_add_u32 s%d, s%d, s%d" % (sT1, sT1, sT0))
    elif MAP == 0:
        TSTRIDE = 64
        e.i("s_mul_i32 s%d, s%d, %d" % (sT1, sGW, TPW))
    else:
        IW = MAP
        TSTRIDE = 64 * IW
        e.i("s_and_b32 s%d, s%d, %d" % (sT0, sGW, IW - 1))
        e.i("s_andn2_b32 s%d, s%d, %d" % (sT1, sGW, IW - 1))
        e.i("s_mul_i32 s%d, s%d, %d" % (sT1, sT1, TPW))
        e.i("s_lshl_b32 s%d, s%d, 6" % (sT0, sT0))
        e.i("s_add_u32 s%d, s%d, s%d" % (sT1, sT1, sT0))
    SPAN = (TPW // 64 - 1) * TSTRIDE + 7 * GSTR + 8
    if DYN or FC is not None:
        SPAN = 32768
    e.i("s_lshl_b32 s%d, s%d, 9" % (sT0, sT1))
    for srd, p in ((sK, pqk), (sV, pqv)):
        e.i("s_add_u32 s%d, s%d, s%d" % (srd, p, sT0))
        e.i("s_addc_u32 s%d, s%d, 0" % (srd + 1, p + 1))
        e.i("s_mov_b32 s%d, %d" % (srd + 2, SPAN * 512))
        e.i("s_mov_b32 s%d, 0x00020000" % (srd + 3))
    e.i("s_lshl_b32 s%d, s%d, 1" % (sT0, sT1))
    for srd, p in ((sVS, pvs), (sVZ, pvz)):
        e.i("s_add_u32 s%d, s%d, s%d" % (srd, p, sT0))
        e.i("s_addc_u32 s%d, s%d, 0" % (srd + 1, p + 1))
        e.i("s_mov_b32 s%d, %d" % (srd + 2, SPAN * 2))
        e.i("s_mov_b32 s%d, 0x00020000" % (srd + 3))
    for srd, p, n in ((sQ, pq, 8192), (sKS, pks, 8192), (sKZ, pkz, 8192), (sWS, pws, 1 << 24)):
        e.i("s_mov_b32 s%d, s%d" % (srd, p))
        e.i("s_mov_b32 s%d, s%d" % (srd + 1, p + 1))
        e.i("s_mov_b32 s%d, %d" % (srd + 2, n))
        e.i("s_mov_b32 s%d, 0x00020000" % (srd + 3))
    if DYN:
        e.i("s_mov_b32 s%d, s%d" % (sDBG, pdbg if not DYNWS else pws))
        e.i("s_mov_b32 s%d, s%d" % (sDBG + 1, (pdbg if not DYNWS else pws) + 1))
        e.i("s_mov_b32 s%d, %d" % (sDBG + 2, 256 if not DYNWS else (1 << 24)))
        e.i("s_mov_b32 s%d, 0x00020000" % (sDBG + 3))
        e.i("s_lshl_b32 s%d, s%d, 15" % (sKoff, sNext))
        e.i("s_lshl_b32 s%d, s%d, 15" % (sVoff, sNext))
        e.i("s_lshl_b32 s%d, s%d, 7" % (sSoff, sNext))
    elif FC is not None:
        e.i("s_mov_b32 s%d, s%d" % (sDBG, pdbg))
        e.i("s_mov_b32 s%d, s%d" % (sDBG + 1, pdbg + 1))
        e.i("s_mov_b32 s%d, 256" % (sDBG + 2))
        e.i("s_mov_b32 s%d, 0x00020000" % (sDBG + 3))
        e.i("s_lshl_b32 s%d, s%d, 9" % (sKoff, sCur))
        e.i("s_lshl_b32 s%d, s%d, 9" % (sVoff, sCur))
        e.i("s_lshl_b32 s%d, s%d, 1" % (sSoff, sCur))
    else:
        e.i("s_mov_b32 s%d, 0" % sKoff)
        e.i("s_mov_b32 s%d, 0" % sVoff)
        e.i("s_mov_b32 s%d, 0" % sSoff)

    e.i("v_lshlrev_b32 v%d, 3, v%d" % (vT3, vT1))
    e.i("s_lshl_b32 s%d, s%d, 9" % (sT0, sKVH))
    for h in range(2):
        for seg in range(4):
            r = O + (h * 4 + seg) * 2
            e.i("buffer_load_dwordx2 v[%d:%d], v%d, s[%d:%d], s%d offen offset:%d" % (r, r + 1, vT3, sQ, sQ + 3, sT0, h * 256 + seg * 64))
    e.i("s_mul_i32 s%d, s%d, %d" % (sT1, sChunk, TPW))
    e.i("s_lshr_b32 s%d, s%d, 15" % (sT1, sT1))
    e.i("s_lshl_b32 s%d, s%d, 8" % (sT1, sT1))
    e.i("s_add_u32 s%d, s%d, s%d" % (sT1, sT1, sT0))
    for seg in range(4):
        r = O + 16 + seg * 2
        e.i("buffer_load_dwordx2 v[%d:%d], v%d, s[%d:%d], s%d offen offset:%d" % (r, r + 1, vT3, sKS, sKS + 3, sT1, seg * 64))
    for seg in range(4):
        r = O + 24 + seg * 2
        e.i("buffer_load_dwordx2 v[%d:%d], v%d, s[%d:%d], s%d offen offset:%d" % (r, r + 1, vT3, sKZ, sKZ + 3, sT1, seg * 64))

    def issue_load(j):
        slot = j % R
        r = ring(slot)
        jj = j % 32
        seg = jj % 4
        if j < 32:
            e.i("buffer_load_dwordx4 v[%d:%d], v%d, s[%d:%d], s%d offen offset:%d%s" % (r, r + 3, vLoff, sK, sK + 3, sKoff, seg * (1024 if LAY == 1 else 128), ntf))
            if seg == 3:
                e.i(("s_add_u32 s%d, s%d, %d" % (sKoff, sKoff, (GSTR * 512 if jj != 31 else (TSTRIDE - 7 * GSTR) * 512) & 0xffffffff)) if GS is None else ("s_add_u32 s%d, s%d, s%d" % (sKoff, sKoff, sGstr)))
        else:
            e.i("buffer_load_dwordx4 v[%d:%d], v%d, s[%d:%d], s%d offen offset:%d%s" % (r, r + 3, vLoff, sV, sV + 3, sVoff, seg * (1024 if LAY == 1 else 128), ntf))
            if seg == 3:
                e.i(("s_add_u32 s%d, s%d, %d" % (sVoff, sVoff, (GSTR * 512 if jj != 31 else (TSTRIDE - 7 * GSTR) * 512) & 0xffffffff)) if GS is None else ("s_add_u32 s%d, s%d, s%d" % (sVoff, sVoff, sGstr)))

    def issue_scales():
        if NOSC:
            e.i("buffer_load_ushort v%d, v%d, s[%d:%d], 0 offen" % (vVS, vSoff, sVS, sVS + 3))
            e.i("buffer_load_ushort v%d, v%d, s[%d:%d], 0 offen" % (vVS + 1, vSoff, sVZ, sVZ + 3))
            return
        vso = vSoff if GS is None else vSoffD
        e.i("buffer_load_ushort v%d, v%d, s[%d:%d], s%d offen" % (vVS, vso, sVS, sVS + 3, sSoff))
        e.i("buffer_load_ushort v%d, v%d, s[%d:%d], s%d offen" % (vVS + 1, vso, sVZ, sVZ + 3, sSoff))
        e.i("s_add_u32 s%d, s%d, %d" % (sSoff, sSoff, TSTRIDE * 2))

    if SCL:
        e.i("v_lshlrev_b32 v%d, 4, v%d" % (vT0, vLane))
        e.i("s_and_b32 s%d, s2, 7" % sT0)
        e.i("s_lshl_b32 s%d, s%d, 13" % (sT0, sT0))
        e.i("s_lshl_b32 s%d, s%d, 10" % (sT1, sWave))
        e.i("s_add_u32 s%d, s%d, s%d" % (sT0, sT0, sT1))
        e.i("buffer_load_dwordx4 v[%d:%d], v%d, s[%d:%d], s%d offen" % (QS, QS + 3, vT0, sVS, sVS + 3, sT0))
        e.i("buffer_load_dwordx4 v[%d:%d], v%d, s[%d:%d], s%d offen" % (QS + 4, QS + 7, vT0, sVZ, sVZ + 3, sT0))
        e.i("v_add_u32 v%d, s%d, v%d" % (vT1, sT1, vT0))
        e.i("s_lshl_b32 s%d, s%d, 4" % (sT1, sWave))
        e.i("v_add_u32 v%d, s%d, v%d" % (vSL, sT1, vSoff))
    else:
        issue_scales()
    for j in range(R):
        issue_load(j)

    if GS is not None:
        st = [0]
        for n_ in GS:
            st.append(st[-1] + n_)
        e.i("v_mov_b32 v%d, %d" % (vTab, st[-1]))
        for k_, v_ in enumerate(st[:-1]):
            if v_ <= 64:
                e.i("v_writelane_b32 v%d, %d, %d" % (vTab, v_, k_))
            else:
                e.i("s_mov_b32 s%d, %d" % (sT0, v_))
                e.i("v_writelane_b32 v%d, s%d, %d" % (vTab, sT0, k_))
        e.i("v_mov_b32 v%d, 0" % vT2)
        e.i("ds_write_b32 v%d, v%d offset:%d" % (vT2, vT2, CNTOFF))
    if SCL:
        e.i("s_waitcnt vmcnt(%d)" % R)
        e.i("ds_write_b128 v%d, v[%d:%d] offset:%d" % (vT1, QS, QS + 3, SCB))
        e.i("ds_write_b128 v%d, v[%d:%d] offset:%d" % (vT1, QS + 4, QS + 7, SCB + 8192))
        e.i("s_waitcnt lgkmcnt(0)")
    else:
        e.i("s_waitcnt vmcnt(%d)" % (R + 2))
    e.i("s_mov_b32 s%d, 0x%08x" % (sT0, f2u(CSCALE)))
    for seg in range(4):
        for half in range(2):
            src = O + 16 + seg * 2 + half
            d0 = A + seg * 4 + half * 2
            e.i("v_lshlrev_b32 v%d, 16, v%d" % (d0, src))
            e.i("v_and_b32 v%d, 0xffff0000, v%d" % (d0 + 1, src))
    for k in range(16):
        e.i("v_mul_f32 v%d, s%d, v%d" % (A + k, sT0, A + k))
    for h in range(2):
        for seg in range(4):
            for half in range(2):
                src = O + (h * 4 + seg) * 2 + half
                sc0 = seg * 4 + half * 2
                e.i("v_lshlrev_b32 v%d, 16, v%d" % (QS + 2 * sc0 + h, src))
                e.i("v_and_b32 v%d, 0xffff0000, v%d" % (QS + 2 * (sc0 + 1) + h, src))
    for sc in range(16):
        for h in range(2):
            e.i("v_mul_f32 v%d, v%d, v%d" % (QS + 2 * sc + h, QS + 2 * sc + h, A + sc))
    for seg in range(4):
        for half in range(2):
            src = O + 24 + seg * 2 + half
            d0 = A + seg * 4 + half * 2
            e.i("v_lshlrev_b32 v%d, 16, v%d" % (d0, src))
            e.i("v_and_b32 v%d, 0xffff0000, v%d" % (d0 + 1, src))
    for h in range(2):
        t = vT0 + h
        e.i("v_mul_f32 v%d, v%d, v%d" % (t, QS + h, A))
        for sc in range(1, 16):
            e.i("v_fmac_f32 v%d, v%d, v%d" % (t, QS + 2 * sc + h, A + sc))
    for mod in ("quad_perm:[1,0,3,2]", "quad_perm:[2,3,0,1]", "row_half_mirror"):
        for h in range(2):
            t = vT0 + h
            e.i("v_add_f32_dpp v%d, v%d, v%d %s row_mask:0xf bank_mask:0xf" % (t, t, t, mod))
    e.i("v_readfirstlane_b32 s%d, v%d" % (sC0, vT0))
    e.i("v_readfirstlane_b32 s%d, v%d" % (sC1, vT1))
    for k in range(32):
        e.i("v_mov_b32 v%d, 0" % (O + k))
    for r in (vL, vL + 1, vZ, vZ + 1):
        e.i("v_mov_b32 v%d, 0" % r)
    e.i("v_mov_b32 v%d, 0x%08x" % (vM, f2u(-3.0e38)))
    e.i("s_mov_b32 s%d, %d" % (sCnt, NTILES - 1))
    if STAMP == 2:
        e.i("s_mov_b32 s98, 0")
        e.i("v_mov_b32 v%d, 0" % vStamp)

    def stepA(x, y):
        for k in range(2):
            e.i("v_add_f32_dpp v%d, v%d, v%d row_half_mirror row_mask:0xf bank_mask:0x5" % (A + 2 * x + k, A + 2 * x + k, A + 2 * x + k))
        for k in range(2):
            e.i("v_add_f32_dpp v%d, v%d, v%d row_half_mirror row_mask:0xf bank_mask:0xa" % (A + 2 * x + k, A + 2 * y + k, A + 2 * y + k))

    def stepQ(x, y, mask, perm, out):
        for k in range(2):
            X, Y = A + 2 * x + k, A + 2 * y + k
            t = vT0 + k
            e.i("v_cndmask_b32 v%d, v%d, v%d, s[%d:%d]" % (t, Y, X, mask, mask + 1))
            e.i("v_cndmask_b32 v%d, v%d, v%d, s[%d:%d]" % (Y, X, Y, mask, mask + 1))
        for k in range(2):
            Y = A + 2 * y + k
            t = vT0 + k
            e.i("v_add_f32_dpp v%d, v%d, v%d %s row_mask:0xf bank_mask:0xf" % (out + k, t, Y, perm))

    def softmax():
        S0, S1 = A, A + 1
        e.i("v_mov_b32 v%d, v%d" % (vT0, S0))
        e.i("v_mov_b32 v%d, v%d" % (vT1, S1))
        e.i("v_lshlrev_b32 v%d, 16, v%d" % (vVS, vVS))
        e.i("v_lshlrev_b32 v%d, 16, v%d" % (vVS + 1, vVS + 1))
        e.i("v_permlane32_swap_b32 v%d, v%d" % (vT0, vT1))
        e.i("v_max_f32 v%d, v%d, v%d" % (vT0, vT0, vT1))
        e.i("v_mov_b32 v%d, v%d" % (vT1, vT0))
        e.i("v_permlane16_swap_b32 v%d, v%d" % (vT0, vT1))
        e.i("v_max_f32 v%d, v%d, v%d" % (vT0, vT0, vT1))
        for rr in (8, 4, 2, 1):
            e.i("v_max_f32_dpp v%d, v%d, v%d row_ror:%d row_mask:0xf bank_mask:0xf" % (vT0, vT0, vT0, rr))
        e.i("v_max_f32 v%d, v%d, v%d" % (vT0, vT0, vM))
        e.i("v_sub_f32 v%d, v%d, v%d" % (vT1, vM, vT0))
        e.i("v_exp_f32 v%d, v%d" % (vT1, vT1))
        e.i("v_mov_b32 v%d, v%d" % (vM, vT0))
        e.i("v_readlane_b32 s%d, v%d, 0" % (sM0, vT0))
        e.i("v_readlane_b32 s%d, v%d, 32" % (sM1, vT0))
        e.i("v_readlane_b32 s%d, v%d, 0" % (sF, vT1))
        e.i("v_readlane_b32 s%d, v%d, 32" % (sF + 1, vT1))
        e.i("v_subrev_f32 v%d, s%d, v%d" % (vP, sM0, S0))
        e.i("v_subrev_f32 v%d, s%d, v%d" % (vP + 1, sM1, S1))
        e.i("v_exp_f32 v%d, v%d" % (vP, vP))
        e.i("v_exp_f32 v%d, v%d" % (vP + 1, vP + 1))
        P = "v[%d:%d]" % (vP, vP + 1)
        PP = "v[%d:%d]" % (vPP, vPP + 1)
        L = "v[%d:%d]" % (vL, vL + 1)
        Z = "v[%d:%d]" % (vZ, vZ + 1)
        VS = "v[%d:%d]" % (vVS, vVS + 1)
        F = "s[%d:%d]" % (sF, sF + 1)
        e.i("v_pk_mul_f32 %s, %s, %s" % (Z, Z, F))
        e.i("v_pk_mul_f32 %s, %s, %s op_sel:[0,0] op_sel_hi:[1,0]" % (PP, P, VS))
        e.i("v_pk_fma_f32 %s, %s, %s, %s" % (L, L, F, P))
        e.i("ds_write_b64 v%d, %s" % (vLdsW, PP))
        e.i("v_pk_fma_f32 %s, %s, %s, %s op_sel:[0,1,0] op_sel_hi:[1,1,1]" % (Z, PP, VS, Z))
        for k in range(4):
            e.i("ds_read_b128 v[%d:%d], v%d offset:%d" % (A + 4 * k, A + 4 * k + 3, vLdsR, 16 * k))
        for sc in range(16):
            e.i("v_pk_mul_f32 %s, %s, %s" % (o(sc), o(sc), F))

    def steps(q, j0, j1, last, dyn_at=None):
        for j in range(j0, j1):
            if FC is not None:
                uid = "%d_%d" % (j, 1 if last else 0)
                if j == 0:
                    e.i("s_cmp_lt_u32 s%d, %d" % (sCnt, NS))
                    e.i("s_cselect_b32 s%d, 1, 0" % sBar)
                if j % BAR == 0 and GS is not None:
                    e.i("s_barrier")
                elif j % BAR == 0:
                    e.i("s_cmp_eq_u32 s%d, 0" % sBar)
                    e.i("s_cbranch_scc1 L_nb%s" % uid)
                    e.i("s_barrier")
                    e.label("L_nb%s" % uid)
                if j == 0:
                    e.i("s_cmp_%s_u32 s%d, s%d" % ("lg" if GS is None else "lt", sCnt, sTkt))
                    e.i("s_cbranch_scc1 L_nt0")
                    e.i("v_mov_b32 v%d, 1" % vT3)
                    e.i("s_mov_b64 exec, 1")
                    e.i("buffer_atomic_add v%d, v%d, s[%d:%d], s%d offen sc0" % (vT3, vT2, sDBG, sDBG + 3, sQi))
                    e.i("s_mov_b64 exec, -1")
                    e.label("L_nt0")
                if j == (33 if (TK < NS - 1 and GS is None) else 26):
                    e.i("s_cmp_%s_u32 s%d, s%d" % ("lg" if GS is None else "lt", sCnt, sTkt))
                    e.i("s_cbranch_scc1 L_nt1")
                    e.i("s_mov_b64 exec, 1")
                    e.i("ds_write_b32 v%d, v%d offset:%d" % (vT2, vT3, TICKOFF))
                    e.i("s_mov_b64 exec, -1")
                    e.i("s_waitcnt lgkmcnt(0)")
                    e.label("L_nt1")
                if SCL and j == 20:
                    e.i("s_cmp_eq_u32 s%d, 0" % sBar)
                    e.i("s_cbranch_scc1 L_nsr")
                    e.i("ds_read_u16 v%d, v%d offset:%d" % (vVS, vSL, SCB))
                    e.i("ds_read_u16 v%d, v%d offset:%d" % (vVS + 1, vSL, SCB + 8192))
                    e.label("L_nsr")
                if j == 32:
                    if SCL:
                        e.i("s_waitcnt lgkmcnt(0)")
                    e.i("ds_read_b32 v%d, v%d offset:%d" % (vTk, vT2, TICKOFF))
            elif BAR and j % BAR == 0:
                e.i("s_barrier")
            if dyn_at is not None and j == dyn_at:
                e.i("v_mov_b32 v%d, 1" % vAtD)
                e.i("s_mov_b64 exec, 1")
                e.i("buffer_atomic_add v%d, v%d, s[%d:%d], s%d offen sc0" % (vAtD, vZero, sDBG, sDBG + 3, sQi))
                e.i("s_mov_b64 exec, -1")
                q.append(("A", 0))
            if j == 32:
                if STAMP == 2:
                    e.i("s_memrealtime s[96:97]")
                softmax()
                if not last and not DYN and FC is None:
                    issue_scales()
                    q.append(("S", 0))
                    q.append(("S", 1))
                e.i("s_waitcnt lgkmcnt(0)")
                if STAMP == 2:
                    e.i("s_mov_b32 m0, s98")
                    e.i("s_add_u32 s98, s98, 1")
                    e.i("s_and_b32 s98, s98, 63")
                    e.i("v_writelane_b32 v%d, s96, m0" % vStamp)
            idx = q.index(("L", j))
            n_after = len(q) - idx - 1
            assert n_after <= 63
            e.i("s_waitcnt vmcnt(%d)" % n_after)
            del q[:idx + 1]
            r = ring(j % R)
            for c in range(4 if not BW else 0):
                e.i("v_cvt_f32_i32 v%d, v%d" % (r + c, r + c))
            jj = j % 32
            g, seg = jj // 4, jj % 4
            for c in range(4 if not BW else 0):
                pr = "v[%d:%d]" % (r + (c & 2), r + (c & 2) + 1)
                b = c & 1
                sc = seg * 4 + c
                if j < 32:
                    if seg == 0 and c == 0:
                        e.i("v_pk_mul_f32 %s, %s, %s op_sel:[%d,0] op_sel_hi:[%d,1]" % (a(g), pr, qs(sc), b, b))
                    else:
                        e.i("v_pk_fma_f32 %s, %s, %s, %s op_sel:[%d,0,0] op_sel_hi:[%d,1,1]" % (a(g), pr, qs(sc), a(g), b, b))
                else:
                    e.i("v_pk_fma_f32 %s, %s, %s, %s op_sel:[%d,0,0] op_sel_hi:[%d,1,1]" % (o(sc), pr, a(g), o(sc), b, b))
            nj = j + R
            if nj < 64:
                issue_load(nj)
                q.append(("L", nj))
            elif not last:
                issue_load(nj - 64)
                q.append(("N", nj - 64))
            if j < 32 and seg == 3:
                if g % 2 == 1:
                    stepA(g - 1, g)
                if g % 4 == 3:
                    stepQ(g - 3, g - 1, sMask1, "quad_perm:[2,3,0,1]", A + 2 * (g - 3))
                if g == 7:
                    stepQ(0, 4, sMask0, "quad_perm:[1,0,3,2]", A)

    def body(last):
        q = [("L", j) for j in range(R)]
        steps(q, 0, 64, last)

    if GS is not None:
        e.i("v_mov_b32 v%d, 0" % vT2)
        e.i("s_mov_b32 s%d, 0" % sCnt)
        e.label("L_loop")
        q = [("L", j) for j in range(R)]
        steps(q, 0, 64 - R, False)
        e.i("s_add_u32 s%d, s%d, 1" % (sCnt, sCnt))
        e.i("s_add_u32 s%d, s%d, 512" % (sCur, sCur))
        e.i("v_add_u32 v%d, 1024, v%d" % (vSL, vSL))
        e.i("s_cmp_lt_u32 s%d, %d" % (sCnt, NS))
        e.i("s_cbranch_scc1 L_noc")
        e.i("v_readfirstlane_b32 s%d, v%d" % (sT0, vTk))
        e.i("s_min_u32 s%d, s%d, 62" % (sT0, sT0))
        e.i("s_add_u32 s%d, s%d, 1" % (sT1, sT0))
        e.i("s_nop 3")
        e.i("v_readlane_b32 s%d, v%d, s%d" % (sD0, vTab, sT0))
        e.i("v_readlane_b32 s%d, v%d, s%d" % (sD1, vTab, sT1))
        e.i("s_add_u32 s%d, s%d, s%d" % (sD0, sD0, sWave))
        e.i("s_cmp_ge_u32 s%d, s%d" % (sD0, sD1))
        e.i("s_cbranch_scc1 L_last")
        e.i("s_lshr_b32 s%d, s%d, %d" % (sT0, sD0, DT.bit_length() - 1))
        e.i("s_lshl_b32 s%d, s%d, 12" % (sT0, sT0))
        e.i("s_and_b32 s%d, s%d, %d" % (sT1, sD0, DT - 1))
        e.i("s_lshl_b32 s%d, s%d, 6" % (sT1, sT1))
        e.i("s_add_u32 s%d, s%d, s%d" % (sCur, sT0, sT1))
        e.i("s_add_u32 s%d, s%d, %d" % (sCur, sCur, NS * 512))
        e.i("s_mov_b32 s%d, 4096" % sGstr)
        e.i("s_lshl_b32 s%d, s%d, 1" % (sSoff, sCur))
        issue_scales()
        e.label("L_noc")
        e.i("s_lshl_b32 s%d, s%d, 9" % (sKoff, sCur))
        e.i("s_lshl_b32 s%d, s%d, 9" % (sVoff, sCur))
        q2 = list(q)
        steps(q2, 64 - R, 64, False)
        e.i("s_branch L_loop")
        e.label("L_last")
        steps(q, 64 - R, 64, True)
    elif FC is not None:
        X = FC
        DB = 8 * NS * 512
        e.i("v_mov_b32 v%d, 0" % vT2)
        e.i("s_mov_b32 s%d, 0" % sCnt)
        e.label("L_loop")
        q = [("L", j) for j in range(R)]
        steps(q, 0, 64 - R, False)
        e.i("s_cmp_lg_u32 s%d, %d" % (sCnt, NS - 1))
        e.i("s_cbranch_scc1 L_noc")
        e.i("v_readfirstlane_b32 s%d, v%d" % (sT0, vTk))
        e.i("s_and_b32 s%d, s%d, 7" % (sT0, sT0))
        if FCV:
            e.i("s_and_b32 s%d, s2, 7" % sT0)
        if FCT is None:
            e.i("s_and_b32 s%d, s%d, 3" % (sT1, sT0))
            e.i("s_lshl_b32 s%d, s%d, 12" % (sT1, sT1))
            e.i("s_lshl_b32 s%d, s%d, 3" % (sD0, sWave))
            e.i("s_add_u32 s%d, s%d, s%d" % (sD0, sD0, sT1))
            e.i("s_add_u32 s%d, s%d, %d" % (sD0, sD0, NS * 512))
            e.i("s_add_u32 s%d, s%d, %d" % (sD1, sD0, 4 * 4096))
            e.i("s_cmp_lt_u32 s%d, %d" % (sWave, X))
            e.i("s_cselect_b32 s%d, %d, %d" % (sNT, NS + 2, NS + 1))
            e.i("s_cmp_lt_u32 s%d, %d" % (sWave, 8 - X))
            e.i("s_cselect_b32 s%d, %d, %d" % (sT1, NS + 1, NS))
            e.i("s_cmp_lt_u32 s%d, 4" % sT0)
            e.i("s_cselect_b32 s%d, s%d, s%d" % (sNT, sNT, sT1))
            e.i("s_add_u32 s%d, s%d, %d" % (sT1, sD1, 8 * X))
            e.i("s_cmp_lt_u32 s%d, 4" % sT0)
            e.i("s_cselect_b32 s%d, s%d, s%d" % (sD0, sD0, sT1))
        else:
            assert len(FCT) == 8 and sum(FCT) == 0 and all(-8 <= d <= 8 for d in FCT)
            ns = [8 + d for d in FCT]
            ps = [sum(ns[:k]) for k in range(8)]
            tn = sum(n << (8 * k) for k, n in enumerate(ns))
            tp = sum(p << (8 * k) for k, p in enumerate(ps))
            e.i("s_lshl_b32 s%d, s%d, 3" % (sT0, sT0))
            e.i("s_mov_b32 s%d, 0x%08x" % (sEx, tn & 0xffffffff))
            e.i("s_mov_b32 s%d, 0x%08x" % (sEx + 1, tn >> 32))
            e.i("s_lshr_b64 s[%d:%d], s[%d:%d], s%d" % (sEx, sEx + 1, sEx, sEx + 1, sT0))
            e.i("s_and_b32 s%d, s%d, 0xff" % (sT1, sEx))
            e.i("s_mov_b32 s%d, 0x%08x" % (sEx, tp & 0xffffffff))
            e.i("s_mov_b32 s%d, 0x%08x" % (sEx + 1, tp >> 32))
            e.i("s_lshr_b64 s[%d:%d], s[%d:%d], s%d" % (sEx, sEx + 1, sEx, sEx + 1, sT0))
            e.i("s_and_b32 s%d, s%d, 0xff" % (sT0, sEx))
            e.i("s_add_u32 s%d, s%d, s%d" % (sT0, sT0, sWave))
            e.i("s_lshr_b32 s%d, s%d, 3" % (sEx, sT0))
            e.i("s_lshl_b32 s%d, s%d, 12" % (sEx, sEx))
            e.i("s_and_b32 s%d, s%d, 7" % (sT0, sT0))
            e.i("s_lshl_b32 s%d, s%d, 3" % (sT0, sT0))
            e.i("s_add_u32 s%d, s%d, s%d" % (sD0, sEx, sT0))
            e.i("s_add_u32 s%d, s%d, %d" % (sD0, sD0, NS * 512))
            e.i("s_add_u32 s%d, s%d, 4096" % (sD1, sD0))
            e.i("s_mov_b32 s%d, %d" % (sNT, NS))
            e.i("s_cmp_lt_u32 s%d, s%d" % (sWave, sT1))
            e.i("s_addc_u32 s%d, s%d, 0" % (sNT, sNT))
            e.i("s_add_u32 s%d, s%d, 8" % (sT0, sWave))
            e.i("s_cmp_lt_u32 s%d, s%d" % (sT0, sT1))
            e.i("s_addc_u32 s%d, s%d, 0" % (sNT, sNT))
        e.label("L_noc")
        e.i("s_add_u32 s%d, s%d, 1" % (sCnt, sCnt))
        e.i("s_cmp_ge_u32 s%d, s%d" % (sCnt, sNT))
        e.i("s_cbranch_scc1 L_last")
        e.i("s_add_u32 s%d, s%d, 512" % (sCur, sCur))
        e.i("s_cmp_eq_u32 s%d, %d" % (sCnt, NS))
        e.i("s_cselect_b32 s%d, s%d, s%d" % (sCur, sD0, sCur))
        e.i("s_cmp_eq_u32 s%d, %d" % (sCnt, NS + 1))
        e.i("s_cselect_b32 s%d, s%d, s%d" % (sCur, sD1, sCur))
        e.i("s_lshl_b32 s%d, s%d, 9" % (sKoff, sCur))
        e.i("s_lshl_b32 s%d, s%d, 9" % (sVoff, sCur))
        e.i("s_lshl_b32 s%d, s%d, 1" % (sSoff, sCur))
        q2 = list(q)
        if SCL:
            e.i("v_add_u32 v%d, 1024, v%d" % (vSL, vSL))
            e.i("s_cmp_lt_u32 s%d, %d" % (sCnt, NS))
            e.i("s_cbranch_scc1 L_nsg")
            issue_scales()
            e.label("L_nsg")
        else:
            issue_scales()
            q2.append(("S", 0))
            q2.append(("S", 1))
        steps(q2, 64 - R, 64, False)
        e.i("s_branch L_loop")
        e.label("L_last")
        steps(q, 64 - R, 64, True)
    elif not DYN:
        e.label("L_loop")
        body(False)
        e.i("s_sub_u32 s%d, s%d, 1" % (sCnt, sCnt))
        e.i("s_cmp_lg_u32 s%d, 0" % sCnt)
        e.i("s_cbranch_scc1 L_loop")
        e.i("s_nop 4")
        body(True)
    else:
        vAtD, vZero = vT3, vLane
        vZero = vT2
        at = AT if AT is not None else max(64 - 2 * R, 0)
        e.i("v_mov_b32 v%d, 0" % vZero)
        e.label("L_loop")
        q = [("L", j) for j in range(R)]
        steps(q, 0, 64 - R, False, dyn_at=at)
        if ("A", 0) in q:
            idx = q.index(("A", 0))
            e.i("s_waitcnt vmcnt(%d)" % (len(q) - idx - 1))
            del q[:idx + 1]
        e.i("v_readfirstlane_b32 s%d, v%d" % (sNext, vAtD))
        e.i("s_add_u32 s%d, s%d, %d" % (sNext, sNext, WPG))
        e.i("s_cmp_ge_u32 s%d, 512" % sNext)
        e.i("s_cbranch_scc1 L_last")
        e.i("s_lshl_b32 s%d, s%d, 15" % (sKoff, sNext))
        e.i("s_lshl_b32 s%d, s%d, 15" % (sVoff, sNext))
        e.i("s_lshl_b32 s%d, s%d, 7" % (sSoff, sNext))
        q2 = list(q)
        issue_scales()
        q2.append(("S", 0))
        q2.append(("S", 1))
        steps(q2, 64 - R, 64, False)
        e.i("s_branch L_loop")
        e.label("L_last")
        steps(q, 64 - R, 64, True)

    if STAMP:
        e.i("s_memrealtime s[90:91]")
        e.i("s_getreg_b32 s92, hwreg(HW_REG_XCC_ID)")
        e.i("s_getreg_b32 s93, hwreg(HW_REG_HW_ID)")
        e.i("s_waitcnt lgkmcnt(0)")
        e.i("v_mov_b32 v%d, s88" % (A + 8))
        e.i("v_mov_b32 v%d, s90" % (A + 9))
        e.i("v_mov_b32 v%d, s92" % (A + 10))
        e.i("v_mov_b32 v%d, s93" % (A + 11))
        e.i("s_lshl_b32 s%d, s%d, 4" % (sT0, sGW))
        e.i("s_add_u32 s%d, s%d, %d" % (sT0, sT0, 8 << 20))
        e.i("v_mov_b32 v%d, 0" % (A + 12))
        e.i("buffer_store_dwordx4 v[%d:%d], v%d, s[%d:%d], s%d offen" % (A + 8, A + 11, A + 12, sWS, sWS + 3, sT0))
        if STAMP == 2:
            e.i("s_lshl_b32 s%d, s%d, 8" % (sT0, sGW))
            e.i("s_add_u32 s%d, s%d, %d" % (sT0, sT0, 9 << 20))
            e.i("v_lshlrev_b32 v%d, 2, v%d" % (A + 13, vLane))
            e.i("buffer_store_dword v%d, v%d, s[%d:%d], s%d offen" % (vStamp, A + 13, sWS, sWS + 3, sT0))
    e.i("v_permlane32_swap_b32 v%d, v%d" % (vL, vL + 1))
    e.i("v_permlane32_swap_b32 v%d, v%d" % (vZ, vZ + 1))
    e.i("v_add_f32 v%d, v%d, v%d" % (vL, vL, vL + 1))
    e.i("v_add_f32 v%d, v%d, v%d" % (vZ, vZ, vZ + 1))
    e.i("v_permlane16_swap_b32 v%d, v%d" % (vL, vZ))
    e.i("v_add_f32 v%d, v%d, v%d" % (vL, vL, vZ))
    for rr in (8, 4, 2, 1):
        e.i("v_add_f32_dpp v%d, v%d, v%d row_ror:%d row_mask:0xf bank_mask:0xf" % (vL, vL, vL, rr))
    e.i("v_readlane_b32 s%d, v%d, 0" % (sL0, vL))
    e.i("v_readlane_b32 s%d, v%d, 16" % (sZ0, vL))
    e.i("v_readlane_b32 s%d, v%d, 32" % (sL1, vL))
    e.i("v_readlane_b32 s%d, v%d, 48" % (sZ1, vL))
    for sc in range(16):
        e.i("v_permlane32_swap_b32 v%d, v%d" % (O + 2 * sc, O + 2 * sc + 1))
    for sc in range(16):
        e.i("v_add_f32 v%d, v%d, v%d" % (O + 2 * sc, O + 2 * sc, O + 2 * sc + 1))
    for sc in range(8):
        e.i("v_permlane16_swap_b32 v%d, v%d" % (O + 2 * sc, O + 2 * (sc + 8)))
    for sc in range(8):
        e.i("v_add_f32 v%d, v%d, v%d" % (O + 2 * sc, O + 2 * sc, O + 2 * (sc + 8)))
    for sc in range(4):
        e.i("v_add_f32_dpp v%d, v%d, v%d row_ror:8 row_mask:0xf bank_mask:0x3" % (A + sc, O + 2 * sc, O + 2 * sc))
    for sc in range(4):
        e.i("v_add_f32_dpp v%d, v%d, v%d row_ror:8 row_mask:0xf bank_mask:0xc" % (A + sc, O + 2 * (sc + 4), O + 2 * (sc + 4)))
    e.i("s_mov_b32 s%d, 0" % sEx)
    e.i("s_mov_b32 s%d, -1" % (sEx + 1))
    e.i("v_mov_b32 v%d, s%d" % (vT0, sZ0))
    e.i("v_mov_b32 v%d, s%d" % (vT1, sZ1))
    e.i("v_cndmask_b32 v%d, v%d, v%d, s[%d:%d]" % (vT0, vT0, vT1, sEx, sEx + 1))
    for sc in range(4):
        e.i("v_sub_f32 v%d, v%d, v%d" % (A + sc, A + sc, vT0))
    e.i("v_mov_b32 v%d, s%d" % (vT0, sC0))
    e.i("v_mov_b32 v%d, s%d" % (vT1, sC1))
    e.i("v_cndmask_b32 v%d, v%d, v%d, s[%d:%d]" % (vT0, vT0, vT1, sEx, sEx + 1))
    e.i("v_sub_f32 v%d, v%d, v%d" % (vP, vM, vT0))
    e.i("v_mov_b32 v%d, s%d" % (vT0, sL0))
    e.i("v_mov_b32 v%d, s%d" % (vT1, sL1))
    e.i("v_cndmask_b32 v%d, v%d, v%d, s[%d:%d]" % (vP + 1, vT0, vT1, sEx, sEx + 1))
    OB = WPW * 512
    MB = OB + WPW * 1024
    LDS = MB + WPW * 16 + (16 if FC is not None else 0) + (16384 if SCL else 0)
    e.i("s_lshl_b32 s%d, s%d, 10" % (sT0, sWave))
    e.i("v_lshlrev_b32 v%d, 4, v%d" % (vT2, vLane))
    e.i("v_add_u32 v%d, s%d, v%d" % (vT0, sT0, vT2))
    e.i("ds_write_b128 v%d, v[%d:%d] offset:%d" % (vT0, A, A + 3, OB))
    e.i("s_lshl_b32 s%d, s%d, 4" % (sT0, sWave))
    e.i("v_lshrrev_b32 v%d, 5, v%d" % (vT3, vLane))
    e.i("v_lshlrev_b32 v%d, 3, v%d" % (vT3, vT3))
    e.i("v_add_u32 v%d, s%d, v%d" % (vT1, sT0, vT3))
    e.i("ds_write_b64 v%d, v[%d:%d] offset:%d" % (vT1, vP, vP + 1, MB))
    e.i("s_waitcnt lgkmcnt(0)")
    if GS is None:
        e.i("s_barrier")
        e.i("s_cmp_lg_u32 s%d, 0" % sWave)
        e.i("s_cbranch_scc1 L_done1")
    else:
        e.i("v_mov_b32 v%d, 0" % vT0)
        e.i("v_mov_b32 v%d, 1" % vT1)
        e.i("s_mov_b64 exec, 1")
        e.i("ds_add_rtn_u32 v%d, v%d, v%d offset:%d" % (vT1, vT0, vT1, CNTOFF))
        e.i("s_mov_b64 exec, -1")
        e.i("s_waitcnt lgkmcnt(0)")
        e.i("v_readfirstlane_b32 s%d, v%d" % (sT0, vT1))
        e.i("s_cmp_lg_u32 s%d, %d" % (sT0, WPW - 1))
        e.i("s_cbranch_scc1 L_done1")
    assert WPW <= 16
    for w in range(WPW):
        e.i("ds_read_b64 v[%d:%d], v%d offset:%d" % (QS + 2 * w, QS + 2 * w + 1, vT3, MB + 16 * w))
    OT = O
    assert O + 4 * WPW <= NV
    for w in range(WPW):
        e.i("ds_read_b128 v[%d:%d], v%d offset:%d" % (OT + 4 * w, OT + 4 * w + 3, vT2, OB + 1024 * w))
    e.i("s_waitcnt lgkmcnt(0)")
    e.i("v_mov_b32 v%d, v%d" % (vT0, QS))
    for w in range(1, WPW):
        e.i("v_max_f32 v%d, v%d, v%d" % (vT0, vT0, QS + 2 * w))
    for w in range(WPW):
        e.i("v_sub_f32 v%d, v%d, v%d" % (QS + 2 * w, QS + 2 * w, vT0))
    for w in range(WPW):
        e.i("v_exp_f32 v%d, v%d" % (QS + 2 * w, QS + 2 * w))
    e.i("v_mul_f32 v%d, v%d, v%d" % (vT1, QS, QS + 1))
    for w in range(1, WPW):
        e.i("v_fmac_f32 v%d, v%d, v%d" % (vT1, QS + 2 * w, QS + 2 * w + 1))
    for c in range(4):
        e.i("v_mul_f32 v%d, v%d, v%d" % (OT + c, OT + c, QS))
    for w in range(1, WPW):
        for c in range(4):
            e.i("v_fmac_f32 v%d, v%d, v%d" % (OT + c, OT + 4 * w + c, QS + 2 * w))
    MLB = 32 * NSPLIT * 512
    e.i("s_lshl_b32 s%d, s%d, %d" % (sT0, sKVH, LOG_NSPLIT + 1))
    e.i("s_add_u32 s%d, s%d, s%d" % (sT0, sT0, sSplit))
    e.i("v_lshrrev_b32 v%d, 5, v%d" % (vT3, vLane))
    e.i("v_lshlrev_b32 v%d, %d, v%d" % (vT3, LOG_NSPLIT, vT3))
    e.i("v_add_u32 v%d, s%d, v%d" % (vT3, sT0, vT3))
    e.i("v_and_b32 v%d, 31, v%d" % (vT2, vLane))
    e.i("v_lshlrev_b32 v%d, 4, v%d" % (vT2, vT2))
    e.i("v_lshl_add_u32 v%d, v%d, 9, v%d" % (vT2, vT3, vT2))
    scf = " sc1" if FUSE else ""
    e.i("buffer_store_dwordx4 v[%d:%d], v%d, s[%d:%d], 0 offen%s" % (OT, OT + 3, vT2, sWS, sWS + 3, scf))
    e.i("v_lshlrev_b32 v%d, 3, v%d" % (vT3, vT3))
    e.i("s_mov_b32 s%d, %d" % (sT1, MLB))
    e.i("buffer_store_dwordx2 v[%d:%d], v%d, s[%d:%d], s%d offen%s" % (vT0, vT1, vT3, sWS, sWS + 3, sT1, scf))
    if FUSE:
        assert FC is not None and NSPLIT == 16
        vA, vB, vC = vP, vP + 1, vPP
        e.i("s_lshl_b32 s%d, s%d, 9" % (sT0, sSplit))
        e.i("v_subrev_u32 v%d, s%d, v%d" % (vB, sT0, vT2))
        e.i("s_lshl_b32 s%d, s%d, 3" % (sT0, sSplit))
        e.i("v_subrev_u32 v%d, s%d, v%d" % (vC, sT0, vT3))
        e.i("s_lshl_b32 s%d, s%d, 2" % (sT0, sKVH))
        e.i("s_add_u32 s%d, s%d, 128" % (sT0, sT0))
        e.i("v_mov_b32 v%d, 1" % vA)
        e.i("v_mov_b32 v%d, 0" % vM)
        e.i("s_waitcnt vmcnt(0)")
        e.i("s_mov_b64 exec, 1")
        e.i("buffer_atomic_add v%d, v%d, s[%d:%d], s%d offen sc0" % (vA, vM, sDBG, sDBG + 3, sT0))
        e.i("s_mov_b64 exec, -1")
        e.i("s_waitcnt vmcnt(0)")
        e.i("v_readfirstlane_b32 s%d, v%d" % (sT0, vA))
        e.i("s_cmp_lg_u32 s%d, %d" % (sT0, NSPLIT - 1))
        e.i("s_cbranch_scc1 L_done1")
        for t in range(NSPLIT):
            e.i("buffer_load_dwordx2 v[%d:%d], v%d, s[%d:%d], s%d offen offset:%d sc1" % (QS + 2 * t, QS + 2 * t + 1, vC, sWS, sWS + 3, sT1, 8 * t))
        e.i("s_mov_b32 s%d, 4096" % sT0)
        for t in range(NSPLIT):
            e.i("buffer_load_dwordx4 v[%d:%d], v%d, s[%d:%d], %s offen offset:%d sc1" % (RING + 4 * t, RING + 4 * t + 3, vB, sWS, sWS + 3, "0" if t < 8 else "s%d" % sT0, (t % 8) * 512))
        e.i("s_mov_b32 s%d, s%d" % (sK, pout))
        e.i("s_mov_b32 s%d, s%d" % (sK + 1, pout + 1))
        e.i("s_mov_b32 s%d, 8192" % (sK + 2))
        e.i("s_mov_b32 s%d, 0x00020000" % (sK + 3))
        e.i("s_lshl_b32 s%d, s%d, 9" % (sT0, sKVH))
        e.i("v_lshlrev_b32 v%d, 3, v%d" % (vT2, vLane))
        e.i("s_waitcnt vmcnt(%d)" % NSPLIT)
        e.i("v_mov_b32 v%d, v%d" % (vT0, QS))
        for w in range(1, NSPLIT):
            e.i("v_max_f32 v%d, v%d, v%d" % (vT0, vT0, QS + 2 * w))
        for w in range(NSPLIT):
            e.i("v_sub_f32 v%d, v%d, v%d" % (QS + 2 * w, QS + 2 * w, vT0))
        for w in range(NSPLIT):
            e.i("v_exp_f32 v%d, v%d" % (QS + 2 * w, QS + 2 * w))
        e.i("v_mul_f32 v%d, v%d, v%d" % (vT1, QS, QS + 1))
        for w in range(1, NSPLIT):
            e.i("v_fmac_f32 v%d, v%d, v%d" % (vT1, QS + 2 * w, QS + 2 * w + 1))
        e.i("v_rcp_f32 v%d, v%d" % (vT1, vT1))
        e.i("s_waitcnt vmcnt(0)")
        for c in range(4):
            e.i("v_mul_f32 v%d, v%d, v%d" % (RING + c, RING + c, QS))
        for w in range(1, NSPLIT):
            for c in range(4):
                e.i("v_fmac_f32 v%d, v%d, v%d" % (RING + c, RING + 4 * w + c, QS + 2 * w))
        for c in range(4):
            e.i("v_mul_f32 v%d, v%d, v%d" % (RING + c, RING + c, vT1))
        e.i("v_cvt_pk_bf16_f32 v%d, v%d, v%d" % (RING, RING, RING + 1))
        e.i("v_cvt_pk_bf16_f32 v%d, v%d, v%d" % (RING + 1, RING + 2, RING + 3))
        e.i("buffer_store_dwordx2 v[%d:%d], v%d, s[%d:%d], s%d offen" % (RING, RING + 1, vT2, sK, sK + 3, sT0))
    e.raw("L_done1:")
    e.i("s_endpgm")
    k1 = e.text()

    e = Emit()
    e.raw(".p2align 8")
    e.raw(".globl combine_kernel")
    e.raw(".type combine_kernel,@function")
    e.raw("combine_kernel:")
    e.i("s_cmp_ge_u32 s2, 32")
    e.i("s_cbranch_scc1 L_done2")
    e.i("s_load_dwordx2 s[4:5], s[0:1], 56")
    e.i("s_load_dwordx2 s[6:7], s[0:1], 72")
    e.i("v_lshlrev_b32 v1, 3, v0")
    e.i("s_waitcnt lgkmcnt(0)")
    e.i("s_mov_b32 s8, s4")
    e.i("s_mov_b32 s9, s5")
    e.i("s_mov_b32 s10, 8192")
    e.i("s_mov_b32 s11, 0x00020000")
    e.i("s_mov_b32 s12, s6")
    e.i("s_mov_b32 s13, s7")
    e.i("s_mov_b32 s14, %d" % (1 << 24))
    e.i("s_mov_b32 s15, 0x00020000")
    e.i("s_mul_i32 s16, s2, %d" % (NSPLIT * 8))
    e.i("s_add_u32 s16, s16, %d" % MLB)
    e.i("v_and_b32 v2, %d, v0" % (NSPLIT - 1))
    e.i("v_lshlrev_b32 v2, 3, v2")
    e.i("buffer_load_dwordx2 v[4:5], v2, s[12:15], s16 offen")
    e.i("s_mul_i32 s17, s2, %d" % (NSPLIT * 512))
    for t in range(NSPLIT):
        if t and t % 8 == 0:
            e.i("s_add_u32 s17, s17, 4096")
        e.i("buffer_load_dwordx2 v[%d:%d], v1, s[12:15], s17 offen offset:%d" % (10 + 2 * t, 11 + 2 * t, (t % 8) * 512))
    e.i("s_waitcnt vmcnt(%d)" % min(NSPLIT, 63))
    if NSPLIT == 64:
        pass
    e.i("v_mov_b32 v6, v4")
    e.i("v_mov_b32 v7, v4")
    e.i("v_permlane32_swap_b32 v6, v7")
    e.i("v_max_f32 v6, v6, v7")
    e.i("v_mov_b32 v7, v6")
    e.i("v_permlane16_swap_b32 v6, v7")
    e.i("v_max_f32 v6, v6, v7")
    for rr in (8, 4, 2, 1):
        e.i("v_max_f32_dpp v6, v6, v6 row_ror:%d row_mask:0xf bank_mask:0xf" % rr)
    e.i("v_sub_f32 v4, v4, v6")
    e.i("v_exp_f32 v4, v4")
    e.i("v_mul_f32 v5, v4, v5")
    if NSPLIT < 64:
        e.i("v_cmp_gt_u32 vcc, %d, v0" % NSPLIT)
        e.i("v_cndmask_b32 v5, 0, v5, vcc")
    e.i("v_mov_b32 v6, v5")
    e.i("v_mov_b32 v7, v5")
    e.i("v_permlane32_swap_b32 v6, v7")
    e.i("v_add_f32 v6, v6, v7")
    e.i("v_mov_b32 v7, v6")
    e.i("v_permlane16_swap_b32 v6, v7")
    e.i("v_add_f32 v6, v6, v7")
    for rr in (8, 4, 2, 1):
        e.i("v_add_f32_dpp v6, v6, v6 row_ror:%d row_mask:0xf bank_mask:0xf" % rr)
    e.i("v_rcp_f32 v7, v6")
    e.i("v_mov_b32 v8, 0")
    e.i("v_mov_b32 v9, 0")
    e.i("s_waitcnt vmcnt(0)")
    for t in range(NSPLIT):
        e.i("v_readlane_b32 s%d, v4, %d" % (20 + (t % 8), t))
        if t >= 3:
            tt = t - 3
            e.i("v_pk_fma_f32 v[8:9], v[%d:%d], s[%d:%d], v[8:9] op_sel:[0,%d,0] op_sel_hi:[1,%d,1]" % (
                10 + 2 * tt, 11 + 2 * tt, 20 + ((tt % 8) & ~1), 21 + ((tt % 8) & ~1), tt & 1, tt & 1))
    for tt in range(max(NSPLIT - 3, 0), NSPLIT):
        e.i("v_pk_fma_f32 v[8:9], v[%d:%d], s[%d:%d], v[8:9] op_sel:[0,%d,0] op_sel_hi:[1,%d,1]" % (
            10 + 2 * tt, 11 + 2 * tt, 20 + ((tt % 8) & ~1), 21 + ((tt % 8) & ~1), tt & 1, tt & 1))
    e.i("v_mul_f32 v8, v8, v7")
    e.i("v_mul_f32 v9, v9, v7")
    e.i("v_cvt_pk_bf16_f32 v8, v8, v9")
    e.i("v_lshlrev_b32 v1, 2, v0")
    e.i("s_lshl_b32 s16, s2, 8")
    e.i("buffer_store_dword v8, v1, s[8:11], s16 offen")
    e.raw("L_done2:")
    e.i("s_endpgm")
    k2 = e.text()
    NV2 = 10 + 2 * NSPLIT

    hdr = open("cdna_kernels/%s.s.ref" % NAME).read().split("; Override launch geometry")[0]
    out = hdr
    out += "; @launch kernel=%s_kernel grid=(%d,1,1) block=(%d,1,1) lds=%d\n" % (NAME, NWG, WPW * 64, LDS)
    if not NOK2 and not FUSE:
        out += "; @launch kernel=combine_kernel grid=(32,1,1) block=(64,1,1) lds=0\n"
    out += '.amdgcn_target "amdgcn-amd-amdhsa--gfx950"\n.text\n'
    out += ".globl %s_kernel\n.p2align 8\n.type %s_kernel,@function\n" % (NAME, NAME)
    out += k1 + (k2 if not FUSE else "")
    out += '.section .rodata,"a"\n'

    def kd(name, nv, ns):
        return (".p2align 6\n.amdhsa_kernel %s\n  .amdhsa_next_free_vgpr %d\n  .amdhsa_next_free_sgpr %d\n"
                "  .amdhsa_accum_offset %d\n  .amdhsa_group_segment_fixed_size 0\n  .amdhsa_kernarg_size 80\n"
                "  .amdhsa_user_sgpr_count 2\n  .amdhsa_user_sgpr_kernarg_segment_ptr 1\n"
                "  .amdhsa_system_sgpr_workgroup_id_x 1\n.end_amdhsa_kernel\n") % (name, nv, ns, (nv + 3) // 4 * 4)

    out += kd(NAME + "_kernel", VG, 96 if (STAMP != 2 and GS is None) else 100)
    if not FUSE:
        out += kd("combine_kernel", NV2, 40)
    return out


if __name__ == "__main__":
    ap = argparse.ArgumentParser()
    ap.add_argument("-R", type=int, default=16)
    ap.add_argument("--wpw", type=int, default=4)
    ap.add_argument("--tpw", type=int, default=512)
    ap.add_argument("--nt", type=int, default=1)
    ap.add_argument("--vg", type=int, default=None)
    ap.add_argument("--bw", type=int, default=0)
    ap.add_argument("--pol", default=None)
    ap.add_argument("--lay", type=int, default=0)
    ap.add_argument("--tiles", type=int, default=None)
    ap.add_argument("--nok2", type=int, default=0)
    ap.add_argument("--map", type=int, default=0)
    ap.add_argument("--stamp", type=int, default=0)
    ap.add_argument("--wgx", type=int, default=0)
    ap.add_argument("--dyn", type=int, default=0)
    ap.add_argument("--at", type=int, default=None)
    ap.add_argument("--dynws", type=int, default=0)
    ap.add_argument("--pat", default=None)
    ap.add_argument("--bar", type=int, default=0)
    ap.add_argument("--fc", type=int, default=None)
    ap.add_argument("--tk", type=int, default=5)
    ap.add_argument("--fcv", type=int, default=0)
    ap.add_argument("--fct", default=None)
    ap.add_argument("--nosc", type=int, default=0)
    ap.add_argument("--scl", type=int, default=0)
    ap.add_argument("--gs", default=None)
    ap.add_argument("--ns", type=int, default=6)
    ap.add_argument("--fuse", type=int, default=0)
    ap.add_argument("-o", default="cdna_kernels/%s.s" % NAME)
    args = ap.parse_args()
    s = gen(R=args.R, WPW=args.wpw, TPW=args.tpw, NT=bool(args.nt), VG=args.vg, BW=args.bw, POL=args.pol, LAY=args.lay, TILES=args.tiles, NOK2=args.nok2, MAP=args.map, STAMP=args.stamp, WGX=args.wgx, DYN=args.dyn, AT=args.at, DYNWS=args.dynws, PAT=tuple(int(x) for x in args.pat.split(',')) if args.pat else None, BAR=args.bar, FC=args.fc, TK=args.tk, FCV=args.fcv, FCT=[int(x) for x in args.fct.split(',')] if args.fct else None, NOSC=args.nosc, SCL=args.scl, GS=[int(x) for x in args.gs.split(',')] if args.gs else None, NSTAT=args.ns, FUSE=args.fuse)
    open(args.o, "w").write(s)
    print("wrote", args.o, len(s), "bytes")
```

```python
import re
import sys
import struct
import argparse

NAME = "standalone__kv_cache_quant_int4_int2_kv_with_per_channel_or_per_token_scales__decode"


def f2u(x):
    return struct.unpack("<I", struct.pack("<f", x))[0]


REG_RE = re.compile(r"\b([vs])(\d+)\b|\b([vs])\[(\d+):(\d+)\]|\b(vcc)\b")


def regs_of(op):
    out = set()
    for m in REG_RE.finditer(op):
        if m.group(1):
            out.add((m.group(1), int(m.group(2))))
        elif m.group(3):
            for r in range(int(m.group(4)), int(m.group(5)) + 1):
                out.add((m.group(3), r))
        else:
            out.add(("vcc", 0))
    return out


TRANS = ("v_exp_f32", "v_log_f32", "v_rcp_f32", "v_rsq_f32", "v_sqrt_f32")


class Emit:
    def __init__(self):
        self.lines = []
        self.hist = []

    def raw(self, s):
        self.lines.append(s)

    def label(self, s):
        self.i("s_nop 4")
        self.lines.append(s + ":")
        self.hist = []

    def comment(self, s):
        self.lines.append("    ; " + s)

    def i(self, text):
        text = text.strip()
        mn = text.split()[0]
        rest = text[len(mn):].strip()
        ops = [o.strip() for o in rest.split(",")] if rest else []
        clean = []
        for o in ops:
            clean.append(o.split()[0] if o.split() else o)
        ops = clean
        is_valu = mn.startswith("v_")
        is_vmem = mn.startswith("buffer_") or mn.startswith("global_")
        is_dpp = "_dpp" in mn
        is_perm = mn.startswith("v_permlane")
        is_rl = mn.startswith("v_readlane") or mn.startswith("v_readfirstlane")
        writes, reads = set(), set()
        if is_valu:
            if is_perm:
                writes = regs_of(ops[0]) | regs_of(ops[1])
                reads = set(writes)
            else:
                writes = regs_of(ops[0])
                for o in ops[1:]:
                    reads |= regs_of(o)
                if "fmac" in mn or is_dpp:
                    reads |= regs_of(ops[0])
                if mn.startswith("v_cndmask") and len(ops) == 3:
                    reads.add(("vcc", 0))
        elif is_vmem:
            for o in ops:
                reads |= regs_of(o)
        elif mn.startswith("ds_"):
            for o in ops:
                reads |= regs_of(o)
        else:
            for o in ops:
                reads |= regs_of(o)
        need = 0
        for dist, h in enumerate(reversed(self.hist)):
            req = 0
            if h["valu"]:
                vw = {r for r in h["writes"] if r[0] == "v"}
                sw = {r for r in h["writes"] if r[0] in ("s", "vcc")}
                if (is_dpp or is_perm) and (vw & reads):
                    req = max(req, 2)
                if is_rl and (vw & reads):
                    req = max(req, 1)
                if is_valu and (sw & reads):
                    req = max(req, 4 if is_rl else 2)
                if is_vmem and (sw & reads):
                    req = max(req, 5)
                if (not is_valu) and (not is_vmem) and (sw & reads):
                    req = max(req, 4)
                if h["trans"] and is_valu and (vw & reads):
                    req = max(req, 1)
            if h["wide_store"] and is_valu and (h["reads"] & writes):
                req = max(req, 2)
            need = max(need, req - h["after"])
        if need > 0:
            self._push("s_nop %d" % (need - 1), need, dict(valu=False, writes=set(), reads=set(), trans=False, wide_store=False))
        wide = is_vmem and "store" in mn and ("x4" in mn or "x3" in mn)
        self._push(text, 1, dict(valu=is_valu, writes=writes, reads=reads, trans=mn.startswith(TRANS), wide_store=wide))

    def _push(self, text, states, info):
        if text.startswith("s_nop"):
            states = int(text.split()[1]) + 1
        for h in self.hist:
            h["after"] += states
        info["after"] = 0
        self.hist.append(info)
        self.hist = [h for h in self.hist if h["after"] < 8]
        self.lines.append("    " + text)

    def text(self):
        return "\n".join(self.lines) + "\n"


def gen(R=16, WPW=4, TPW=512, NT=True, VG=None, BW=0, POL=None, LAY=0, TILES=None, NOK2=0, MAP=0, STAMP=0, WGX=0, DYN=0, AT=None, DYNWS=0, PAT=None, BAR=0, FC=None, TK=5, FCV=0, FCT=None, NOSC=0, SCL=0, GS=None, NSTAT=6, FUSE=0):
    SKV = 65536
    HKV = 16
    WAVES_PER_HEAD = SKV // TPW
    NWAVES = WAVES_PER_HEAD * HKV
    NWG = NWAVES // WPW
    NSPLIT = WAVES_PER_HEAD // WPW
    NTILES = TPW // 64
    if TILES:
        NTILES = TILES
    assert NSPLIT <= 64 and NTILES >= 2
    assert 64 % R == 0
    ntf = " nt" if NT else ""
    if POL is not None:
        ntf = (" " + POL) if POL else ""
    LOG_WPH = WAVES_PER_HEAD.bit_length() - 1
    LOG_WPW = WPW.bit_length() - 1
    LOG_NSPLIT = NSPLIT.bit_length() - 1
    CSCALE = (128.0 ** -0.5) * 1.4426950408889634

    e = Emit()
    vLoff, vSoff, vLdsW, vLdsR = 0, 1, 2, 3
    vM = 4
    vT0, vT1, vT2 = 6, 7, 5
    vL = 8
    vZ = 10
    vVS = 12
    vP = 14
    vPP = 16
    vLane = 18
    vT3 = 19
    QS = 20
    O = 52
    A = 84
    RING = 100
    NV = RING + 4 * R
    vStamp = NV
    if STAMP == 2:
        NV += 1
    if GS is not None:
        FC = 0
        SCL = 1
    vTk = NV
    if FC is not None:
        NV += 1
        assert WPW * TPW == 4096 and (WPW == 8 or GS is not None) and not DYN and BAR in (2, 4, 8, 16) and R == 16
        PAT = (8, 0, 1, 8 * WPW, 64 * WPW)
    vSL = NV
    if SCL:
        assert FC is not None
        NV += 1
    NS = 7
    vTab, vSoffD = NV, NV + 1
    if GS is not None:
        NV += 2
        NS = NSTAT
        DT = (TPW // 64 - NS) * WPW
        assert DT & (DT - 1) == 0
        assert sum(GS) == 8 * DT and all(1 <= x <= WPW for x in GS) and all(GS[k] >= GS[k + 1] for k in range(len(GS) - 1)) and len(GS) <= 60
    TICKOFF = WPW * 512 + WPW * 1024 + WPW * 16
    SCB = TICKOFF + 16
    CNTOFF = TICKOFF + 4
    sGstr = 96
    RT = 64 * WPW
    if VG is None:
        VG = NV

    def qs(sc):
        return "v[%d:%d]" % (QS + 2 * sc, QS + 2 * sc + 1)

    def o(sc):
        return "v[%d:%d]" % (O + 2 * sc, O + 2 * sc + 1)

    def a(i):
        return "v[%d:%d]" % (A + 2 * i, A + 2 * i + 1)

    def ring(slot):
        return RING + 4 * slot

    sK, sV, sVS, sVZ = 8, 12, 16, 20
    sQ, sKS, sKZ, sWS = 24, 28, 32, 36
    sKoff, sVoff, sSoff, sCnt = 40, 41, 42, 43
    sMask1, sMask0 = 44, 46
    sM0, sM1 = 48, 49
    sF = 50
    sC0, sC1 = 52, 53
    sWave, sGW, sKVH, sChunk, sT0, sT1 = 54, 55, 56, 57, 58, 59
    sPtr = 60
    sL0, sZ0, sL1, sZ1 = 80, 81, 82, 83
    sSplit = 84
    sEx = 86
    sQi, sNext = 94, 95
    sDBG = 4
    sCur, sNT, sTkt, sD0, sD1, sBar = 95, 3, 85, 91, 92, 93
    assert not (STAMP and FC is not None) or True
    vAt = 1000

    e.raw("%s_kernel:" % NAME)
    e.i("s_cmp_ge_u32 s2, %d" % NWG)
    e.i("s_cbranch_scc1 L_done1")
    if WGX:
        e.i("s_xor_b32 s2, s2, %d" % WGX)
    if STAMP:
        e.i("s_memrealtime s[88:89]")
    e.i("s_load_dwordx16 s[%d:%d], s[0:1], 0" % (sPtr, sPtr + 15))
    e.i("s_load_dwordx4 s[%d:%d], s[0:1], 64" % (sPtr + 16, sPtr + 19))
    pq, pqk, pqv, pks, pkz, pvs, pvz, pout, pdbg, pws = [sPtr + 2 * k for k in range(10)]
    e.i("v_lshrrev_b32 v%d, 6, v0" % vT0)
    e.i("v_and_b32 v%d, 63, v0" % vLane)
    e.i("v_readfirstlane_b32 s%d, v%d" % (sWave, vT0))
    e.i("v_lshrrev_b32 v%d, 3, v%d" % (vT0, vLane))
    e.i("v_and_b32 v%d, 7, v%d" % (vT1, vLane))
    e.i("v_lshlrev_b32 v%d, 9, v%d" % (vLoff, vT0))
    e.i("v_lshl_add_u32 v%d, v%d, 4, v%d" % (vLoff, vT1, vLoff))
    if LAY == 1:
        e.i("v_lshlrev_b32 v%d, 4, v%d" % (vLoff, vLane))
    e.i("v_lshrrev_b32 v%d, 2, v%d" % (vT2, vT1))
    e.i("v_and_b32 v%d, 2, v%d" % (vT3, vT1))
    e.i("v_add_u32 v%d, v%d, v%d" % (vT2, vT2, vT3))
    e.i("v_and_b32 v%d, 1, v%d" % (vT3, vT1))
    e.i("v_lshl_add_u32 v%d, v%d, 2, v%d" % (vT2, vT3, vT2))
    GSTR = 8
    if PAT:
        P_W, P_WG, P_NWG, GSTR, P_T = PAT
        cover = sorted(w * P_W + g2 * P_WG + g * GSTR + t * P_T + k for w in range(WPW) for g2 in range(P_NWG) for g in range(8) for t in range(TPW // 64) for k in range(8))
        assert cover == list(range(P_NWG * WPW * TPW)), "pattern does not tile"
        assert (P_NWG * WPW * TPW) <= 32768
    e.i("v_lshl_add_u32 v%d, v%d, %d, v%d" % (vSoff, vT2, GSTR.bit_length() - 1, vT0))
    e.i("v_lshlrev_b32 v%d, 1, v%d" % (vSoff, vSoff))
    if GS is not None:
        e.i("v_lshl_add_u32 v%d, v%d, 3, v%d" % (vSoffD, vT2, vT0))
        e.i("v_lshlrev_b32 v%d, 1, v%d" % (vSoffD, vSoffD))
        e.i("s_mov_b32 s%d, %d" % (sGstr, 8 * WPW * 512))
    e.i("s_lshl_b32 s%d, s%d, 9" % (sT0, sWave))
    e.i("v_lshlrev_b32 v%d, 6, v%d" % (vLdsR, vT0))
    e.i("v_add_u32 v%d, s%d, v%d" % (vLdsR, sT0, vLdsR))
    e.i("v_lshl_add_u32 v%d, v%d, 3, v%d" % (vLdsW, vT2, vLdsR))
    e.i("s_mov_b32 s%d, 0xcccccccc" % sMask1)
    e.i("s_mov_b32 s%d, 0xcccccccc" % (sMask1 + 1))
    e.i("s_mov_b32 s%d, 0xaaaaaaaa" % sMask0)
    e.i("s_mov_b32 s%d, 0xaaaaaaaa" % (sMask0 + 1))
    e.i("s_lshl_b32 s%d, s2, %d" % (sGW, LOG_WPW))
    e.i("s_add_u32 s%d, s%d, s%d" % (sGW, sGW, sWave))
    e.i("s_lshr_b32 s%d, s%d, %d" % (sKVH, sGW, LOG_WPH))
    e.i("s_and_b32 s%d, s%d, %d" % (sChunk, sGW, WAVES_PER_HEAD - 1))
    e.i("s_and_b32 s%d, s2, %d" % (sSplit, NSPLIT - 1))
    e.i("s_waitcnt lgkmcnt(0)")
    if DYN:
        TSTRIDE = 64
        WPG = WAVES_PER_HEAD // 2
        e.i("s_lshr_b32 s%d, s%d, %d" % (sQi, sGW, LOG_WPH - 1))
        e.i("s_lshl_b32 s%d, s%d, 15" % (sT1, sQi))
        e.i("s_and_b32 s%d, s%d, %d" % (sNext, sGW, WPG - 1))
        e.i("s_lshl_b32 s%d, s%d, %d" % (sQi, sQi, (2 if DYN == 1 else 3) if not DYNWS else 12))
        if DYNWS:
            e.i("s_add_u32 s%d, s%d, %d" % (sQi, sQi, 12 << 20))
    elif FC is not None:
        TSTRIDE = RT
        e.i("s_lshr_b32 s%d, s2, 3" % sQi)
        e.i("s_lshl_b32 s%d, s%d, 15" % (sT1, sQi))
        e.i("s_lshl_b32 s%d, s%d, %d" % (sQi, sQi, 3 if not FUSE else 2))
        e.i("s_and_b32 s%d, s2, 7" % sT0)
        e.i("s_lshl_b32 s%d, s%d, 12" % (sT0, sT0))
        e.i("s_lshl_b32 s%d, s%d, 3" % (sCur, sWave))
        e.i("s_add_u32 s%d, s%d, s%d" % (sCur, sCur, sT0))
        e.i("s_mov_b32 s%d, 100" % sNT)
        e.i("s_cmp_eq_u32 s%d, 0" % sWave)
        e.i("s_cselect_b32 s%d, %d, 1000" % (sTkt, (TK if FCV < 2 else 1000) if GS is None else NS - 1))
    elif PAT:
        TSTRIDE = P_T
        e.i("s_and_b32 s%d, s2, %d" % (sT0, P_NWG - 1))
        e.i("s_andn2_b32 s%d, s2, %d" % (sT1, P_NWG - 1))
        e.i("s_mul_i32 s%d, s%d, %d" % (sT1, sT1, TPW * WPW))
        e.i("s_mul_i32 s%d, s%d, %d" % (sT0, sT0, P_WG))
        e.i("s_add_u32 s%d, s%d, s%d" % (sT1, sT1, sT0))
        e.i("s_mul_i32 s%d, s%d, %d" % (sT0, sWave, P_W))
        e.i("s_add_u32 s%d, s%d, s%d" % (sT1, sT1, sT0))
    elif MAP == 0:
        TSTRIDE = 64
        e.i("s_mul_i32 s%d, s%d, %d" % (sT1, sGW, TPW))
    else:
        IW = MAP
        TSTRIDE = 64 * IW
        e.i("s_and_b32 s%d, s%d, %d" % (sT0, sGW, IW - 1))
        e.i("s_andn2_b32 s%d, s%d, %d" % (sT1, sGW, IW - 1))
        e.i("s_mul_i32 s%d, s%d, %d" % (sT1, sT1, TPW))
        e.i("s_lshl_b32 s%d, s%d, 6" % (sT0, sT0))
        e.i("s_add_u32 s%d, s%d, s%d" % (sT1, sT1, sT0))
    SPAN = (TPW // 64 - 1) * TSTRIDE + 7 * GSTR + 8
    if DYN or FC is not None:
        SPAN = 32768
    e.i("s_lshl_b32 s%d, s%d, 9" % (sT0, sT1))
    for srd, p in ((sK, pqk), (sV, pqv)):
        e.i("s_add_u32 s%d, s%d, s%d" % (srd, p, sT0))
        e.i("s_addc_u32 s%d, s%d, 0" % (srd + 1, p + 1))
        e.i("s_mov_b32 s%d, %d" % (srd + 2, SPAN * 512))
        e.i("s_mov_b32 s%d, 0x00020000" % (srd + 3))
    e.i("s_lshl_b32 s%d, s%d, 1" % (sT0, sT1))
    for srd, p in ((sVS, pvs), (sVZ, pvz)):
        e.i("s_add_u32 s%d, s%d, s%d" % (srd, p, sT0))
        e.i("s_addc_u32 s%d, s%d, 0" % (srd + 1, p + 1))
        e.i("s_mov_b32 s%d, %d" % (srd + 2, SPAN * 2))
        e.i("s_mov_b32 s%d, 0x00020000" % (srd + 3))
    for srd, p, n in ((sQ, pq, 8192), (sKS, pks, 8192), (sKZ, pkz, 8192), (sWS, pws, 1 << 24)):
        e.i("s_mov_b32 s%d, s%d" % (srd, p))
        e.i("s_mov_b32 s%d, s%d" % (srd + 1, p + 1))
        e.i("s_mov_b32 s%d, %d" % (srd + 2, n))
        e.i("s_mov_b32 s%d, 0x00020000" % (srd + 3))
    if DYN:
        e.i("s_mov_b32 s%d, s%d" % (sDBG, pdbg if not DYNWS else pws))
        e.i("s_mov_b32 s%d, s%d" % (sDBG + 1, (pdbg if not DYNWS else pws) + 1))
        e.i("s_mov_b32 s%d, %d" % (sDBG + 2, 256 if not DYNWS else (1 << 24)))
        e.i("s_mov_b32 s%d, 0x00020000" % (sDBG + 3))
        e.i("s_lshl_b32 s%d, s%d, 15" % (sKoff, sNext))
        e.i("s_lshl_b32 s%d, s%d, 15" % (sVoff, sNext))
        e.i("s_lshl_b32 s%d, s%d, 7" % (sSoff, sNext))
    elif FC is not None:
        e.i("s_mov_b32 s%d, s%d" % (sDBG, pdbg))
        e.i("s_mov_b32 s%d, s%d" % (sDBG + 1, pdbg + 1))
        e.i("s_mov_b32 s%d, 256" % (sDBG + 2))
        e.i("s_mov_b32 s%d, 0x00020000" % (sDBG + 3))
        e.i("s_lshl_b32 s%d, s%d, 9" % (sKoff, sCur))
        e.i("s_lshl_b32 s%d, s%d, 9" % (sVoff, sCur))
        e.i("s_lshl_b32 s%d, s%d, 1" % (sSoff, sCur))
    else:
        e.i("s_mov_b32 s%d, 0" % sKoff)
        e.i("s_mov_b32 s%d, 0" % sVoff)
        e.i("s_mov_b32 s%d, 0" % sSoff)

    e.i("v_lshlrev_b32 v%d, 3, v%d" % (vT3, vT1))
    e.i("s_lshl_b32 s%d, s%d, 9" % (sT0, sKVH))
    for h in range(2):
        for seg in range(4):
            r = O + (h * 4 + seg) * 2
            e.i("buffer_load_dwordx2 v[%d:%d], v%d, s[%d:%d], s%d offen offset:%d" % (r, r + 1, vT3, sQ, sQ + 3, sT0, h * 256 + seg * 64))
    e.i("s_mul_i32 s%d, s%d, %d" % (sT1, sChunk, TPW))
    e.i("s_lshr_b32 s%d, s%d, 15" % (sT1, sT1))
    e.i("s_lshl_b32 s%d, s%d, 8" % (sT1, sT1))
    e.i("s_add_u32 s%d, s%d, s%d" % (sT1, sT1, sT0))
    for seg in range(4):
        r = O + 16 + seg * 2
        e.i("buffer_load_dwordx2 v[%d:%d], v%d, s[%d:%d], s%d offen offset:%d" % (r, r + 1, vT3, sKS, sKS + 3, sT1, seg * 64))
    for seg in range(4):
        r = O + 24 + seg * 2
        e.i("buffer_load_dwordx2 v[%d:%d], v%d, s[%d:%d], s%d offen offset:%d" % (r, r + 1, vT3, sKZ, sKZ + 3, sT1, seg * 64))

    def issue_load(j):
        slot = j % R
        r = ring(slot)
        jj = j % 32
        seg = jj % 4
        if j < 32:
            e.i("buffer_load_dwordx4 v[%d:%d], v%d, s[%d:%d], s%d offen offset:%d%s" % (r, r + 3, vLoff, sK, sK + 3, sKoff, seg * (1024 if LAY == 1 else 128), ntf))
            if seg == 3:
                e.i(("s_add_u32 s%d, s%d, %d" % (sKoff, sKoff, (GSTR * 512 if jj != 31 else (TSTRIDE - 7 * GSTR) * 512) & 0xffffffff)) if GS is None else ("s_add_u32 s%d, s%d, s%d" % (sKoff, sKoff, sGstr)))
        else:
            e.i("buffer_load_dwordx4 v[%d:%d], v%d, s[%d:%d], s%d offen offset:%d%s" % (r, r + 3, vLoff, sV, sV + 3, sVoff, seg * (1024 if LAY == 1 else 128), ntf))
            if seg == 3:
                e.i(("s_add_u32 s%d, s%d, %d" % (sVoff, sVoff, (GSTR * 512 if jj != 31 else (TSTRIDE - 7 * GSTR) * 512) & 0xffffffff)) if GS is None else ("s_add_u32 s%d, s%d, s%d" % (sVoff, sVoff, sGstr)))

    def issue_scales():
        if NOSC:
            e.i("buffer_load_ushort v%d, v%d, s[%d:%d], 0 offen" % (vVS, vSoff, sVS, sVS + 3))
            e.i("buffer_load_ushort v%d, v%d, s[%d:%d], 0 offen" % (vVS + 1, vSoff, sVZ, sVZ + 3))
            return
        vso = vSoff if GS is None else vSoffD
        e.i("buffer_load_ushort v%d, v%d, s[%d:%d], s%d offen" % (vVS, vso, sVS, sVS + 3, sSoff))
        e.i("buffer_load_ushort v%d, v%d, s[%d:%d], s%d offen" % (vVS + 1, vso, sVZ, sVZ + 3, sSoff))
        e.i("s_add_u32 s%d, s%d, %d" % (sSoff, sSoff, TSTRIDE * 2))

    NSL = 8 // WPW
    if SCL:
        e.i("v_lshlrev_b32 v%d, 4, v%d" % (vT0, vLane))
        e.i("s_and_b32 s%d, s2, 7" % sT0)
        e.i("s_lshl_b32 s%d, s%d, 13" % (sT0, sT0))
        e.i("s_mul_i32 s%d, s%d, %d" % (sT1, sWave, 1024 * NSL))
        e.i("s_add_u32 s%d, s%d, s%d" % (sT0, sT0, sT1))
        for k_ in range(NSL):
            e.i("buffer_load_dwordx4 v[%d:%d], v%d, s[%d:%d], s%d offen offset:%d" % (QS + 8 * k_, QS + 8 * k_ + 3, vT0, sVS, sVS + 3, sT0, 1024 * k_))
            e.i("buffer_load_dwordx4 v[%d:%d], v%d, s[%d:%d], s%d offen offset:%d" % (QS + 8 * k_ + 4, QS + 8 * k_ + 7, vT0, sVZ, sVZ + 3, sT0, 1024 * k_))
        e.i("v_add_u32 v%d, s%d, v%d" % (vT1, sT1, vT0))
        e.i("s_lshl_b32 s%d, s%d, 4" % (sT1, sWave))
        e.i("v_add_u32 v%d, s%d, v%d" % (vSL, sT1, vSoff))
    else:
        issue_scales()
    for j in range(R):
        issue_load(j)

    if GS is not None:
        st = [0]
        for n_ in GS:
            st.append(st[-1] + n_)
        e.i("v_mov_b32 v%d, %d" % (vTab, st[-1]))
        for k_, v_ in enumerate(st[:-1]):
            if v_ <= 64:
                e.i("v_writelane_b32 v%d, %d, %d" % (vTab, v_, k_))
            else:
                e.i("s_mov_b32 s%d, %d" % (sT0, v_))
                e.i("v_writelane_b32 v%d, s%d, %d" % (vTab, sT0, k_))
        e.i("v_mov_b32 v%d, 0" % vT2)
        e.i("ds_write_b32 v%d, v%d offset:%d" % (vT2, vT2, CNTOFF))
    if SCL:
        e.i("s_waitcnt vmcnt(%d)" % R)
        for k_ in range(NSL):
            e.i("ds_write_b128 v%d, v[%d:%d] offset:%d" % (vT1, QS + 8 * k_, QS + 8 * k_ + 3, SCB + 1024 * k_))
            e.i("ds_write_b128 v%d, v[%d:%d] offset:%d" % (vT1, QS + 8 * k_ + 4, QS + 8 * k_ + 7, SCB + 8192 + 1024 * k_))
        e.i("s_waitcnt lgkmcnt(0)")
    else:
        e.i("s_waitcnt vmcnt(%d)" % (R + 2))
    e.i("s_mov_b32 s%d, 0x%08x" % (sT0, f2u(CSCALE)))
    for seg in range(4):
        for half in range(2):
            src = O + 16 + seg * 2 + half
            d0 = A + seg * 4 + half * 2
            e.i("v_lshlrev_b32 v%d, 16, v%d" % (d0, src))
            e.i("v_and_b32 v%d, 0xffff0000, v%d" % (d0 + 1, src))
    for k in range(16):
        e.i("v_mul_f32 v%d, s%d, v%d" % (A + k, sT0, A + k))
    for h in range(2):
        for seg in range(4):
            for half in range(2):
                src = O + (h * 4 + seg) * 2 + half
                sc0 = seg * 4 + half * 2
                e.i("v_lshlrev_b32 v%d, 16, v%d" % (QS + 2 * sc0 + h, src))
                e.i("v_and_b32 v%d, 0xffff0000, v%d" % (QS + 2 * (sc0 + 1) + h, src))
    for sc in range(16):
        for h in range(2):
            e.i("v_mul_f32 v%d, v%d, v%d" % (QS + 2 * sc + h, QS + 2 * sc + h, A + sc))
    for seg in range(4):
        for half in range(2):
            src = O + 24 + seg * 2 + half
            d0 = A + seg * 4 + half * 2
            e.i("v_lshlrev_b32 v%d, 16, v%d" % (d0, src))
            e.i("v_and_b32 v%d, 0xffff0000, v%d" % (d0 + 1, src))
    for h in range(2):
        t = vT0 + h
        e.i("v_mul_f32 v%d, v%d, v%d" % (t, QS + h, A))
        for sc in range(1, 16):
            e.i("v_fmac_f32 v%d, v%d, v%d" % (t, QS + 2 * sc + h, A + sc))
    for mod in ("quad_perm:[1,0,3,2]", "quad_perm:[2,3,0,1]", "row_half_mirror"):
        for h in range(2):
            t = vT0 + h
            e.i("v_add_f32_dpp v%d, v%d, v%d %s row_mask:0xf bank_mask:0xf" % (t, t, t, mod))
    e.i("v_readfirstlane_b32 s%d, v%d" % (sC0, vT0))
    e.i("v_readfirstlane_b32 s%d, v%d" % (sC1, vT1))
    for k in range(32):
        e.i("v_mov_b32 v%d, 0" % (O + k))
    for r in (vL, vL + 1, vZ, vZ + 1):
        e.i("v_mov_b32 v%d, 0" % r)
    e.i("v_mov_b32 v%d, 0x%08x" % (vM, f2u(-3.0e38)))
    e.i("s_mov_b32 s%d, %d" % (sCnt, NTILES - 1))
    if STAMP == 2:
        e.i("s_mov_b32 s98, 0")
        e.i("v_mov_b32 v%d, 0" % vStamp)

    def stepA(x, y):
        for k in range(2):
            e.i("v_add_f32_dpp v%d, v%d, v%d row_half_mirror row_mask:0xf bank_mask:0x5" % (A + 2 * x + k, A + 2 * x + k, A + 2 * x + k))
        for k in range(2):
            e.i("v_add_f32_dpp v%d, v%d, v%d row_half_mirror row_mask:0xf bank_mask:0xa" % (A + 2 * x + k, A + 2 * y + k, A + 2 * y + k))

    def stepQ(x, y, mask, perm, out):
        for k in range(2):
            X, Y = A + 2 * x + k, A + 2 * y + k
            t = vT0 + k
            e.i("v_cndmask_b32 v%d, v%d, v%d, s[%d:%d]" % (t, Y, X, mask, mask + 1))
            e.i("v_cndmask_b32 v%d, v%d, v%d, s[%d:%d]" % (Y, X, Y, mask, mask + 1))
        for k in range(2):
            Y = A + 2 * y + k
            t = vT0 + k
            e.i("v_add_f32_dpp v%d, v%d, v%d %s row_mask:0xf bank_mask:0xf" % (out + k, t, Y, perm))

    def softmax():
        S0, S1 = A, A + 1
        e.i("v_mov_b32 v%d, v%d" % (vT0, S0))
        e.i("v_mov_b32 v%d, v%d" % (vT1, S1))
        e.i("v_lshlrev_b32 v%d, 16, v%d" % (vVS, vVS))
        e.i("v_lshlrev_b32 v%d, 16, v%d" % (vVS + 1, vVS + 1))
        e.i("v_permlane32_swap_b32 v%d, v%d" % (vT0, vT1))
        e.i("v_max_f32 v%d, v%d, v%d" % (vT0, vT0, vT1))
        e.i("v_mov_b32 v%d, v%d" % (vT1, vT0))
        e.i("v_permlane16_swap_b32 v%d, v%d" % (vT0, vT1))
        e.i("v_max_f32 v%d, v%d, v%d" % (vT0, vT0, vT1))
        for rr in (8, 4, 2, 1):
            e.i("v_max_f32_dpp v%d, v%d, v%d row_ror:%d row_mask:0xf bank_mask:0xf" % (vT0, vT0, vT0, rr))
        e.i("v_max_f32 v%d, v%d, v%d" % (vT0, vT0, vM))
        e.i("v_sub_f32 v%d, v%d, v%d" % (vT1, vM, vT0))
        e.i("v_exp_f32 v%d, v%d" % (vT1, vT1))
        e.i("v_mov_b32 v%d, v%d" % (vM, vT0))
        e.i("v_readlane_b32 s%d, v%d, 0" % (sM0, vT0))
        e.i("v_readlane_b32 s%d, v%d, 32" % (sM1, vT0))
        e.i("v_readlane_b32 s%d, v%d, 0" % (sF, vT1))
        e.i("v_readlane_b32 s%d, v%d, 32" % (sF + 1, vT1))
        e.i("v_subrev_f32 v%d, s%d, v%d" % (vP, sM0, S0))
        e.i("v_subrev_f32 v%d, s%d, v%d" % (vP + 1, sM1, S1))
        e.i("v_exp_f32 v%d, v%d" % (vP, vP))
        e.i("v_exp_f32 v%d, v%d" % (vP + 1, vP + 1))
        P = "v[%d:%d]" % (vP, vP + 1)
        PP = "v[%d:%d]" % (vPP, vPP + 1)
        L = "v[%d:%d]" % (vL, vL + 1)
        Z = "v[%d:%d]" % (vZ, vZ + 1)
        VS = "v[%d:%d]" % (vVS, vVS + 1)
        F = "s[%d:%d]" % (sF, sF + 1)
        e.i("v_pk_mul_f32 %s, %s, %s" % (Z, Z, F))
        e.i("v_pk_mul_f32 %s, %s, %s op_sel:[0,0] op_sel_hi:[1,0]" % (PP, P, VS))
        e.i("v_pk_fma_f32 %s, %s, %s, %s" % (L, L, F, P))
        e.i("ds_write_b64 v%d, %s" % (vLdsW, PP))
        e.i("v_pk_fma_f32 %s, %s, %s, %s op_sel:[0,1,0] op_sel_hi:[1,1,1]" % (Z, PP, VS, Z))
        for k in range(4):
            e.i("ds_read_b128 v[%d:%d], v%d offset:%d" % (A + 4 * k, A + 4 * k + 3, vLdsR, 16 * k))
        for sc in range(16):
            e.i("v_pk_mul_f32 %s, %s, %s" % (o(sc), o(sc), F))

    def steps(q, j0, j1, last, dyn_at=None):
        for j in range(j0, j1):
            if FC is not None:
                uid = "%d_%d" % (j, 1 if last else 0)
                if j == 0:
                    e.i("s_cmp_lt_u32 s%d, %d" % (sCnt, NS))
                    e.i("s_cselect_b32 s%d, 1, 0" % sBar)
                if j % BAR == 0 and GS is not None:
                    e.i("s_barrier")
                elif j % BAR == 0:
                    e.i("s_cmp_eq_u32 s%d, 0" % sBar)
                    e.i("s_cbranch_scc1 L_nb%s" % uid)
                    e.i("s_barrier")
                    e.label("L_nb%s" % uid)
                if j == 0:
                    e.i("s_cmp_%s_u32 s%d, s%d" % ("lg" if GS is None else "lt", sCnt, sTkt))
                    e.i("s_cbranch_scc1 L_nt0")
                    e.i("v_mov_b32 v%d, 1" % vT3)
                    e.i("s_mov_b64 exec, 1")
                    e.i("buffer_atomic_add v%d, v%d, s[%d:%d], s%d offen sc0" % (vT3, vT2, sDBG, sDBG + 3, sQi))
                    e.i("s_mov_b64 exec, -1")
                    e.label("L_nt0")
                if j == (33 if (TK < NS - 1 and GS is None) else 26):
                    e.i("s_cmp_%s_u32 s%d, s%d" % ("lg" if GS is None else "lt", sCnt, sTkt))
                    e.i("s_cbranch_scc1 L_nt1")
                    e.i("s_mov_b64 exec, 1")
                    e.i("ds_write_b32 v%d, v%d offset:%d" % (vT2, vT3, TICKOFF))
                    e.i("s_mov_b64 exec, -1")
                    e.i("s_waitcnt lgkmcnt(0)")
                    e.label("L_nt1")
                if SCL and j == 20:
                    e.i("s_cmp_eq_u32 s%d, 0" % sBar)
                    e.i("s_cbranch_scc1 L_nsr")
                    e.i("ds_read_u16 v%d, v%d offset:%d" % (vVS, vSL, SCB))
                    e.i("ds_read_u16 v%d, v%d offset:%d" % (vVS + 1, vSL, SCB + 8192))
                    e.label("L_nsr")
                if j == 32:
                    if SCL:
                        e.i("s_waitcnt lgkmcnt(0)")
                    e.i("ds_read_b32 v%d, v%d offset:%d" % (vTk, vT2, TICKOFF))
            elif BAR and j % BAR == 0:
                e.i("s_barrier")
            if dyn_at is not None and j == dyn_at:
                e.i("v_mov_b32 v%d, 1" % vAtD)
                e.i("s_mov_b64 exec, 1")
                e.i("buffer_atomic_add v%d, v%d, s[%d:%d], s%d offen sc0" % (vAtD, vZero, sDBG, sDBG + 3, sQi))
                e.i("s_mov_b64 exec, -1")
                q.append(("A", 0))
            if j == 32:
                if STAMP == 2:
                    e.i("s_memrealtime s[96:97]")
                softmax()
                if not last and not DYN and FC is None:
                    issue_scales()
                    q.append(("S", 0))
                    q.append(("S", 1))
                e.i("s_waitcnt lgkmcnt(0)")
                if STAMP == 2:
                    e.i("s_mov_b32 m0, s98")
                    e.i("s_add_u32 s98, s98, 1")
                    e.i("s_and_b32 s98, s98, 63")
                    e.i("v_writelane_b32 v%d, s96, m0" % vStamp)
            idx = q.index(("L", j))
            n_after = len(q) - idx - 1
            assert n_after <= 63
            e.i("s_waitcnt vmcnt(%d)" % n_after)
            del q[:idx + 1]
            r = ring(j % R)
            for c in range(4 if not BW else 0):
                e.i("v_cvt_f32_i32 v%d, v%d" % (r + c, r + c))
            jj = j % 32
            g, seg = jj // 4, jj % 4
            for c in range(4 if not BW else 0):
                pr = "v[%d:%d]" % (r + (c & 2), r + (c & 2) + 1)
                b = c & 1
                sc = seg * 4 + c
                if j < 32:
                    if seg == 0 and c == 0:
                        e.i("v_pk_mul_f32 %s, %s, %s op_sel:[%d,0] op_sel_hi:[%d,1]" % (a(g), pr, qs(sc), b, b))
                    else:
                        e.i("v_pk_fma_f32 %s, %s, %s, %s op_sel:[%d,0,0] op_sel_hi:[%d,1,1]" % (a(g), pr, qs(sc), a(g), b, b))
                else:
                    e.i("v_pk_fma_f32 %s, %s, %s, %s op_sel:[%d,0,0] op_sel_hi:[%d,1,1]" % (o(sc), pr, a(g), o(sc), b, b))
            nj = j + R
            if nj < 64:
                issue_load(nj)
                q.append(("L", nj))
            elif not last:
                issue_load(nj - 64)
                q.append(("N", nj - 64))
            if j < 32 and seg == 3:
                if g % 2 == 1:
                    stepA(g - 1, g)
                if g % 4 == 3:
                    stepQ(g - 3, g - 1, sMask1, "quad_perm:[2,3,0,1]", A + 2 * (g - 3))
                if g == 7:
                    stepQ(0, 4, sMask0, "quad_perm:[1,0,3,2]", A)

    def body(last):
        q = [("L", j) for j in range(R)]
        steps(q, 0, 64, last)

    if GS is not None:
        e.i("v_mov_b32 v%d, 0" % vT2)
        e.i("s_mov_b32 s%d, 0" % sCnt)
        e.label("L_loop")
        q = [("L", j) for j in range(R)]
        steps(q, 0, 64 - R, False)
        e.i("s_add_u32 s%d, s%d, 1" % (sCnt, sCnt))
        e.i("s_add_u32 s%d, s%d, %d" % (sCur, sCur, RT))
        e.i("v_add_u32 v%d, %d, v%d" % (vSL, 2 * RT, vSL))
        e.i("s_cmp_lt_u32 s%d, %d" % (sCnt, NS))
        e.i("s_cbranch_scc1 L_noc")
        e.i("v_readfirstlane_b32 s%d, v%d" % (sT0, vTk))
        e.i("s_min_u32 s%d, s%d, 62" % (sT0, sT0))
        e.i("s_add_u32 s%d, s%d, 1" % (sT1, sT0))
        e.i("s_nop 3")
        e.i("v_readlane_b32 s%d, v%d, s%d" % (sD0, vTab, sT0))
        e.i("v_readlane_b32 s%d, v%d, s%d" % (sD1, vTab, sT1))
        e.i("s_add_u32 s%d, s%d, s%d" % (sD0, sD0, sWave))
        e.i("s_cmp_ge_u32 s%d, s%d" % (sD0, sD1))
        e.i("s_cbranch_scc1 L_last")
        e.i("s_lshr_b32 s%d, s%d, %d" % (sT0, sD0, DT.bit_length() - 1))
        e.i("s_lshl_b32 s%d, s%d, 12" % (sT0, sT0))
        e.i("s_and_b32 s%d, s%d, %d" % (sT1, sD0, DT - 1))
        e.i("s_lshl_b32 s%d, s%d, 6" % (sT1, sT1))
        e.i("s_add_u32 s%d, s%d, s%d" % (sCur, sT0, sT1))
        e.i("s_add_u32 s%d, s%d, %d" % (sCur, sCur, NS * RT))
        e.i("s_mov_b32 s%d, 4096" % sGstr)
        e.i("s_lshl_b32 s%d, s%d, 1" % (sSoff, sCur))
        issue_scales()
        e.label("L_noc")
        e.i("s_lshl_b32 s%d, s%d, 9" % (sKoff, sCur))
        e.i("s_lshl_b32 s%d, s%d, 9" % (sVoff, sCur))
        q2 = list(q)
        steps(q2, 64 - R, 64, False)
        e.i("s_branch L_loop")
        e.label("L_last")
        steps(q, 64 - R, 64, True)
    elif FC is not None:
        X = FC
        DB = 8 * NS * 512
        e.i("v_mov_b32 v%d, 0" % vT2)
        e.i("s_mov_b32 s%d, 0" % sCnt)
        e.label("L_loop")
        q = [("L", j) for j in range(R)]
        steps(q, 0, 64 - R, False)
        e.i("s_cmp_lg_u32 s%d, %d" % (sCnt, NS - 1))
        e.i("s_cbranch_scc1 L_noc")
        e.i("v_readfirstlane_b32 s%d, v%d" % (sT0, vTk))
        e.i("s_and_b32 s%d, s%d, 7" % (sT0, sT0))
        if FCV:
            e.i("s_and_b32 s%d, s2, 7" % sT0)
        if FCT is None:
            e.i("s_and_b32 s%d, s%d, 3" % (sT1, sT0))
            e.i("s_lshl_b32 s%d, s%d, 12" % (sT1, sT1))
            e.i("s_lshl_b32 s%d, s%d, 3" % (sD0, sWave))
            e.i("s_add_u32 s%d, s%d, s%d" % (sD0, sD0, sT1))
            e.i("s_add_u32 s%d, s%d, %d" % (sD0, sD0, NS * 512))
            e.i("s_add_u32 s%d, s%d, %d" % (sD1, sD0, 4 * 4096))
            e.i("s_cmp_lt_u32 s%d, %d" % (sWave, X))
            e.i("s_cselect_b32 s%d, %d, %d" % (sNT, NS + 2, NS + 1))
            e.i("s_cmp_lt_u32 s%d, %d" % (sWave, 8 - X))
            e.i("s_cselect_b32 s%d, %d, %d" % (sT1, NS + 1, NS))
            e.i("s_cmp_lt_u32 s%d, 4" % sT0)
            e.i("s_cselect_b32 s%d, s%d, s%d" % (sNT, sNT, sT1))
            e.i("s_add_u32 s%d, s%d, %d" % (sT1, sD1, 8 * X))
            e.i("s_cmp_lt_u32 s%d, 4" % sT0)
            e.i("s_cselect_b32 s%d, s%d, s%d" % (sD0, sD0, sT1))
        else:
            assert len(FCT) == 8 and sum(FCT) == 0 and all(-8 <= d <= 8 for d in FCT)
            ns = [8 + d for d in FCT]
            ps = [sum(ns[:k]) for k in range(8)]
            tn = sum(n << (8 * k) for k, n in enumerate(ns))
            tp = sum(p << (8 * k) for k, p in enumerate(ps))
            e.i("s_lshl_b32 s%d, s%d, 3" % (sT0, sT0))
            e.i("s_mov_b32 s%d, 0x%08x" % (sEx, tn & 0xffffffff))
            e.i("s_mov_b32 s%d, 0x%08x" % (sEx + 1, tn >> 32))
            e.i("s_lshr_b64 s[%d:%d], s[%d:%d], s%d" % (sEx, sEx + 1, sEx, sEx + 1, sT0))
            e.i("s_and_b32 s%d, s%d, 0xff" % (sT1, sEx))
            e.i("s_mov_b32 s%d, 0x%08x" % (sEx, tp & 0xffffffff))
            e.i("s_mov_b32 s%d, 0x%08x" % (sEx + 1, tp >> 32))
            e.i("s_lshr_b64 s[%d:%d], s[%d:%d], s%d" % (sEx, sEx + 1, sEx, sEx + 1, sT0))
            e.i("s_and_b32 s%d, s%d, 0xff" % (sT0, sEx))
            e.i("s_add_u32 s%d, s%d, s%d" % (sT0, sT0, sWave))
            e.i("s_lshr_b32 s%d, s%d, 3" % (sEx, sT0))
            e.i("s_lshl_b32 s%d, s%d, 12" % (sEx, sEx))
            e.i("s_and_b32 s%d, s%d, 7" % (sT0, sT0))
            e.i("s_lshl_b32 s%d, s%d, 3" % (sT0, sT0))
            e.i("s_add_u32 s%d, s%d, s%d" % (sD0, sEx, sT0))
            e.i("s_add_u32 s%d, s%d, %d" % (sD0, sD0, NS * 512))
            e.i("s_add_u32 s%d, s%d, 4096" % (sD1, sD0))
            e.i("s_mov_b32 s%d, %d" % (sNT, NS))
            e.i("s_cmp_lt_u32 s%d, s%d" % (sWave, sT1))
            e.i("s_addc_u32 s%d, s%d, 0" % (sNT, sNT))
            e.i("s_add_u32 s%d, s%d, 8" % (sT0, sWave))
            e.i("s_cmp_lt_u32 s%d, s%d" % (sT0, sT1))
            e.i("s_addc_u32 s%d, s%d, 0" % (sNT, sNT))
        e.label("L_noc")
        e.i("s_add_u32 s%d, s%d, 1" % (sCnt, sCnt))
        e.i("s_cmp_ge_u32 s%d, s%d" % (sCnt, sNT))
        e.i("s_cbranch_scc1 L_last")
        e.i("s_add_u32 s%d, s%d, 512" % (sCur, sCur))
        e.i("s_cmp_eq_u32 s%d, %d" % (sCnt, NS))
        e.i("s_cselect_b32 s%d, s%d, s%d" % (sCur, sD0, sCur))
        e.i("s_cmp_eq_u32 s%d, %d" % (sCnt, NS + 1))
        e.i("s_cselect_b32 s%d, s%d, s%d" % (sCur, sD1, sCur))
        e.i("s_lshl_b32 s%d, s%d, 9" % (sKoff, sCur))
        e.i("s_lshl_b32 s%d, s%d, 9" % (sVoff, sCur))
        e.i("s_lshl_b32 s%d, s%d, 1" % (sSoff, sCur))
        q2 = list(q)
        if SCL:
            e.i("v_add_u32 v%d, 1024, v%d" % (vSL, vSL))
            e.i("s_cmp_lt_u32 s%d, %d" % (sCnt, NS))
            e.i("s_cbranch_scc1 L_nsg")
            issue_scales()
            e.label("L_nsg")
        else:
            issue_scales()
            q2.append(("S", 0))
            q2.append(("S", 1))
        steps(q2, 64 - R, 64, False)
        e.i("s_branch L_loop")
        e.label("L_last")
        steps(q, 64 - R, 64, True)
    elif not DYN:
        e.label("L_loop")
        body(False)
        e.i("s_sub_u32 s%d, s%d, 1" % (sCnt, sCnt))
        e.i("s_cmp_lg_u32 s%d, 0" % sCnt)
        e.i("s_cbranch_scc1 L_loop")
        e.i("s_nop 4")
        body(True)
    else:
        vAtD, vZero = vT3, vLane
        vZero = vT2
        at = AT if AT is not None else max(64 - 2 * R, 0)
        e.i("v_mov_b32 v%d, 0" % vZero)
        e.label("L_loop")
        q = [("L", j) for j in range(R)]
        steps(q, 0, 64 - R, False, dyn_at=at)
        if ("A", 0) in q:
            idx = q.index(("A", 0))
            e.i("s_waitcnt vmcnt(%d)" % (len(q) - idx - 1))
            del q[:idx + 1]
        e.i("v_readfirstlane_b32 s%d, v%d" % (sNext, vAtD))
        e.i("s_add_u32 s%d, s%d, %d" % (sNext, sNext, WPG))
        e.i("s_cmp_ge_u32 s%d, 512" % sNext)
        e.i("s_cbranch_scc1 L_last")
        e.i("s_lshl_b32 s%d, s%d, 15" % (sKoff, sNext))
        e.i("s_lshl_b32 s%d, s%d, 15" % (sVoff, sNext))
        e.i("s_lshl_b32 s%d, s%d, 7" % (sSoff, sNext))
        q2 = list(q)
        issue_scales()
        q2.append(("S", 0))
        q2.append(("S", 1))
        steps(q2, 64 - R, 64, False)
        e.i("s_branch L_loop")
        e.label("L_last")
        steps(q, 64 - R, 64, True)

    if STAMP:
        e.i("s_memrealtime s[90:91]")
        e.i("s_getreg_b32 s92, hwreg(HW_REG_XCC_ID)")
        e.i("s_getreg_b32 s93, hwreg(HW_REG_HW_ID)")
        e.i("s_waitcnt lgkmcnt(0)")
        e.i("v_mov_b32 v%d, s88" % (A + 8))
        e.i("v_mov_b32 v%d, s90" % (A + 9))
        e.i("v_mov_b32 v%d, s92" % (A + 10))
        e.i("v_mov_b32 v%d, s93" % (A + 11))
        e.i("s_lshl_b32 s%d, s%d, 4" % (sT0, sGW))
        e.i("s_add_u32 s%d, s%d, %d" % (sT0, sT0, 8 << 20))
        e.i("v_mov_b32 v%d, 0" % (A + 12))
        e.i("buffer_store_dwordx4 v[%d:%d], v%d, s[%d:%d], s%d offen" % (A + 8, A + 11, A + 12, sWS, sWS + 3, sT0))
        if STAMP == 2:
            e.i("s_lshl_b32 s%d, s%d, 8" % (sT0, sGW))
            e.i("s_add_u32 s%d, s%d, %d" % (sT0, sT0, 9 << 20))
            e.i("v_lshlrev_b32 v%d, 2, v%d" % (A + 13, vLane))
            e.i("buffer_store_dword v%d, v%d, s[%d:%d], s%d offen" % (vStamp, A + 13, sWS, sWS + 3, sT0))
    e.i("v_permlane32_swap_b32 v%d, v%d" % (vL, vL + 1))
    e.i("v_permlane32_swap_b32 v%d, v%d" % (vZ, vZ + 1))
    e.i("v_add_f32 v%d, v%d, v%d" % (vL, vL, vL + 1))
    e.i("v_add_f32 v%d, v%d, v%d" % (vZ, vZ, vZ + 1))
    e.i("v_permlane16_swap_b32 v%d, v%d" % (vL, vZ))
    e.i("v_add_f32 v%d, v%d, v%d" % (vL, vL, vZ))
    for rr in (8, 4, 2, 1):
        e.i("v_add_f32_dpp v%d, v%d, v%d row_ror:%d row_mask:0xf bank_mask:0xf" % (vL, vL, vL, rr))
    e.i("v_readlane_b32 s%d, v%d, 0" % (sL0, vL))
    e.i("v_readlane_b32 s%d, v%d, 16" % (sZ0, vL))
    e.i("v_readlane_b32 s%d, v%d, 32" % (sL1, vL))
    e.i("v_readlane_b32 s%d, v%d, 48" % (sZ1, vL))
    for sc in range(16):
        e.i("v_permlane32_swap_b32 v%d, v%d" % (O + 2 * sc, O + 2 * sc + 1))
    for sc in range(16):
        e.i("v_add_f32 v%d, v%d, v%d" % (O + 2 * sc, O + 2 * sc, O + 2 * sc + 1))
    for sc in range(8):
        e.i("v_permlane16_swap_b32 v%d, v%d" % (O + 2 * sc, O + 2 * (sc + 8)))
    for sc in range(8):
        e.i("v_add_f32 v%d, v%d, v%d" % (O + 2 * sc, O + 2 * sc, O + 2 * (sc + 8)))
    for sc in range(4):
        e.i("v_add_f32_dpp v%d, v%d, v%d row_ror:8 row_mask:0xf bank_mask:0x3" % (A + sc, O + 2 * sc, O + 2 * sc))
    for sc in range(4):
        e.i("v_add_f32_dpp v%d, v%d, v%d row_ror:8 row_mask:0xf bank_mask:0xc" % (A + sc, O + 2 * (sc + 4), O + 2 * (sc + 4)))
    e.i("s_mov_b32 s%d, 0" % sEx)
    e.i("s_mov_b32 s%d, -1" % (sEx + 1))
    e.i("v_mov_b32 v%d, s%d" % (vT0, sZ0))
    e.i("v_mov_b32 v%d, s%d" % (vT1, sZ1))
    e.i("v_cndmask_b32 v%d, v%d, v%d, s[%d:%d]" % (vT0, vT0, vT1, sEx, sEx + 1))
    for sc in range(4):
        e.i("v_sub_f32 v%d, v%d, v%d" % (A + sc, A + sc, vT0))
    e.i("v_mov_b32 v%d, s%d" % (vT0, sC0))
    e.i("v_mov_b32 v%d, s%d" % (vT1, sC1))
    e.i("v_cndmask_b32 v%d, v%d, v%d, s[%d:%d]" % (vT0, vT0, vT1, sEx, sEx + 1))
    e.i("v_sub_f32 v%d, v%d, v%d" % (vP, vM, vT0))
    e.i("v_mov_b32 v%d, s%d" % (vT0, sL0))
    e.i("v_mov_b32 v%d, s%d" % (vT1, sL1))
    e.i("v_cndmask_b32 v%d, v%d, v%d, s[%d:%d]" % (vP + 1, vT0, vT1, sEx, sEx + 1))
    OB = WPW * 512
    MB = OB + WPW * 1024
    LDS = MB + WPW * 16 + (16 if FC is not None else 0) + (16384 if SCL else 0)
    e.i("s_lshl_b32 s%d, s%d, 10" % (sT0, sWave))
    e.i("v_lshlrev_b32 v%d, 4, v%d" % (vT2, vLane))
    e.i("v_add_u32 v%d, s%d, v%d" % (vT0, sT0, vT2))
    e.i("ds_write_b128 v%d, v[%d:%d] offset:%d" % (vT0, A, A + 3, OB))
    e.i("s_lshl_b32 s%d, s%d, 4" % (sT0, sWave))
    e.i("v_lshrrev_b32 v%d, 5, v%d" % (vT3, vLane))
    e.i("v_lshlrev_b32 v%d, 3, v%d" % (vT3, vT3))
    e.i("v_add_u32 v%d, s%d, v%d" % (vT1, sT0, vT3))
    e.i("ds_write_b64 v%d, v[%d:%d] offset:%d" % (vT1, vP, vP + 1, MB))
    e.i("s_waitcnt lgkmcnt(0)")
    if GS is None:
        e.i("s_barrier")
        e.i("s_cmp_lg_u32 s%d, 0" % sWave)
        e.i("s_cbranch_scc1 L_done1")
    else:
        e.i("v_mov_b32 v%d, 0" % vT0)
        e.i("v_mov_b32 v%d, 1" % vT1)
        e.i("s_mov_b64 exec, 1")
        e.i("ds_add_rtn_u32 v%d, v%d, v%d offset:%d" % (vT1, vT0, vT1, CNTOFF))
        e.i("s_mov_b64 exec, -1")
        e.i("s_waitcnt lgkmcnt(0)")
        e.i("v_readfirstlane_b32 s%d, v%d" % (sT0, vT1))
        e.i("s_cmp_lg_u32 s%d, %d" % (sT0, WPW - 1))
        e.i("s_cbranch_scc1 L_done1")
    assert WPW <= 16
    for w in range(WPW):
        e.i("ds_read_b64 v[%d:%d], v%d offset:%d" % (QS + 2 * w, QS + 2 * w + 1, vT3, MB + 16 * w))
    OT = O
    assert O + 4 * WPW <= NV
    for w in range(WPW):
        e.i("ds_read_b128 v[%d:%d], v%d offset:%d" % (OT + 4 * w, OT + 4 * w + 3, vT2, OB + 1024 * w))
    e.i("s_waitcnt lgkmcnt(0)")
    e.i("v_mov_b32 v%d, v%d" % (vT0, QS))
    for w in range(1, WPW):
        e.i("v_max_f32 v%d, v%d, v%d" % (vT0, vT0, QS + 2 * w))
    for w in range(WPW):
        e.i("v_sub_f32 v%d, v%d, v%d" % (QS + 2 * w, QS + 2 * w, vT0))
    for w in range(WPW):
        e.i("v_exp_f32 v%d, v%d" % (QS + 2 * w, QS + 2 * w))
    e.i("v_mul_f32 v%d, v%d, v%d" % (vT1, QS, QS + 1))
    for w in range(1, WPW):
        e.i("v_fmac_f32 v%d, v%d, v%d" % (vT1, QS + 2 * w, QS + 2 * w + 1))
    for c in range(4):
        e.i("v_mul_f32 v%d, v%d, v%d" % (OT + c, OT + c, QS))
    for w in range(1, WPW):
        for c in range(4):
            e.i("v_fmac_f32 v%d, v%d, v%d" % (OT + c, OT + 4 * w + c, QS + 2 * w))
    MLB = 32 * NSPLIT * 512
    e.i("s_lshl_b32 s%d, s%d, %d" % (sT0, sKVH, LOG_NSPLIT + 1))
    e.i("s_add_u32 s%d, s%d, s%d" % (sT0, sT0, sSplit))
    e.i("v_lshrrev_b32 v%d, 5, v%d" % (vT3, vLane))
    e.i("v_lshlrev_b32 v%d, %d, v%d" % (vT3, LOG_NSPLIT, vT3))
    e.i("v_add_u32 v%d, s%d, v%d" % (vT3, sT0, vT3))
    e.i("v_and_b32 v%d, 31, v%d" % (vT2, vLane))
    e.i("v_lshlrev_b32 v%d, 4, v%d" % (vT2, vT2))
    e.i("v_lshl_add_u32 v%d, v%d, 9, v%d" % (vT2, vT3, vT2))
    scf = " sc1" if FUSE else ""
    e.i("buffer_store_dwordx4 v[%d:%d], v%d, s[%d:%d], 0 offen%s" % (OT, OT + 3, vT2, sWS, sWS + 3, scf))
    e.i("v_lshlrev_b32 v%d, 3, v%d" % (vT3, vT3))
    e.i("s_mov_b32 s%d, %d" % (sT1, MLB))
    e.i("buffer_store_dwordx2 v[%d:%d], v%d, s[%d:%d], s%d offen%s" % (vT0, vT1, vT3, sWS, sWS + 3, sT1, scf))
    if FUSE:
        assert FC is not None and NSPLIT == 16
        vA, vB, vC = vP, vP + 1, vPP
        e.i("s_lshl_b32 s%d, s%d, 9" % (sT0, sSplit))
        e.i("v_subrev_u32 v%d, s%d, v%d" % (vB, sT0, vT2))
        e.i("s_lshl_b32 s%d, s%d, 3" % (sT0, sSplit))
        e.i("v_subrev_u32 v%d, s%d, v%d" % (vC, sT0, vT3))
        e.i("s_lshl_b32 s%d, s%d, 2" % (sT0, sKVH))
        e.i("s_add_u32 s%d, s%d, 128" % (sT0, sT0))
        e.i("v_mov_b32 v%d, 1" % vA)
        e.i("v_mov_b32 v%d, 0" % vM)
        e.i("s_waitcnt vmcnt(0)")
        e.i("s_mov_b64 exec, 1")
        e.i("buffer_atomic_add v%d, v%d, s[%d:%d], s%d offen sc0" % (vA, vM, sDBG, sDBG + 3, sT0))
        e.i("s_mov_b64 exec, -1")
        e.i("s_waitcnt vmcnt(0)")
        e.i("v_readfirstlane_b32 s%d, v%d" % (sT0, vA))
        e.i("s_cmp_lg_u32 s%d, %d" % (sT0, NSPLIT - 1))
        e.i("s_cbranch_scc1 L_done1")
        for t in range(NSPLIT):
            e.i("buffer_load_dwordx2 v[%d:%d], v%d, s[%d:%d], s%d offen offset:%d sc1" % (QS + 2 * t, QS + 2 * t + 1, vC, sWS, sWS + 3, sT1, 8 * t))
        e.i("s_mov_b32 s%d, 4096" % sT0)
        for t in range(NSPLIT):
            e.i("buffer_load_dwordx4 v[%d:%d], v%d, s[%d:%d], %s offen offset:%d sc1" % (RING + 4 * t, RING + 4 * t + 3, vB, sWS, sWS + 3, "0" if t < 8 else "s%d" % sT0, (t % 8) * 512))
        e.i("s_mov_b32 s%d, s%d" % (sK, pout))
        e.i("s_mov_b32 s%d, s%d" % (sK + 1, pout + 1))
        e.i("s_mov_b32 s%d, 8192" % (sK + 2))
        e.i("s_mov_b32 s%d, 0x00020000" % (sK + 3))
        e.i("s_lshl_b32 s%d, s%d, 9" % (sT0, sKVH))
        e.i("v_lshlrev_b32 v%d, 3, v%d" % (vT2, vLane))
        e.i("s_waitcnt vmcnt(%d)" % NSPLIT)
        e.i("v_mov_b32 v%d, v%d" % (vT0, QS))
        for w in range(1, NSPLIT):
            e.i("v_max_f32 v%d, v%d, v%d" % (vT0, vT0, QS + 2 * w))
        for w in range(NSPLIT):
            e.i("v_sub_f32 v%d, v%d, v%d" % (QS + 2 * w, QS + 2 * w, vT0))
        for w in range(NSPLIT):
            e.i("v_exp_f32 v%d, v%d" % (QS + 2 * w, QS + 2 * w))
        e.i("v_mul_f32 v%d, v%d, v%d" % (vT1, QS, QS + 1))
        for w in range(1, NSPLIT):
            e.i("v_fmac_f32 v%d, v%d, v%d" % (vT1, QS + 2 * w, QS + 2 * w + 1))
        e.i("v_rcp_f32 v%d, v%d" % (vT1, vT1))
        e.i("s_waitcnt vmcnt(0)")
        for c in range(4):
            e.i("v_mul_f32 v%d, v%d, v%d" % (RING + c, RING + c, QS))
        for w in range(1, NSPLIT):
            for c in range(4):
                e.i("v_fmac_f32 v%d, v%d, v%d" % (RING + c, RING + 4 * w + c, QS + 2 * w))
        for c in range(4):
            e.i("v_mul_f32 v%d, v%d, v%d" % (RING + c, RING + c, vT1))
        e.i("v_cvt_pk_bf16_f32 v%d, v%d, v%d" % (RING, RING, RING + 1))
        e.i("v_cvt_pk_bf16_f32 v%d, v%d, v%d" % (RING + 1, RING + 2, RING + 3))
        e.i("buffer_store_dwordx2 v[%d:%d], v%d, s[%d:%d], s%d offen" % (RING, RING + 1, vT2, sK, sK + 3, sT0))
    e.raw("L_done1:")
    e.i("s_endpgm")
    k1 = e.text()

    e = Emit()
    e.raw(".p2align 8")
    e.raw(".globl combine_kernel")
    e.raw(".type combine_kernel,@function")
    e.raw("combine_kernel:")
    e.i("s_cmp_ge_u32 s2, 32")
    e.i("s_cbranch_scc1 L_done2")
    e.i("s_load_dwordx2 s[4:5], s[0:1], 56")
    e.i("s_load_dwordx2 s[6:7], s[0:1], 72")
    e.i("v_lshlrev_b32 v1, 3, v0")
    e.i("s_waitcnt lgkmcnt(0)")
    e.i("s_mov_b32 s8, s4")
    e.i("s_mov_b32 s9, s5")
    e.i("s_mov_b32 s10, 8192")
    e.i("s_mov_b32 s11, 0x00020000")
    e.i("s_mov_b32 s12, s6")
    e.i("s_mov_b32 s13, s7")
    e.i("s_mov_b32 s14, %d" % (1 << 24))
    e.i("s_mov_b32 s15, 0x00020000")
    e.i("s_mul_i32 s16, s2, %d" % (NSPLIT * 8))
    e.i("s_add_u32 s16, s16, %d" % MLB)
    e.i("v_and_b32 v2, %d, v0" % (NSPLIT - 1))
    e.i("v_lshlrev_b32 v2, 3, v2")
    e.i("buffer_load_dwordx2 v[4:5], v2, s[12:15], s16 offen")
    e.i("s_mul_i32 s17, s2, %d" % (NSPLIT * 512))
    for t in range(NSPLIT):
        if t and t % 8 == 0:
            e.i("s_add_u32 s17, s17, 4096")
        e.i("buffer_load_dwordx2 v[%d:%d], v1, s[12:15], s17 offen offset:%d" % (10 + 2 * t, 11 + 2 * t, (t % 8) * 512))
    e.i("s_waitcnt vmcnt(%d)" % min(NSPLIT, 63))
    if NSPLIT == 64:
        pass
    e.i("v_mov_b32 v6, v4")
    e.i("v_mov_b32 v7, v4")
    e.i("v_permlane32_swap_b32 v6, v7")
    e.i("v_max_f32 v6, v6, v7")
    e.i("v_mov_b32 v7, v6")
    e.i("v_permlane16_swap_b32 v6, v7")
    e.i("v_max_f32 v6, v6, v7")
    for rr in (8, 4, 2, 1):
        e.i("v_max_f32_dpp v6, v6, v6 row_ror:%d row_mask:0xf bank_mask:0xf" % rr)
    e.i("v_sub_f32 v4, v4, v6")
    e.i("v_exp_f32 v4, v4")
    e.i("v_mul_f32 v5, v4, v5")
    if NSPLIT < 64:
        e.i("v_cmp_gt_u32 vcc, %d, v0" % NSPLIT)
        e.i("v_cndmask_b32 v5, 0, v5, vcc")
    e.i("v_mov_b32 v6, v5")
    e.i("v_mov_b32 v7, v5")
    e.i("v_permlane32_swap_b32 v6, v7")
    e.i("v_add_f32 v6, v6, v7")
    e.i("v_mov_b32 v7, v6")
    e.i("v_permlane16_swap_b32 v6, v7")
    e.i("v_add_f32 v6, v6, v7")
    for rr in (8, 4, 2, 1):
        e.i("v_add_f32_dpp v6, v6, v6 row_ror:%d row_mask:0xf bank_mask:0xf" % rr)
    e.i("v_rcp_f32 v7, v6")
    e.i("v_mov_b32 v8, 0")
    e.i("v_mov_b32 v9, 0")
    e.i("s_waitcnt vmcnt(0)")
    for t in range(NSPLIT):
        e.i("v_readlane_b32 s%d, v4, %d" % (20 + (t % 8), t))
        if t >= 3:
            tt = t - 3
            e.i("v_pk_fma_f32 v[8:9], v[%d:%d], s[%d:%d], v[8:9] op_sel:[0,%d,0] op_sel_hi:[1,%d,1]" % (
                10 + 2 * tt, 11 + 2 * tt, 20 + ((tt % 8) & ~1), 21 + ((tt % 8) & ~1), tt & 1, tt & 1))
    for tt in range(max(NSPLIT - 3, 0), NSPLIT):
        e.i("v_pk_fma_f32 v[8:9], v[%d:%d], s[%d:%d], v[8:9] op_sel:[0,%d,0] op_sel_hi:[1,%d,1]" % (
            10 + 2 * tt, 11 + 2 * tt, 20 + ((tt % 8) & ~1), 21 + ((tt % 8) & ~1), tt & 1, tt & 1))
    e.i("v_mul_f32 v8, v8, v7")
    e.i("v_mul_f32 v9, v9, v7")
    e.i("v_cvt_pk_bf16_f32 v8, v8, v9")
    e.i("v_lshlrev_b32 v1, 2, v0")
    e.i("s_lshl_b32 s16, s2, 8")
    e.i("buffer_store_dword v8, v1, s[8:11], s16 offen")
    e.raw("L_done2:")
    e.i("s_endpgm")
    k2 = e.text()
    NV2 = 10 + 2 * NSPLIT

    hdr = open("cdna_kernels/%s.s.ref" % NAME).read().split("; Override launch geometry")[0]
    out = hdr
    if FUSE == 1:
        out += "; @launch grid=(%d,1,1) block=(%d,1,1) lds=%d\n" % (NWG, WPW * 64, LDS)
    else:
        out += "; @launch kernel=%s_kernel grid=(%d,1,1) block=(%d,1,1) lds=%d\n" % (NAME, NWG, WPW * 64, LDS)
    if not NOK2 and not FUSE:
        out += "; @launch kernel=combine_kernel grid=(32,1,1) block=(64,1,1) lds=0\n"
    out += '.amdgcn_target "amdgcn-amd-amdhsa--gfx950"\n.text\n'
    out += ".globl %s_kernel\n.p2align 8\n.type %s_kernel,@function\n" % (NAME, NAME)
    out += k1 + (k2 if not FUSE else "")
    out += '.section .rodata,"a"\n'

    def kd(name, nv, ns):
        return (".p2align 6\n.amdhsa_kernel %s\n  .amdhsa_next_free_vgpr %d\n  .amdhsa_next_free_sgpr %d\n"
                "  .amdhsa_accum_offset %d\n  .amdhsa_group_segment_fixed_size 0\n  .amdhsa_kernarg_size 80\n"
                "  .amdhsa_user_sgpr_count 2\n  .amdhsa_user_sgpr_kernarg_segment_ptr 1\n"
                "  .amdhsa_system_sgpr_workgroup_id_x 1\n.end_amdhsa_kernel\n") % (name, nv, ns, (nv + 3) // 4 * 4)

    out += kd(NAME + "_kernel", VG, 96 if (STAMP != 2 and GS is None) else 100)
    if not FUSE:
        out += kd("combine_kernel", NV2, 40)
    return out


if __name__ == "__main__":
    ap = argparse.ArgumentParser()
    ap.add_argument("-R", type=int, default=16)
    ap.add_argument("--wpw", type=int, default=4)
    ap.add_argument("--tpw", type=int, default=512)
    ap.add_argument("--nt", type=int, default=1)
    ap.add_argument("--vg", type=int, default=None)
    ap.add_argument("--bw", type=int, default=0)
    ap.add_argument("--pol", default=None)
    ap.add_argument("--lay", type=int, default=0)
    ap.add_argument("--tiles", type=int, default=None)
    ap.add_argument("--nok2", type=int, default=0)
    ap.add_argument("--map", type=int, default=0)
    ap.add_argument("--stamp", type=int, default=0)
    ap.add_argument("--wgx", type=int, default=0)
    ap.add_argument("--dyn", type=int, default=0)
    ap.add_argument("--at", type=int, default=None)
    ap.add_argument("--dynws", type=int, default=0)
    ap.add_argument("--pat", default=None)
    ap.add_argument("--bar", type=int, default=0)
    ap.add_argument("--fc", type=int, default=None)
    ap.add_argument("--tk", type=int, default=5)
    ap.add_argument("--fcv", type=int, default=0)
    ap.add_argument("--fct", default=None)
    ap.add_argument("--nosc", type=int, default=0)
    ap.add_argument("--scl", type=int, default=0)
    ap.add_argument("--gs", default=None)
    ap.add_argument("--ns", type=int, default=6)
    ap.add_argument("--fuse", type=int, default=0)
    ap.add_argument("-o", default="cdna_kernels/%s.s" % NAME)
    args = ap.parse_args()
    s = gen(R=args.R, WPW=args.wpw, TPW=args.tpw, NT=bool(args.nt), VG=args.vg, BW=args.bw, POL=args.pol, LAY=args.lay, TILES=args.tiles, NOK2=args.nok2, MAP=args.map, STAMP=args.stamp, WGX=args.wgx, DYN=args.dyn, AT=args.at, DYNWS=args.dynws, PAT=tuple(int(x) for x in args.pat.split(',')) if args.pat else None, BAR=args.bar, FC=args.fc, TK=args.tk, FCV=args.fcv, FCT=[int(x) for x in args.fct.split(',')] if args.fct else None, NOSC=args.nosc, SCL=args.scl, GS=[int(x) for x in args.gs.split(',')] if args.gs else None, NSTAT=args.ns, FUSE=args.fuse)
    open(args.o, "w").write(s)
    print("wrote", args.o, len(s), "bytes")
```

```python
import re
import sys
import struct
import argparse

NAME = "standalone__kv_cache_quant_int4_int2_kv_with_per_channel_or_per_token_scales__decode"


def f2u(x):
    return struct.unpack("<I", struct.pack("<f", x))[0]


REG_RE = re.compile(r"\b([vs])(\d+)\b|\b([vs])\[(\d+):(\d+)\]|\b(vcc)\b")


def regs_of(op):
    out = set()
    for m in REG_RE.finditer(op):
        if m.group(1):
            out.add((m.group(1), int(m.group(2))))
        elif m.group(3):
            for r in range(int(m.group(4)), int(m.group(5)) + 1):
                out.add((m.group(3), r))
        else:
            out.add(("vcc", 0))
    return out


TRANS = ("v_exp_f32", "v_log_f32", "v_rcp_f32", "v_rsq_f32", "v_sqrt_f32")


class Emit:
    def __init__(self):
        self.lines = []
        self.hist = []

    def raw(self, s):
        self.lines.append(s)

    def label(self, s):
        self.i("s_nop 4")
        self.lines.append(s + ":")
        self.hist = []

    def comment(self, s):
        self.lines.append("    ; " + s)

    def i(self, text):
        text = text.strip()
        mn = text.split()[0]
        rest = text[len(mn):].strip()
        ops = [o.strip() for o in rest.split(",")] if rest else []
        clean = []
        for o in ops:
            clean.append(o.split()[0] if o.split() else o)
        ops = clean
        is_valu = mn.startswith("v_")
        is_vmem = mn.startswith("buffer_") or mn.startswith("global_")
        is_dpp = "_dpp" in mn
        is_perm = mn.startswith("v_permlane")
        is_rl = mn.startswith("v_readlane") or mn.startswith("v_readfirstlane")
        writes, reads = set(), set()
        if is_valu:
            if is_perm:
                writes = regs_of(ops[0]) | regs_of(ops[1])
                reads = set(writes)
            else:
                writes = regs_of(ops[0])
                for o in ops[1:]:
                    reads |= regs_of(o)
                if "fmac" in mn or is_dpp:
                    reads |= regs_of(ops[0])
                if mn.startswith("v_cndmask") and len(ops) == 3:
                    reads.add(("vcc", 0))
        elif is_vmem:
            for o in ops:
                reads |= regs_of(o)
        elif mn.startswith("ds_"):
            for o in ops:
                reads |= regs_of(o)
        else:
            for o in ops:
                reads |= regs_of(o)
        need = 0
        for dist, h in enumerate(reversed(self.hist)):
            req = 0
            if h["valu"]:
                vw = {r for r in h["writes"] if r[0] == "v"}
                sw = {r for r in h["writes"] if r[0] in ("s", "vcc")}
                if (is_dpp or is_perm) and (vw & reads):
                    req = max(req, 2)
                if is_rl and (vw & reads):
                    req = max(req, 1)
                if is_valu and (sw & reads):
                    req = max(req, 4 if is_rl else 2)
                if is_vmem and (sw & reads):
                    req = max(req, 5)
                if (not is_valu) and (not is_vmem) and (sw & reads):
                    req = max(req, 4)
                if h["trans"] and is_valu and (vw & reads):
                    req = max(req, 1)
            if h["wide_store"] and is_valu and (h["reads"] & writes):
                req = max(req, 2)
            need = max(need, req - h["after"])
        if need > 0:
            self._push("s_nop %d" % (need - 1), need, dict(valu=False, writes=set(), reads=set(), trans=False, wide_store=False))
        wide = is_vmem and "store" in mn and ("x4" in mn or "x3" in mn)
        self._push(text, 1, dict(valu=is_valu, writes=writes, reads=reads, trans=mn.startswith(TRANS), wide_store=wide))

    def _push(self, text, states, info):
        if text.startswith("s_nop"):
            states = int(text.split()[1]) + 1
        for h in self.hist:
            h["after"] += states
        info["after"] = 0
        self.hist.append(info)
        self.hist = [h for h in self.hist if h["after"] < 8]
        self.lines.append("    " + text)

    def text(self):
        return "\n".join(self.lines) + "\n"


def gen(R=16, WPW=4, BAR=8, GS=None, NS=12, DEP=None, PRO=0, TOUCH=0, ILV=0, STAMP=0, LIST=1, PD=None):
    TPW = 4096 // WPW
    NWG = 256
    NSPLIT = 16
    LOG_WPW = WPW.bit_length() - 1
    LOG_NSPLIT = 4
    CSCALE = (128.0 ** -0.5) * 1.4426950408889634
    ntf = " nt"
    assert 64 % R == 0 and WPW in (4, 8) and BAR in (2, 4, 8, 16)
    if DEP is None:
        DEP = [min(R, 16)] * 64
    elif len(DEP) == 1:
        DEP = DEP * 64
    U = [j + DEP[j] + 1 for j in range(64)]
    assert all(U[j] >= U[j - 1] for j in range(1, 64)) and U[0] >= U[63] - 64 and all(1 <= d <= R for d in DEP)
    D0 = U[63] - 64
    JD = min(j for j in range(64) if U[j] > 64)
    assert JD >= 34 and U[JD - 1] == 64
    assert max(DEP[:10]) <= 24
    JP = 0
    if PRO == 2:
        assert PD is not None and D0 < PD <= min(R, 32)
        JP = min(j for j in range(64) if U[j] > PD)
        assert U[JP - 1] == PD and JP % BAR == 0 and JP <= 16
    else:
        PD = D0

    e = Emit()
    vLoff, vSoff, vLdsW, vLdsR = 0, 1, 2, 3
    vM = 4
    vT0, vT1, vT2 = 6, 7, 5
    vL = 8
    vZ = 10
    vVS = 12
    vP = 14
    vPP = 16
    vLane = 18
    vT3 = 19
    QS = 20
    O = 52
    A = 84
    RING = 100
    NV = RING + 4 * R
    vStamp = NV
    if STAMP >= 2:
        NV += 1
    vTk, vSL, vTab, vSoffD, vI16, vTok2 = range(NV, NV + 6)
    NV += 6
    VG = max(NV, RING + 64)
    DT = (TPW // 64 - NS) * WPW
    assert DT & (DT - 1) == 0
    assert sum(GS) == 8 * DT and all(1 <= x <= WPW for x in GS) and all(GS[k] >= GS[k + 1] for k in range(len(GS) - 1)) and len(GS) <= 60
    st = [0]
    for n_ in GS:
        st.append(st[-1] + n_)
    if ILV:
        assert all(st[k] // DT == (st[k + 1] - 1) // DT for k in range(len(GS))), "chunk straddles a region"
    TICKOFF = WPW * 512 + WPW * 1024 + WPW * 16
    SCB = TICKOFF + 16
    CNTOFF = TICKOFF + 4
    sGstr = 96 if STAMP < 2 else 99
    RT = 64 * WPW
    GSTR = 8 * WPW
    NSL = 8 // WPW

    def qs(sc):
        return "v[%d:%d]" % (QS + 2 * sc, QS + 2 * sc + 1)

    def o(sc):
        return "v[%d:%d]" % (O + 2 * sc, O + 2 * sc + 1)

    def a(i):
        return "v[%d:%d]" % (A + 2 * i, A + 2 * i + 1)

    def ring(slot):
        return RING + 4 * slot

    sK, sV, sVS, sVZ = 8, 12, 16, 20
    sQ, sKS, sKZ, sWS = 24, 28, 32, 36
    sKoff, sVoff, sSoff, sCnt = 40, 41, 42, 43
    sMask1, sMask0 = 44, 46
    sM0, sM1 = 48, 49
    sF = 50
    sC0, sC1 = 52, 53
    sWave, sGW, sKVH, sRB, sT0, sT1 = 54, 55, 56, 57, 58, 59
    sPtr = 60
    sL0, sZ0, sL1, sZ1 = 80, 81, 82, 83
    sSplit = 84
    sEx = 86
    sQi = 94
    sDBG = 4
    sCur, sTkt, sD0, sD1, sBar = 95, 85, 91, 92, 93

    def stamp3():
        if STAMP == 3:
            e.i("s_memrealtime s[96:97]")
            e.i("s_waitcnt lgkmcnt(0)")
            e.i("s_mov_b32 m0, s98")
            e.i("s_add_u32 s98, s98, 1")
            e.i("s_min_u32 s98, s98, 63")
            e.i("v_writelane_b32 v%d, s96, m0" % vStamp)

    def issue_load(j):
        r = ring(j % R)
        jj = j % 32
        seg = jj % 4
        srd, so = (sK, sKoff) if j < 32 else (sV, sVoff)
        e.i("buffer_load_dwordx4 v[%d:%d], v%d, s[%d:%d], s%d offen offset:%d%s" % (r, r + 3, vLoff, srd, srd + 3, so, seg * 128, ntf))
        if seg == 3:
            e.i("s_add_u32 s%d, s%d, s%d" % (so, so, sGstr))

    pq, pqk, pqv, pks, pkz, pvs, pvz, pout, pdbg, pws = [sPtr + 2 * k for k in range(10)]

    e.raw("%s_kernel:" % NAME)
    e.i("s_cmp_ge_u32 s2, %d" % NWG)
    e.i("s_cbranch_scc1 L_done1")
    if STAMP:
        e.i("s_memrealtime s[88:89]")
    e.i("s_load_dwordx16 s[%d:%d], s[0:1], 0" % (sPtr, sPtr + 15))
    e.i("s_load_dwordx4 s[%d:%d], s[0:1], 64" % (sPtr + 16, sPtr + 19))
    e.i("v_lshrrev_b32 v%d, 6, v0" % vT0)
    e.i("v_and_b32 v%d, 63, v0" % vLane)
    e.i("v_readfirstlane_b32 s%d, v%d" % (sWave, vT0))
    e.i("v_lshrrev_b32 v%d, 3, v%d" % (vT0, vLane))
    e.i("v_and_b32 v%d, 7, v%d" % (vT1, vLane))
    e.i("v_lshlrev_b32 v%d, 9, v%d" % (vLoff, vT0))
    e.i("v_lshl_add_u32 v%d, v%d, 4, v%d" % (vLoff, vT1, vLoff))
    e.i("s_lshr_b32 s%d, s2, 3" % sQi)
    e.i("s_lshl_b32 s%d, s%d, 24" % (sRB, sQi))
    e.i("s_and_b32 s%d, s2, 7" % sT0)
    e.i("s_lshl_b32 s%d, s%d, 12" % (sT0, sT0))
    e.i("s_lshl_b32 s%d, s%d, 3" % (sCur, sWave))
    e.i("s_add_u32 s%d, s%d, s%d" % (sCur, sCur, sT0))
    e.i("s_lshl_b32 s%d, s%d, 9" % (sKoff, sCur))
    e.i("s_lshl_b32 s%d, s%d, 9" % (sVoff, sCur))
    e.i("s_mov_b32 s%d, %d" % (sGstr, GSTR * 512))
    for srd in (sK, sV):
        e.i("s_mov_b32 s%d, %d" % (srd + 2, 32768 * 512))
        e.i("s_mov_b32 s%d, 0x00020000" % (srd + 3))

    def lane_rest():
        e.i("v_lshrrev_b32 v%d, 2, v%d" % (vT2, vT1))
        e.i("v_and_b32 v%d, 2, v%d" % (vT3, vT1))
        e.i("v_add_u32 v%d, v%d, v%d" % (vT2, vT2, vT3))
        e.i("v_and_b32 v%d, 1, v%d" % (vT3, vT1))
        e.i("v_lshl_add_u32 v%d, v%d, 2, v%d" % (vT2, vT3, vT2))
        e.i("v_lshl_add_u32 v%d, v%d, %d, v%d" % (vSoff, vT2, GSTR.bit_length() - 1, vT0))
        e.i("v_lshlrev_b32 v%d, 1, v%d" % (vSoff, vSoff))
        e.i("v_lshlrev_b32 v%d, 4, v%d" % (vI16, vT2))
        e.i("v_lshlrev_b32 v%d, 1, v%d" % (vTok2, vT0))
        e.i("v_add_u32 v%d, v%d, v%d" % (vSoffD, vI16, vTok2))
        e.i("s_lshl_b32 s%d, s%d, 9" % (sT0, sWave))
        e.i("v_lshlrev_b32 v%d, 6, v%d" % (vLdsR, vT0))
        e.i("v_add_u32 v%d, s%d, v%d" % (vLdsR, sT0, vLdsR))
        e.i("v_lshl_add_u32 v%d, v%d, 3, v%d" % (vLdsW, vT2, vLdsR))
        e.i("s_mov_b32 s%d, 0xcccccccc" % sMask1)
        e.i("s_mov_b32 s%d, 0xcccccccc" % (sMask1 + 1))
        e.i("s_mov_b32 s%d, 0xaaaaaaaa" % sMask0)
        e.i("s_mov_b32 s%d, 0xaaaaaaaa" % (sMask0 + 1))
        e.i("s_lshl_b32 s%d, s2, %d" % (sGW, LOG_WPW))
        e.i("s_add_u32 s%d, s%d, s%d" % (sGW, sGW, sWave))
        e.i("s_lshr_b32 s%d, s2, 4" % sKVH)
        e.i("s_and_b32 s%d, s2, %d" % (sSplit, NSPLIT - 1))
        e.i("s_cmp_eq_u32 s%d, 0" % sWave)
        e.i("s_cselect_b32 s%d, %d, 1000" % (sTkt, NS - 1))
        e.i("v_lshlrev_b32 v%d, 3, v%d" % (vT3, vT1))
        e.i("v_lshlrev_b32 v%d, 4, v%d" % (vT0, vLane))
        for srd, n in ((sVS, 65536), (sVZ, 65536), (sQ, 8192), (sKS, 8192), (sKZ, 8192), (sWS, 1 << 24), (sDBG, 256)):
            e.i("s_mov_b32 s%d, %d" % (srd + 2, n))
            e.i("s_mov_b32 s%d, 0x00020000" % (srd + 3))

    lane_rest()
    e.i("s_waitcnt lgkmcnt(0)")
    if STAMP >= 2:
        e.i("s_mov_b32 s98, 0")
        e.i("v_mov_b32 v%d, 0" % vStamp)
    stamp3()

    def kv_srd():
        for srd, p in ((sK, pqk), (sV, pqv)):
            e.i("s_add_u32 s%d, s%d, s%d" % (srd, p, sRB))
            e.i("s_addc_u32 s%d, s%d, 0" % (srd + 1, p + 1))

    def small_srd():
        e.i("s_lshl_b32 s%d, s%d, 16" % (sT0, sQi))
        for srd, p in ((sVS, pvs), (sVZ, pvz)):
            e.i("s_add_u32 s%d, s%d, s%d" % (srd, p, sT0))
            e.i("s_addc_u32 s%d, s%d, 0" % (srd + 1, p + 1))
        for srd, p in ((sQ, pq), (sKS, pks), (sKZ, pkz), (sWS, pws), (sDBG, pdbg)):
            e.i("s_mov_b32 s%d, s%d" % (srd, p))
            e.i("s_mov_b32 s%d, s%d" % (srd + 1, p + 1))

    def small_loads():
        e.i("s_lshl_b32 s%d, s%d, 9" % (sT0, sKVH))
        e.i("s_lshl_b32 s%d, s%d, 8" % (sT1, sQi))
        order = [("q", 0, 0), ("ks", 0, 0), ("kz", 0, 0)] + [("q", h, s_) for h in range(2) for s_ in range(4) if (h, s_) != (0, 0)] + [("ks", 0, s_) for s_ in range(1, 4)] + [("kz", 0, s_) for s_ in range(1, 4)]
        for kind, h, seg in order:
            if kind == "q":
                r = O + (h * 4 + seg) * 2
                e.i("buffer_load_dwordx2 v[%d:%d], v%d, s[%d:%d], s%d offen offset:%d" % (r, r + 1, vT3, sQ, sQ + 3, sT0, h * 256 + seg * 64))
            elif kind == "ks":
                r = O + 16 + seg * 2
                e.i("buffer_load_dwordx2 v[%d:%d], v%d, s[%d:%d], s%d offen offset:%d" % (r, r + 1, vT3, sKS, sKS + 3, sT1, seg * 64))
            else:
                r = O + 24 + seg * 2
                e.i("buffer_load_dwordx2 v[%d:%d], v%d, s[%d:%d], s%d offen offset:%d" % (r, r + 1, vT3, sKZ, sKZ + 3, sT1, seg * 64))

    def scale_loads():
        e.i("s_and_b32 s%d, s2, 7" % sT0)
        e.i("s_lshl_b32 s%d, s%d, 13" % (sT0, sT0))
        e.i("s_mul_i32 s%d, s%d, %d" % (sT1, sWave, 1024 * NSL))
        e.i("s_add_u32 s%d, s%d, s%d" % (sT0, sT0, sT1))
        for k_ in range(NSL):
            e.i("buffer_load_dwordx4 v[%d:%d], v%d, s[%d:%d], s%d offen offset:%d" % (QS + 8 * k_, QS + 8 * k_ + 3, vT0, sVS, sVS + 3, sT0, 1024 * k_))
            e.i("buffer_load_dwordx4 v[%d:%d], v%d, s[%d:%d], s%d offen offset:%d" % (QS + 8 * k_ + 4, QS + 8 * k_ + 7, vT0, sVZ, sVZ + 3, sT0, 1024 * k_))
        e.i("v_add_u32 v%d, s%d, v%d" % (vT1, sT1, vT0))
        e.i("s_lshl_b32 s%d, s%d, 4" % (sT1, sWave))
        e.i("v_add_u32 v%d, s%d, v%d" % (vSL, sT1, vSoff))

    def touch():
        if TOUCH == 1:
            e.i("buffer_load_dword v%d, v%d, s[%d:%d], s%d offen%s" % (vP, vLoff, sV, sV + 3, sVoff, ntf))

    kv_srd()
    if TOUCH == 9:
        e.i("s_mov_b64 exec, 1")
        e.i("buffer_load_dword v%d, v%d, s[%d:%d], s%d offen%s" % (vP, vLoff, sK, sK + 3, sKoff, ntf))
        e.i("s_waitcnt vmcnt(0)")
        stamp3()
        e.i("buffer_load_dword v%d, v%d, s[%d:%d], s%d offen%s" % (vP, vLoff, sV, sV + 3, sVoff, ntf))
        e.i("s_waitcnt vmcnt(0)")
        stamp3()
        e.i("buffer_load_dword v%d, v%d, s[%d:%d], s%d offen offset:2048%s" % (vP, vLoff, sK, sK + 3, sKoff, ntf))
        e.i("s_waitcnt vmcnt(0)")
        stamp3()
        e.i("s_add_u32 s%d, s%d, %d" % (sT0, sKoff, 1 << 20))
        e.i("buffer_load_dword v%d, v%d, s[%d:%d], s%d offen%s" % (vP, vLoff, sK, sK + 3, sT0, ntf))
        e.i("s_waitcnt vmcnt(0)")
        stamp3()
        e.i("s_add_u32 s%d, s%d, %d" % (sT0, sKoff, 1 << 16))
        e.i("buffer_load_dword v%d, v%d, s[%d:%d], s%d offen%s" % (vP, vLoff, sK, sK + 3, sT0, ntf))
        e.i("s_waitcnt vmcnt(0)")
        stamp3()
        e.i("s_xor_b32 s%d, s%d, %d" % (sT0, sKoff, 1 << 21))
        e.i("buffer_load_dword v%d, v%d, s[%d:%d], s%d offen offset:1024%s" % (vP, vLoff, sK, sK + 3, sT0, ntf))
        e.i("s_waitcnt vmcnt(0)")
        stamp3()
        e.i("s_mov_b64 exec, -1")
    if PRO == 0:
        small_srd()
        small_loads()
        stamp3()
        scale_loads()
        touch()
        stamp3()
        for j in range(D0):
            issue_load(j)
        after = D0
    else:
        N1 = min(PD, 16)
        for j in range(N1):
            issue_load(j)
            if j == 0:
                touch()
        stamp3()
        small_srd()
        small_loads()
        scale_loads()
        stamp3()
        for j in range(N1, PD):
            issue_load(j)
        after = PD - N1
    stamp3()
    e.i("s_lshl_b32 s%d, s%d, 2" % (sQi, sQi))
    e.i("v_mov_b32 v%d, %d" % (vTab, st[-1]))
    for k_, v_ in enumerate(st[:-1]):
        if v_ <= 64:
            e.i("v_writelane_b32 v%d, %d, %d" % (vTab, v_, k_))
        else:
            e.i("s_mov_b32 s%d, %d" % (sT0, v_))
            e.i("v_writelane_b32 v%d, s%d, %d" % (vTab, sT0, k_))
    e.i("v_mov_b32 v%d, 0" % vT2)
    e.i("ds_write_b32 v%d, v%d offset:%d" % (vT2, vT2, CNTOFF))
    for r in (vL, vL + 1, vZ, vZ + 1):
        e.i("v_mov_b32 v%d, 0" % r)
    e.i("v_mov_b32 v%d, 0x%08x" % (vM, f2u(-3.0e38)))
    e.i("s_mov_b32 s%d, 0" % sCnt)
    e.i("s_mov_b32 s%d, 1" % sBar)
    e.i("s_mov_b32 s%d, 0x%08x" % (sT0, f2u(CSCALE)))
    stamp3()
    e.i("s_waitcnt vmcnt(%d)" % after)
    stamp3()
    for k_ in range(NSL):
        e.i("ds_write_b128 v%d, v[%d:%d] offset:%d" % (vT1, QS + 8 * k_, QS + 8 * k_ + 3, SCB + 1024 * k_))
        e.i("ds_write_b128 v%d, v[%d:%d] offset:%d" % (vT1, QS + 8 * k_ + 4, QS + 8 * k_ + 7, SCB + 8192 + 1024 * k_))
    for seg in range(4):
        for half in range(2):
            src = O + 16 + seg * 2 + half
            d0 = A + seg * 4 + half * 2
            e.i("v_lshlrev_b32 v%d, 16, v%d" % (d0, src))
            e.i("v_and_b32 v%d, 0xffff0000, v%d" % (d0 + 1, src))
    for k in range(16):
        e.i("v_mul_f32 v%d, s%d, v%d" % (A + k, sT0, A + k))
    e.i("s_waitcnt lgkmcnt(0)")
    for h in range(2):
        for seg in range(4):
            for half in range(2):
                src = O + (h * 4 + seg) * 2 + half
                sc0 = seg * 4 + half * 2
                e.i("v_lshlrev_b32 v%d, 16, v%d" % (QS + 2 * sc0 + h, src))
                e.i("v_and_b32 v%d, 0xffff0000, v%d" % (QS + 2 * (sc0 + 1) + h, src))
    for sc in range(16):
        for h in range(2):
            e.i("v_mul_f32 v%d, v%d, v%d" % (QS + 2 * sc + h, QS + 2 * sc + h, A + sc))
    for seg in range(4):
        for half in range(2):
            src = O + 24 + seg * 2 + half
            d0 = A + seg * 4 + half * 2
            e.i("v_lshlrev_b32 v%d, 16, v%d" % (d0, src))
            e.i("v_and_b32 v%d, 0xffff0000, v%d" % (d0 + 1, src))
    for h in range(2):
        t = vT0 + h
        e.i("v_mul_f32 v%d, v%d, v%d" % (t, QS + h, A))
        for sc in range(1, 16):
            e.i("v_fmac_f32 v%d, v%d, v%d" % (t, QS + 2 * sc + h, A + sc))
    for mod in ("quad_perm:[1,0,3,2]", "quad_perm:[2,3,0,1]", "row_half_mirror"):
        for h in range(2):
            t = vT0 + h
            e.i("v_add_f32_dpp v%d, v%d, v%d %s row_mask:0xf bank_mask:0xf" % (t, t, t, mod))
    e.i("v_readfirstlane_b32 s%d, v%d" % (sC0, vT0))
    e.i("v_readfirstlane_b32 s%d, v%d" % (sC1, vT1))
    for k in range(32):
        e.i("v_mov_b32 v%d, 0" % (O + k))
    FUSE = 1
    def stepA(x, y):
        for k in range(2):
            e.i("v_add_f32_dpp v%d, v%d, v%d row_half_mirror row_mask:0xf bank_mask:0x5" % (A + 2 * x + k, A + 2 * x + k, A + 2 * x + k))
        for k in range(2):
            e.i("v_add_f32_dpp v%d, v%d, v%d row_half_mirror row_mask:0xf bank_mask:0xa" % (A + 2 * x + k, A + 2 * y + k, A + 2 * y + k))

    def stepQ(x, y, mask, perm, out):
        for k in range(2):
            X, Y = A + 2 * x + k, A + 2 * y + k
            t = vT0 + k
            e.i("v_cndmask_b32 v%d, v%d, v%d, s[%d:%d]" % (t, Y, X, mask, mask + 1))
            e.i("v_cndmask_b32 v%d, v%d, v%d, s[%d:%d]" % (Y, X, Y, mask, mask + 1))
        for k in range(2):
            Y = A + 2 * y + k
            t = vT0 + k
            e.i("v_add_f32_dpp v%d, v%d, v%d %s row_mask:0xf bank_mask:0xf" % (out + k, t, Y, perm))

    def softmax():
        S0, S1 = A, A + 1
        e.i("v_mov_b32 v%d, v%d" % (vT0, S0))
        e.i("v_mov_b32 v%d, v%d" % (vT1, S1))
        e.i("v_lshlrev_b32 v%d, 16, v%d" % (vVS, vVS))
        e.i("v_lshlrev_b32 v%d, 16, v%d" % (vVS + 1, vVS + 1))
        e.i("v_permlane32_swap_b32 v%d, v%d" % (vT0, vT1))
        e.i("v_max_f32 v%d, v%d, v%d" % (vT0, vT0, vT1))
        e.i("v_mov_b32 v%d, v%d" % (vT1, vT0))
        e.i("v_permlane16_swap_b32 v%d, v%d" % (vT0, vT1))
        e.i("v_max_f32 v%d, v%d, v%d" % (vT0, vT0, vT1))
        for rr in (8, 4, 2, 1):
            e.i("v_max_f32_dpp v%d, v%d, v%d row_ror:%d row_mask:0xf bank_mask:0xf" % (vT0, vT0, vT0, rr))
        e.i("v_max_f32 v%d, v%d, v%d" % (vT0, vT0, vM))
        e.i("v_sub_f32 v%d, v%d, v%d" % (vT1, vM, vT0))
        e.i("v_exp_f32 v%d, v%d" % (vT1, vT1))
        e.i("v_mov_b32 v%d, v%d" % (vM, vT0))
        e.i("v_readlane_b32 s%d, v%d, 0" % (sM0, vT0))
        e.i("v_readlane_b32 s%d, v%d, 32" % (sM1, vT0))
        e.i("v_readlane_b32 s%d, v%d, 0" % (sF, vT1))
        e.i("v_readlane_b32 s%d, v%d, 32" % (sF + 1, vT1))
        e.i("v_subrev_f32 v%d, s%d, v%d" % (vP, sM0, S0))
        e.i("v_subrev_f32 v%d, s%d, v%d" % (vP + 1, sM1, S1))
        e.i("v_exp_f32 v%d, v%d" % (vP, vP))
        e.i("v_exp_f32 v%d, v%d" % (vP + 1, vP + 1))
        P = "v[%d:%d]" % (vP, vP + 1)
        PP = "v[%d:%d]" % (vPP, vPP + 1)
        L = "v[%d:%d]" % (vL, vL + 1)
        Z = "v[%d:%d]" % (vZ, vZ + 1)
        VS = "v[%d:%d]" % (vVS, vVS + 1)
        F = "s[%d:%d]" % (sF, sF + 1)
        e.i("v_pk_mul_f32 %s, %s, %s" % (Z, Z, F))
        e.i("v_pk_mul_f32 %s, %s, %s op_sel:[0,0] op_sel_hi:[1,0]" % (PP, P, VS))
        e.i("v_pk_fma_f32 %s, %s, %s, %s" % (L, L, F, P))
        e.i("ds_write_b64 v%d, %s" % (vLdsW, PP))
        e.i("v_pk_fma_f32 %s, %s, %s, %s op_sel:[0,1,0] op_sel_hi:[1,1,1]" % (Z, PP, VS, Z))
        for k in range(4):
            e.i("ds_read_b128 v[%d:%d], v%d offset:%d" % (A + 4 * k, A + 4 * k + 3, vLdsR, 16 * k))
        for sc in range(16):
            e.i("v_pk_mul_f32 %s, %s, %s" % (o(sc), o(sc), F))


    def steps(q, j0, j1, last, peel=False):
        for j in range(j0, j1):
            if j == JP and JP and not peel:
                e.label("L_mid")
            if j == 0 and not peel:
                e.i("s_cmp_lt_u32 s%d, %d" % (sCnt, NS))
                e.i("s_cselect_b32 s%d, 1, 0" % sBar)
            if j % BAR == 0:
                e.i("s_barrier")
            if j == 0 and not peel:
                e.i("s_cmp_lt_u32 s%d, s%d" % (sCnt, sTkt))
                e.i("s_cbranch_scc1 L_nt0")
                e.i("v_mov_b32 v%d, 1" % vT3)
                e.i("s_mov_b64 exec, 1")
                e.i("buffer_atomic_add v%d, v%d, s[%d:%d], s%d offen sc0" % (vT3, vT2, sDBG, sDBG + 3, sQi))
                e.i("s_mov_b64 exec, -1")
                e.label("L_nt0")
            if j == 26:
                e.i("s_cmp_lt_u32 s%d, s%d" % (sCnt, sTkt))
                e.i("s_cbranch_scc1 L_nt1")
                e.i("s_mov_b64 exec, 1")
                e.i("ds_write_b32 v%d, v%d offset:%d" % (vT2, vT3, TICKOFF))
                e.i("s_mov_b64 exec, -1")
                e.i("s_waitcnt lgkmcnt(0)")
                e.label("L_nt1")
            if j == 20:
                e.i("s_cmp_eq_u32 s%d, 0" % sBar)
                e.i("s_cbranch_scc1 L_nsr")
                e.i("ds_read_u16 v%d, v%d offset:%d" % (vVS, vSL, SCB))
                e.i("ds_read_u16 v%d, v%d offset:%d" % (vVS + 1, vSL, SCB + 8192))
                e.label("L_nsr")
            if j == 32:
                e.i("s_waitcnt lgkmcnt(0)")
                e.i("ds_read_b32 v%d, v%d offset:%d" % (vTk, vT2, TICKOFF))
                if STAMP == 2:
                    e.i("s_memrealtime s[96:97]")
                softmax()
                e.i("s_waitcnt lgkmcnt(0)")
                if STAMP == 2:
                    e.i("s_mov_b32 m0, s98")
                    e.i("s_add_u32 s98, s98, 1")
                    e.i("s_and_b32 s98, s98, 63")
                    e.i("v_writelane_b32 v%d, s96, m0" % vStamp)
            if j % 8 == 0:
                stamp3()
            idx = q.index(("L", j))
            n_after = len(q) - idx - 1
            assert n_after <= 63
            e.i("s_waitcnt vmcnt(%d)" % n_after)
            del q[:idx + 1]
            r = ring(j % R)
            rng_ = list(range(U[j - 1] if j else D0, U[j])) if not peel else []

            def issue_n(nj):
                if nj < 64:
                    issue_load(nj)
                    q.append(("L", nj))
                elif not last:
                    issue_load(nj - 64)
                    q.append(("N", nj - 64))
            for nj in rng_:
                if nj < j + R:
                    issue_n(nj)
            for c in range(4):
                e.i("v_cvt_f32_i32 v%d, v%d" % (r + c, r + c))
            jj = j % 32
            g, seg = jj // 4, jj % 4
            for c in range(4):
                pr = "v[%d:%d]" % (r + (c & 2), r + (c & 2) + 1)
                b = c & 1
                sc = seg * 4 + c
                if j < 32:
                    if seg == 0 and c == 0:
                        e.i("v_pk_mul_f32 %s, %s, %s op_sel:[%d,0] op_sel_hi:[%d,1]" % (a(g), pr, qs(sc), b, b))
                    else:
                        e.i("v_pk_fma_f32 %s, %s, %s, %s op_sel:[%d,0,0] op_sel_hi:[%d,1,1]" % (a(g), pr, qs(sc), a(g), b, b))
                else:
                    e.i("v_pk_fma_f32 %s, %s, %s, %s op_sel:[%d,0,0] op_sel_hi:[%d,1,1]" % (o(sc), pr, a(g), o(sc), b, b))
            for nj in rng_:
                if nj >= j + R:
                    issue_n(nj)
            if j < 32 and seg == 3:
                if g % 2 == 1:
                    stepA(g - 1, g)
                if g % 4 == 3:
                    stepQ(g - 3, g - 1, sMask1, "quad_perm:[2,3,0,1]", A + 2 * (g - 3))
                if g == 7:
                    stepQ(0, 4, sMask0, "quad_perm:[1,0,3,2]", A)

    assert NS >= 2
    if JP:
        qp = [("L", j) for j in range(PD)]
        steps(qp, 0, JP, False, peel=True)
        e.i("s_branch L_mid")
    e.label("L_loop")
    q = [("L", j) for j in range(D0)]
    steps(q, 0, JD, False)
    e.i("s_add_u32 s%d, s%d, 1" % (sCnt, sCnt))
    e.i("s_add_u32 s%d, s%d, %d" % (sCur, sCur, RT))
    e.i("v_add_u32 v%d, %d, v%d" % (vSL, 2 * RT, vSL))
    e.i("s_cmp_lt_u32 s%d, %d" % (sCnt, NS))
    e.i("s_cbranch_scc1 L_noc")
    e.i("v_readfirstlane_b32 s%d, v%d" % (sT0, vTk))
    e.i("s_min_u32 s%d, s%d, 62" % (sT0, sT0))
    e.i("s_add_u32 s%d, s%d, 1" % (sT1, sT0))
    e.i("s_nop 3")
    e.i("v_readlane_b32 s%d, v%d, s%d" % (sD0, vTab, sT0))
    e.i("v_readlane_b32 s%d, v%d, s%d" % (sD1, vTab, sT1))
    if ILV:
        e.i("s_sub_u32 s%d, s%d, s%d" % (sD1, sD1, sD0))
        e.i("s_cmp_ge_u32 s%d, s%d" % (sWave, sD1))
        e.i("s_cbranch_scc1 L_last")
        e.i("s_lshl_b32 s%d, s%d, 12" % (sGstr, sD1))
        e.i("v_mad_u32_u24 v%d, v%d, s%d, v%d" % (vSoffD, vI16, sD1, vTok2))
        e.i("s_lshl_b32 s%d, s%d, 3" % (sD1, sWave))
        e.i("s_add_u32 s%d, s%d, %d" % (sD1, sD1, NS * RT))
    else:
        e.i("s_add_u32 s%d, s%d, s%d" % (sD0, sD0, sWave))
        e.i("s_cmp_ge_u32 s%d, s%d" % (sD0, sD1))
        e.i("s_cbranch_scc1 L_last")
        e.i("s_mov_b32 s%d, 4096" % sGstr)
        e.i("s_mov_b32 s%d, %d" % (sD1, NS * RT))
    e.i("s_lshr_b32 s%d, s%d, %d" % (sT0, sD0, DT.bit_length() - 1))
    e.i("s_lshl_b32 s%d, s%d, 12" % (sT0, sT0))
    e.i("s_and_b32 s%d, s%d, %d" % (sT1, sD0, DT - 1))
    e.i("s_lshl_b32 s%d, s%d, 6" % (sT1, sT1))
    e.i("s_add_u32 s%d, s%d, s%d" % (sCur, sT0, sT1))
    e.i("s_add_u32 s%d, s%d, s%d" % (sCur, sCur, sD1))
    e.i("s_lshl_b32 s%d, s%d, 1" % (sSoff, sCur))
    e.i("buffer_load_ushort v%d, v%d, s[%d:%d], s%d offen" % (vVS, vSoffD, sVS, sVS + 3, sSoff))
    e.i("buffer_load_ushort v%d, v%d, s[%d:%d], s%d offen" % (vVS + 1, vSoffD, sVZ, sVZ + 3, sSoff))
    e.label("L_noc")
    e.i("s_lshl_b32 s%d, s%d, 9" % (sKoff, sCur))
    e.i("s_lshl_b32 s%d, s%d, 9" % (sVoff, sCur))
    q2 = list(q)
    steps(q2, JD, 64, False)
    e.i("s_branch L_loop")
    e.label("L_last")
    steps(q, JD, 64, True)
    if STAMP:
        e.i("s_memrealtime s[90:91]")
        e.i("s_getreg_b32 s92, hwreg(HW_REG_XCC_ID)")
        e.i("s_getreg_b32 s93, hwreg(HW_REG_HW_ID)")
        e.i("s_waitcnt lgkmcnt(0)")
        e.i("v_mov_b32 v%d, s88" % (A + 8))
        e.i("v_mov_b32 v%d, s90" % (A + 9))
        e.i("v_mov_b32 v%d, s92" % (A + 10))
        e.i("v_mov_b32 v%d, s93" % (A + 11))
        e.i("s_lshl_b32 s%d, s%d, 4" % (sT0, sGW))
        e.i("s_add_u32 s%d, s%d, %d" % (sT0, sT0, 8 << 20))
        e.i("v_mov_b32 v%d, 0" % (A + 12))
        e.i("buffer_store_dwordx4 v[%d:%d], v%d, s[%d:%d], s%d offen" % (A + 8, A + 11, A + 12, sWS, sWS + 3, sT0))
        if STAMP >= 2:
            e.i("s_lshl_b32 s%d, s%d, 8" % (sT0, sGW))
            e.i("s_add_u32 s%d, s%d, %d" % (sT0, sT0, 9 << 20))
            e.i("v_lshlrev_b32 v%d, 2, v%d" % (A + 13, vLane))
            e.i("buffer_store_dword v%d, v%d, s[%d:%d], s%d offen" % (vStamp, A + 13, sWS, sWS + 3, sT0))
    e.i("v_permlane32_swap_b32 v%d, v%d" % (vL, vL + 1))
    e.i("v_permlane32_swap_b32 v%d, v%d" % (vZ, vZ + 1))
    e.i("v_add_f32 v%d, v%d, v%d" % (vL, vL, vL + 1))
    e.i("v_add_f32 v%d, v%d, v%d" % (vZ, vZ, vZ + 1))
    e.i("v_permlane16_swap_b32 v%d, v%d" % (vL, vZ))
    e.i("v_add_f32 v%d, v%d, v%d" % (vL, vL, vZ))
    for rr in (8, 4, 2, 1):
        e.i("v_add_f32_dpp v%d, v%d, v%d row_ror:%d row_mask:0xf bank_mask:0xf" % (vL, vL, vL, rr))
    e.i("v_readlane_b32 s%d, v%d, 0" % (sL0, vL))
    e.i("v_readlane_b32 s%d, v%d, 16" % (sZ0, vL))
    e.i("v_readlane_b32 s%d, v%d, 32" % (sL1, vL))
    e.i("v_readlane_b32 s%d, v%d, 48" % (sZ1, vL))
    for sc in range(16):
        e.i("v_permlane32_swap_b32 v%d, v%d" % (O + 2 * sc, O + 2 * sc + 1))
    for sc in range(16):
        e.i("v_add_f32 v%d, v%d, v%d" % (O + 2 * sc, O + 2 * sc, O + 2 * sc + 1))
    for sc in range(8):
        e.i("v_permlane16_swap_b32 v%d, v%d" % (O + 2 * sc, O + 2 * (sc + 8)))
    for sc in range(8):
        e.i("v_add_f32 v%d, v%d, v%d" % (O + 2 * sc, O + 2 * sc, O + 2 * (sc + 8)))
    for sc in range(4):
        e.i("v_add_f32_dpp v%d, v%d, v%d row_ror:8 row_mask:0xf bank_mask:0x3" % (A + sc, O + 2 * sc, O + 2 * sc))
    for sc in range(4):
        e.i("v_add_f32_dpp v%d, v%d, v%d row_ror:8 row_mask:0xf bank_mask:0xc" % (A + sc, O + 2 * (sc + 4), O + 2 * (sc + 4)))
    e.i("s_mov_b32 s%d, 0" % sEx)
    e.i("s_mov_b32 s%d, -1" % (sEx + 1))
    e.i("v_mov_b32 v%d, s%d" % (vT0, sZ0))
    e.i("v_mov_b32 v%d, s%d" % (vT1, sZ1))
    e.i("v_cndmask_b32 v%d, v%d, v%d, s[%d:%d]" % (vT0, vT0, vT1, sEx, sEx + 1))
    for sc in range(4):
        e.i("v_sub_f32 v%d, v%d, v%d" % (A + sc, A + sc, vT0))
    e.i("v_mov_b32 v%d, s%d" % (vT0, sC0))
    e.i("v_mov_b32 v%d, s%d" % (vT1, sC1))
    e.i("v_cndmask_b32 v%d, v%d, v%d, s[%d:%d]" % (vT0, vT0, vT1, sEx, sEx + 1))
    e.i("v_sub_f32 v%d, v%d, v%d" % (vP, vM, vT0))
    e.i("v_mov_b32 v%d, s%d" % (vT0, sL0))
    e.i("v_mov_b32 v%d, s%d" % (vT1, sL1))
    e.i("v_cndmask_b32 v%d, v%d, v%d, s[%d:%d]" % (vP + 1, vT0, vT1, sEx, sEx + 1))
    OB = WPW * 512
    MB = OB + WPW * 1024
    LDS = MB + WPW * 16 + 16 + 16384
    e.i("s_lshl_b32 s%d, s%d, 10" % (sT0, sWave))
    e.i("v_lshlrev_b32 v%d, 4, v%d" % (vT2, vLane))
    e.i("v_add_u32 v%d, s%d, v%d" % (vT0, sT0, vT2))
    e.i("ds_write_b128 v%d, v[%d:%d] offset:%d" % (vT0, A, A + 3, OB))
    e.i("s_lshl_b32 s%d, s%d, 4" % (sT0, sWave))
    e.i("v_lshrrev_b32 v%d, 5, v%d" % (vT3, vLane))
    e.i("v_lshlrev_b32 v%d, 3, v%d" % (vT3, vT3))
    e.i("v_add_u32 v%d, s%d, v%d" % (vT1, sT0, vT3))
    e.i("ds_write_b64 v%d, v[%d:%d] offset:%d" % (vT1, vP, vP + 1, MB))
    e.i("s_waitcnt lgkmcnt(0)")
    if True:
        e.i("v_mov_b32 v%d, 0" % vT0)
        e.i("v_mov_b32 v%d, 1" % vT1)
        e.i("s_mov_b64 exec, 1")
        e.i("ds_add_rtn_u32 v%d, v%d, v%d offset:%d" % (vT1, vT0, vT1, CNTOFF))
        e.i("s_mov_b64 exec, -1")
        e.i("s_waitcnt lgkmcnt(0)")
        e.i("v_readfirstlane_b32 s%d, v%d" % (sT0, vT1))
        e.i("s_cmp_lg_u32 s%d, %d" % (sT0, WPW - 1))
        e.i("s_cbranch_scc1 L_done1")
    assert WPW <= 16
    for w in range(WPW):
        e.i("ds_read_b64 v[%d:%d], v%d offset:%d" % (QS + 2 * w, QS + 2 * w + 1, vT3, MB + 16 * w))
    OT = O
    assert O + 4 * WPW <= NV
    for w in range(WPW):
        e.i("ds_read_b128 v[%d:%d], v%d offset:%d" % (OT + 4 * w, OT + 4 * w + 3, vT2, OB + 1024 * w))
    e.i("s_waitcnt lgkmcnt(0)")
    e.i("v_mov_b32 v%d, v%d" % (vT0, QS))
    for w in range(1, WPW):
        e.i("v_max_f32 v%d, v%d, v%d" % (vT0, vT0, QS + 2 * w))
    for w in range(WPW):
        e.i("v_sub_f32 v%d, v%d, v%d" % (QS + 2 * w, QS + 2 * w, vT0))
    for w in range(WPW):
        e.i("v_exp_f32 v%d, v%d" % (QS + 2 * w, QS + 2 * w))
    e.i("v_mul_f32 v%d, v%d, v%d" % (vT1, QS, QS + 1))
    for w in range(1, WPW):
        e.i("v_fmac_f32 v%d, v%d, v%d" % (vT1, QS + 2 * w, QS + 2 * w + 1))
    for c in range(4):
        e.i("v_mul_f32 v%d, v%d, v%d" % (OT + c, OT + c, QS))
    for w in range(1, WPW):
        for c in range(4):
            e.i("v_fmac_f32 v%d, v%d, v%d" % (OT + c, OT + 4 * w + c, QS + 2 * w))
    MLB = 32 * NSPLIT * 512
    e.i("s_lshl_b32 s%d, s%d, %d" % (sT0, sKVH, LOG_NSPLIT + 1))
    e.i("s_add_u32 s%d, s%d, s%d" % (sT0, sT0, sSplit))
    e.i("v_lshrrev_b32 v%d, 5, v%d" % (vT3, vLane))
    e.i("v_lshlrev_b32 v%d, %d, v%d" % (vT3, LOG_NSPLIT, vT3))
    e.i("v_add_u32 v%d, s%d, v%d" % (vT3, sT0, vT3))
    e.i("v_and_b32 v%d, 31, v%d" % (vT2, vLane))
    e.i("v_lshlrev_b32 v%d, 4, v%d" % (vT2, vT2))
    e.i("v_lshl_add_u32 v%d, v%d, 9, v%d" % (vT2, vT3, vT2))
    scf = " sc1" if FUSE else ""
    if STAMP and FUSE:
        e.i("s_memrealtime s[12:13]")
    e.i("buffer_store_dwordx4 v[%d:%d], v%d, s[%d:%d], 0 offen%s" % (OT, OT + 3, vT2, sWS, sWS + 3, scf))
    e.i("v_lshlrev_b32 v%d, 3, v%d" % (vT3, vT3))
    e.i("s_mov_b32 s%d, %d" % (sT1, MLB))
    e.i("buffer_store_dwordx2 v[%d:%d], v%d, s[%d:%d], s%d offen%s" % (vT0, vT1, vT3, sWS, sWS + 3, sT1, scf))
    if FUSE:
        pass
        vA, vB, vC = vP, vP + 1, vPP
        e.i("s_lshl_b32 s%d, s%d, 9" % (sT0, sSplit))
        e.i("v_subrev_u32 v%d, s%d, v%d" % (vB, sT0, vT2))
        e.i("s_lshl_b32 s%d, s%d, 3" % (sT0, sSplit))
        e.i("v_subrev_u32 v%d, s%d, v%d" % (vC, sT0, vT3))
        e.i("s_lshl_b32 s%d, s%d, 2" % (sT0, sKVH))
        e.i("s_add_u32 s%d, s%d, 128" % (sT0, sT0))
        e.i("v_mov_b32 v%d, 1" % vA)
        e.i("v_mov_b32 v%d, 0" % vM)
        e.i("s_waitcnt vmcnt(0)")
        if STAMP:
            e.i("s_memrealtime s[14:15]")
        e.i("s_mov_b64 exec, 1")
        e.i("buffer_atomic_add v%d, v%d, s[%d:%d], s%d offen sc0" % (vA, vM, sDBG, sDBG + 3, sT0))
        e.i("s_mov_b64 exec, -1")
        e.i("s_waitcnt vmcnt(0)")
        if STAMP:
            e.i("s_memrealtime s[16:17]")
            e.i("s_waitcnt lgkmcnt(0)")
            e.i("v_mov_b32 v%d, s12" % (A + 8))
            e.i("v_mov_b32 v%d, s14" % (A + 9))
            e.i("v_mov_b32 v%d, s16" % (A + 10))
            e.i("v_mov_b32 v%d, 0" % (A + 11))
            e.i("s_lshl_b32 s18, s2, 4")
            e.i("s_add_u32 s18, s18, %d" % (10 << 20))
            e.i("v_mov_b32 v%d, 0" % (A + 12))
            e.i("buffer_store_dwordx4 v[%d:%d], v%d, s[%d:%d], s18 offen" % (A + 8, A + 11, A + 12, sWS, sWS + 3))
        e.i("v_readfirstlane_b32 s%d, v%d" % (sT0, vA))
        e.i("s_cmp_lg_u32 s%d, %d" % (sT0, NSPLIT - 1))
        e.i("s_cbranch_scc1 L_done1")
        for t in range(NSPLIT):
            e.i("buffer_load_dwordx2 v[%d:%d], v%d, s[%d:%d], s%d offen offset:%d sc1" % (QS + 2 * t, QS + 2 * t + 1, vC, sWS, sWS + 3, sT1, 8 * t))
        e.i("s_mov_b32 s%d, 4096" % sT0)
        for t in range(NSPLIT):
            e.i("buffer_load_dwordx4 v[%d:%d], v%d, s[%d:%d], %s offen offset:%d sc1" % (RING + 4 * t, RING + 4 * t + 3, vB, sWS, sWS + 3, "0" if t < 8 else "s%d" % sT0, (t % 8) * 512))
        e.i("s_mov_b32 s%d, s%d" % (sK, pout))
        e.i("s_mov_b32 s%d, s%d" % (sK + 1, pout + 1))
        e.i("s_mov_b32 s%d, 8192" % (sK + 2))
        e.i("s_mov_b32 s%d, 0x00020000" % (sK + 3))
        e.i("s_lshl_b32 s%d, s%d, 9" % (sT0, sKVH))
        e.i("v_lshlrev_b32 v%d, 3, v%d" % (vT2, vLane))
        e.i("s_waitcnt vmcnt(%d)" % NSPLIT)
        e.i("v_mov_b32 v%d, v%d" % (vT0, QS))
        for w in range(1, NSPLIT):
            e.i("v_max_f32 v%d, v%d, v%d" % (vT0, vT0, QS + 2 * w))
        for w in range(NSPLIT):
            e.i("v_sub_f32 v%d, v%d, v%d" % (QS + 2 * w, QS + 2 * w, vT0))
        for w in range(NSPLIT):
            e.i("v_exp_f32 v%d, v%d" % (QS + 2 * w, QS + 2 * w))
        e.i("v_mul_f32 v%d, v%d, v%d" % (vT1, QS, QS + 1))
        for w in range(1, NSPLIT):
            e.i("v_fmac_f32 v%d, v%d, v%d" % (vT1, QS + 2 * w, QS + 2 * w + 1))
        e.i("v_rcp_f32 v%d, v%d" % (vT1, vT1))
        e.i("s_waitcnt vmcnt(0)")
        for c in range(4):
            e.i("v_mul_f32 v%d, v%d, v%d" % (RING + c, RING + c, QS))
        for w in range(1, NSPLIT):
            for c in range(4):
                e.i("v_fmac_f32 v%d, v%d, v%d" % (RING + c, RING + 4 * w + c, QS + 2 * w))
        for c in range(4):
            e.i("v_mul_f32 v%d, v%d, v%d" % (RING + c, RING + c, vT1))
        e.i("v_cvt_pk_bf16_f32 v%d, v%d, v%d" % (RING, RING, RING + 1))
        e.i("v_cvt_pk_bf16_f32 v%d, v%d, v%d" % (RING + 1, RING + 2, RING + 3))
        e.i("buffer_store_dwordx2 v[%d:%d], v%d, s[%d:%d], s%d offen" % (RING, RING + 1, vT2, sK, sK + 3, sT0))
        if STAMP:
            e.i("s_memrealtime s[16:17]")
            e.i("s_waitcnt lgkmcnt(0)")
            e.i("v_mov_b32 v%d, s16" % (A + 8))
            e.i("v_mov_b32 v%d, 0" % (A + 12))
            e.i("buffer_store_dword v%d, v%d, s[%d:%d], s18 offen offset:12" % (A + 8, A + 12, sWS, sWS + 3))
    e.raw("L_done1:")
    e.i("s_endpgm")
    k1 = e.text()


    hdr = open("cdna_kernels/%s.s.ref" % NAME).read().split("; Override launch geometry")[0]
    out = hdr
    if not LIST:
        out += "; @launch grid=(%d,1,1) block=(%d,1,1) lds=%d\n" % (NWG, WPW * 64, LDS)
    else:
        out += "; @launch kernel=%s_kernel grid=(%d,1,1) block=(%d,1,1) lds=%d\n" % (NAME, NWG, WPW * 64, LDS)
    out += '.amdgcn_target "amdgcn-amd-amdhsa--gfx950"\n.text\n'
    out += ".globl %s_kernel\n.p2align 8\n.type %s_kernel,@function\n" % (NAME, NAME)
    out += k1
    out += '.section .rodata,"a"\n'
    out += (".p2align 6\n.amdhsa_kernel %s\n  .amdhsa_next_free_vgpr %d\n  .amdhsa_next_free_sgpr %d\n"
            "  .amdhsa_accum_offset %d\n  .amdhsa_group_segment_fixed_size 0\n  .amdhsa_kernarg_size 80\n"
            "  .amdhsa_user_sgpr_count 2\n  .amdhsa_user_sgpr_kernarg_segment_ptr 1\n"
            "  .amdhsa_system_sgpr_workgroup_id_x 1\n.end_amdhsa_kernel\n") % (NAME + "_kernel", VG, 100, (VG + 3) // 4 * 4)
    mv = max([int(x) for x in re.findall(r"\bv(\d+)\b", k1)] + [int(x) for x in re.findall(r"v\[\d+:(\d+)\]", k1)])
    ms = max([int(x) for x in re.findall(r"\bs(\d+)\b", k1)] + [int(x) for x in re.findall(r"s\[\d+:(\d+)\]", k1)])
    assert mv < VG <= 256 and ms < 100, (mv, VG, ms)
    return out


def parse_gs(s):
    out = []
    for part in s.split(","):
        if "x" in part:
            v, n = part.split("x")
            out += [int(v)] * int(n)
        else:
            out.append(int(part))
    return out


if __name__ == "__main__":
    ap = argparse.ArgumentParser()
    ap.add_argument("-R", type=int, default=16)
    ap.add_argument("--wpw", type=int, default=4)
    ap.add_argument("--bar", type=int, default=8)
    ap.add_argument("--gs", default="4x24,3x4,2x6,1x8")
    ap.add_argument("--ns", type=int, default=12)
    ap.add_argument("--dep", default=None)
    ap.add_argument("--pro", type=int, default=0)
    ap.add_argument("--pd", type=int, default=None)
    ap.add_argument("--touch", type=int, default=0)
    ap.add_argument("--ilv", type=int, default=0)
    ap.add_argument("--stamp", type=int, default=0)
    ap.add_argument("--list", type=int, default=1)
    ap.add_argument("-o", required=True)
    a_ = ap.parse_args()
    s = gen(R=a_.R, WPW=a_.wpw, BAR=a_.bar, GS=parse_gs(a_.gs), NS=a_.ns, DEP=[int(x) for x in a_.dep.split(",")] if a_.dep else None,
            PRO=a_.pro, TOUCH=a_.touch, ILV=a_.ilv, STAMP=a_.stamp, LIST=a_.list, PD=a_.pd)
    open(a_.o, "w").write(s)
    print("wrote", a_.o, len(s), "bytes")
```

```python
import re
import sys
import struct
import argparse

NAME = "standalone__kv_cache_quant_int4_int2_kv_with_per_channel_or_per_token_scales__decode"


def f2u(x):
    return struct.unpack("<I", struct.pack("<f", x))[0]


REG_RE = re.compile(r"\b([vs])(\d+)\b|\b([vs])\[(\d+):(\d+)\]|\b(vcc)\b")


def regs_of(op):
    out = set()
    for m in REG_RE.finditer(op):
        if m.group(1):
            out.add((m.group(1), int(m.group(2))))
        elif m.group(3):
            for r in range(int(m.group(4)), int(m.group(5)) + 1):
                out.add((m.group(3), r))
        else:
            out.add(("vcc", 0))
    return out


TRANS = ("v_exp_f32", "v_log_f32", "v_rcp_f32", "v_rsq_f32", "v_sqrt_f32")


class Emit:
    def __init__(self):
        self.lines = []
        self.hist = []

    def raw(self, s):
        self.lines.append(s)

    def label(self, s):
        self.i("s_nop 4")
        self.lines.append(s + ":")
        self.hist = []

    def comment(self, s):
        self.lines.append("    ; " + s)

    def i(self, text):
        text = text.strip()
        mn = text.split()[0]
        rest = text[len(mn):].strip()
        ops = [o.strip() for o in rest.split(",")] if rest else []
        clean = []
        for o in ops:
            clean.append(o.split()[0] if o.split() else o)
        ops = clean
        is_valu = mn.startswith("v_")
        is_vmem = mn.startswith("buffer_") or mn.startswith("global_")
        is_dpp = "_dpp" in mn
        is_perm = mn.startswith("v_permlane")
        is_rl = mn.startswith("v_readlane") or mn.startswith("v_readfirstlane")
        writes, reads = set(), set()
        if is_valu:
            if is_perm:
                writes = regs_of(ops[0]) | regs_of(ops[1])
                reads = set(writes)
            else:
                writes = regs_of(ops[0])
                for o in ops[1:]:
                    reads |= regs_of(o)
                if "fmac" in mn or is_dpp:
                    reads |= regs_of(ops[0])
                if mn.startswith("v_cndmask") and len(ops) == 3:
                    reads.add(("vcc", 0))
        elif is_vmem:
            for o in ops:
                reads |= regs_of(o)
        elif mn.startswith("ds_"):
            for o in ops:
                reads |= regs_of(o)
        else:
            for o in ops:
                reads |= regs_of(o)
        need = 0
        for dist, h in enumerate(reversed(self.hist)):
            req = 0
            if h["valu"]:
                vw = {r for r in h["writes"] if r[0] == "v"}
                sw = {r for r in h["writes"] if r[0] in ("s", "vcc")}
                if (is_dpp or is_perm) and (vw & reads):
                    req = max(req, 2)
                if is_rl and (vw & reads):
                    req = max(req, 1)
                if is_valu and (sw & reads):
                    req = max(req, 4 if is_rl else 2)
                if is_vmem and (sw & reads):
                    req = max(req, 5)
                if (not is_valu) and (not is_vmem) and (sw & reads):
                    req = max(req, 4)
                if h["trans"] and is_valu and (vw & reads):
                    req = max(req, 1)
            if h["wide_store"] and is_valu and (h["reads"] & writes):
                req = max(req, 2)
            need = max(need, req - h["after"])
        if need > 0:
            self._push("s_nop %d" % (need - 1), need, dict(valu=False, writes=set(), reads=set(), trans=False, wide_store=False))
        wide = is_vmem and "store" in mn and ("x4" in mn or "x3" in mn)
        self._push(text, 1, dict(valu=is_valu, writes=writes, reads=reads, trans=mn.startswith(TRANS), wide_store=wide))

    def _push(self, text, states, info):
        if text.startswith("s_nop"):
            states = int(text.split()[1]) + 1
        for h in self.hist:
            h["after"] += states
        info["after"] = 0
        self.hist.append(info)
        self.hist = [h for h in self.hist if h["after"] < 8]
        self.lines.append("    " + text)

    def text(self):
        return "\n".join(self.lines) + "\n"


def gen(BAR=8, GS=None, NS=14, STAMP=0, LIST=1, EXACT=1, LASTBAR=0, MAPD=0, FAKE=0, FROT=0, WSC=0, SPLIT8=0, CSTR=4096):
    R = 16
    WPW = 4
    NWG = 256
    NSPLIT = 16
    LOG_WPW = 2
    LOG_NSPLIT = 4
    CSCALE = (128.0 ** -0.5) * 1.4426950408889634
    ntf = " nt"
    assert BAR == 8
    D0 = 16

    e = Emit()
    vLoff, vSoff, vLdsW, vLdsR = 0, 1, 2, 3
    vM = 4
    vT0, vT1, vT2 = 6, 7, 5
    vL = 8
    vZ = 10
    vVS = 12
    vP = 14
    vPP = 16
    vLane = 18
    vT3 = 19
    QS = 20
    O = 52
    A = 84
    RING = 100
    NV = RING + 4 * R
    vStamp = NV
    if STAMP >= 2:
        NV += 1
    vTk, vSL, vTab, vSoffD, vVSn, vVSn1, vFl = range(NV, NV + 7)
    NV += 7
    CB = 12 << 20
    VG = max(NV, RING + 64)
    DT = (16 - NS) * 4
    assert DT >= 4
    assert sum(GS) == 8 * DT and all(x in (1, 2, 4) for x in GS) and all(GS[k] >= GS[k + 1] for k in range(len(GS) - 1))
    st = [0]
    for n_ in GS:
        st.append(st[-1] + n_)
    assert all(st[k] % GS[k] == 0 for k in range(len(GS)))
    NB = 0
    if len(GS) > 60:
        NB = sum(1 for x in GS if x == 4)
        st = st[NB:]
        assert len(st) <= 61
    POW2 = DT & (DT - 1) == 0
    if not POW2:
        DSH = 16
        DM = (1 << DSH) // DT + 1
        assert all((u * DM) >> DSH == u // DT for u in range(8 * DT + 1))
    TICKOFF = WPW * 512 + WPW * 1024 + WPW * 16
    SCB = TICKOFF + 16
    CNTOFF = TICKOFF + 4
    RT = 64 * WPW
    GSTR = 8 * WPW
    GB = GSTR * 512
    NSL = 2 if NS > 8 else 1

    def qs(sc):
        return "v[%d:%d]" % (QS + 2 * sc, QS + 2 * sc + 1)

    def o(sc):
        return "v[%d:%d]" % (O + 2 * sc, O + 2 * sc + 1)

    def a(i):
        return "v[%d:%d]" % (A + 2 * i, A + 2 * i + 1)

    def ring(slot):
        return RING + 4 * slot

    sK, sV, sVS, sVZ = 8, 12, 16, 20
    sQ, sKS, sKZ, sWS = 24, 28, 32, 36
    sX = 24
    sXoff, sGn, sXadd = 28, 29, 30
    sMaskE = 32
    sWoff = 34
    sFl = 35
    sKoff, sVoff, sSoff, sCnt = 40, 41, 42, 43
    sMask1, sMask0 = 44, 46
    sM0, sM1 = 48, 49
    sF = 50
    sC0, sC1 = 52, 53
    sWave, sGW, sKVH, sRB, sT0, sT1 = 54, 55, 56, 57, 58, 59
    sPtr = 60
    sL0, sZ0, sL1, sZ1 = 80, 81, 82, 83
    sSplit = 84
    sEx = 86
    sQi = 94
    sDBG = 4
    sCur, sTkt, sD0, sD1, sBar = 95, 85, 91, 92, 93

    def load(slot, srd, so, seg, extra=()):
        r = ring(slot)
        e.i("buffer_load_dwordx4 v[%d:%d], v%d, s[%d:%d], s%d offen offset:%d%s" % (r, r + 3, vLoff, srd, srd + 3, so, seg * 128, ntf))
        if seg == 3:
            for s_ in (so,) + tuple(extra):
                e.i("s_add_u32 s%d, s%d, %d" % (s_, s_, GB))

    def issue_own(G, j):
        if j < 4 * G:
            load(j % R, sK, sKoff, j % 4)
        else:
            load(j % R, sV, sVoff, j % 4)

    def issue_next(i):
        if i < 8:
            load(i % R, sK, sKoff, i % 4)
        else:
            load(i % R, sX, sXoff, i % 4, extra=(sKoff,))

    pq, pqk, pqv, pks, pkz, pvs, pvz, pout, pdbg, pws = [sPtr + 2 * k for k in range(10)]

    e.raw("%s_kernel:" % NAME)
    e.i("s_cmp_ge_u32 s2, %d" % NWG)
    e.i("s_cbranch_scc1 %s" % ("L_init" if WSC else "L_done1"))
    if STAMP:
        e.i("s_memrealtime s[88:89]")
    e.i("s_load_dwordx16 s[%d:%d], s[0:1], 0" % (sPtr, sPtr + 15))
    e.i("s_load_dwordx4 s[%d:%d], s[0:1], 64" % (sPtr + 16, sPtr + 19))
    e.i("v_lshrrev_b32 v%d, 6, v0" % vT0)
    e.i("v_and_b32 v%d, 63, v0" % vLane)
    e.i("v_readfirstlane_b32 s%d, v%d" % (sWave, vT0))
    e.i("v_lshrrev_b32 v%d, 3, v%d" % (vT0, vLane))
    e.i("v_and_b32 v%d, 7, v%d" % (vT1, vLane))
    e.i("v_lshlrev_b32 v%d, 9, v%d" % (vLoff, vT0))
    e.i("v_lshl_add_u32 v%d, v%d, 4, v%d" % (vLoff, vT1, vLoff))
    e.i("s_lshr_b32 s%d, s2, 3" % sQi)
    e.i("s_lshl_b32 s%d, s%d, 24" % (sRB, sQi))
    e.i("s_and_b32 s%d, s2, 7" % sT0)
    e.i("s_lshl_b32 s%d, s%d, 12" % (sT0, sT0))
    e.i("s_lshl_b32 s%d, s%d, 3" % (sCur, sWave))
    e.i("s_add_u32 s%d, s%d, s%d" % (sCur, sCur, sT0))
    e.i("s_lshl_b32 s%d, s%d, 9" % (sKoff, sCur))
    e.i("s_lshl_b32 s%d, s%d, 9" % (sVoff, sCur))
    for srd in (sK, sV):
        e.i("s_mov_b32 s%d, %d" % (srd + 2, 32768 * 512))
        e.i("s_mov_b32 s%d, 0x00020000" % (srd + 3))
    e.i("v_lshrrev_b32 v%d, 2, v%d" % (vT2, vT1))
    e.i("v_and_b32 v%d, 2, v%d" % (vT3, vT1))
    e.i("v_add_u32 v%d, v%d, v%d" % (vT2, vT2, vT3))
    e.i("v_and_b32 v%d, 1, v%d" % (vT3, vT1))
    e.i("v_lshl_add_u32 v%d, v%d, 2, v%d" % (vT2, vT3, vT2))
    e.i("v_lshl_add_u32 v%d, v%d, %d, v%d" % (vSoff, vT2, GSTR.bit_length() - 1, vT0))
    e.i("v_lshlrev_b32 v%d, 1, v%d" % (vSoff, vSoff))
    e.i("s_lshl_b32 s%d, s%d, 9" % (sT0, sWave))
    e.i("v_lshlrev_b32 v%d, 6, v%d" % (vLdsR, vT0))
    e.i("v_add_u32 v%d, s%d, v%d" % (vLdsR, sT0, vLdsR))
    e.i("v_lshl_add_u32 v%d, v%d, 3, v%d" % (vLdsW, vT2, vLdsR))
    e.i("s_mov_b32 s%d, 0xcccccccc" % sMask1)
    e.i("s_mov_b32 s%d, 0xcccccccc" % (sMask1 + 1))
    e.i("s_mov_b32 s%d, 0xaaaaaaaa" % sMask0)
    e.i("s_mov_b32 s%d, 0xaaaaaaaa" % (sMask0 + 1))
    e.i("s_lshl_b32 s%d, s2, %d" % (sGW, LOG_WPW))
    e.i("s_add_u32 s%d, s%d, s%d" % (sGW, sGW, sWave))
    e.i("s_lshr_b32 s%d, s2, 4" % sKVH)
    e.i("s_and_b32 s%d, s2, %d" % (sSplit, NSPLIT - 1))
    e.i("s_cmp_eq_u32 s%d, 0" % sWave)
    e.i("s_cselect_b32 s%d, %d, 1000" % (sTkt, NS - 1 if FAKE != 1 else 1000))
    e.i("v_lshlrev_b32 v%d, 3, v%d" % (vT3, vT1))
    e.i("v_lshlrev_b32 v%d, 4, v%d" % (vT0, vLane))
    for srd, n in ((sVS, 65536), (sVZ, 65536), (sQ, 8192), (sKS, 8192), (sKZ, 8192), (sWS, 1 << 24), (sDBG, 256)):
        e.i("s_mov_b32 s%d, %d" % (srd + 2, n))
        e.i("s_mov_b32 s%d, 0x00020000" % (srd + 3))
    e.i("s_waitcnt lgkmcnt(0)")
    if STAMP >= 2:
        e.i("s_mov_b32 s98, 0")
        e.i("v_mov_b32 v%d, 0" % vStamp)
    for srd, p in ((sK, pqk), (sV, pqv)):
        e.i("s_add_u32 s%d, s%d, s%d" % (srd, p, sRB))
        e.i("s_addc_u32 s%d, s%d, 0" % (srd + 1, p + 1))
    e.i("s_lshl_b32 s%d, s%d, 16" % (sT0, sQi))
    for srd, p in ((sVS, pvs), (sVZ, pvz)):
        e.i("s_add_u32 s%d, s%d, s%d" % (srd, p, sT0))
        e.i("s_addc_u32 s%d, s%d, 0" % (srd + 1, p + 1))
    for srd, p in ((sQ, pq), (sKS, pks), (sKZ, pkz), (sWS, pws), (sDBG, pdbg)):
        e.i("s_mov_b32 s%d, s%d" % (srd, p))
        e.i("s_mov_b32 s%d, s%d" % (srd + 1, p + 1))
    e.i("s_lshl_b32 s%d, s%d, 9" % (sT0, sKVH))
    e.i("s_lshl_b32 s%d, s%d, 8" % (sT1, sQi))
    order = [("q", 0, 0), ("ks", 0, 0), ("kz", 0, 0)] + [("q", h, s_) for h in range(2) for s_ in range(4) if (h, s_) != (0, 0)] + [("ks", 0, s_) for s_ in range(1, 4)] + [("kz", 0, s_) for s_ in range(1, 4)]
    for kind, h, seg in order:
        if kind == "q":
            r = O + (h * 4 + seg) * 2
            e.i("buffer_load_dwordx2 v[%d:%d], v%d, s[%d:%d], s%d offen offset:%d" % (r, r + 1, vT3, sQ, sQ + 3, sT0, h * 256 + seg * 64))
        elif kind == "ks":
            r = O + 16 + seg * 2
            e.i("buffer_load_dwordx2 v[%d:%d], v%d, s[%d:%d], s%d offen offset:%d" % (r, r + 1, vT3, sKS, sKS + 3, sT1, seg * 64))
        else:
            r = O + 24 + seg * 2
            e.i("buffer_load_dwordx2 v[%d:%d], v%d, s[%d:%d], s%d offen offset:%d" % (r, r + 1, vT3, sKZ, sKZ + 3, sT1, seg * 64))
    e.i("s_and_b32 s%d, s2, 7" % sT0)
    e.i("s_lshl_b32 s%d, s%d, 13" % (sT0, sT0))
    e.i("s_mul_i32 s%d, s%d, %d" % (sT1, sWave, 1024 * NSL))
    e.i("s_add_u32 s%d, s%d, s%d" % (sT0, sT0, sT1))
    for k_ in range(NSL):
        e.i("buffer_load_dwordx4 v[%d:%d], v%d, s[%d:%d], s%d offen offset:%d" % (QS + 8 * k_, QS + 8 * k_ + 3, vT0, sVS, sVS + 3, sT0, 1024 * k_))
        e.i("buffer_load_dwordx4 v[%d:%d], v%d, s[%d:%d], s%d offen offset:%d" % (QS + 8 * k_ + 4, QS + 8 * k_ + 7, vT0, sVZ, sVZ + 3, sT0, 1024 * k_))
    e.i("v_add_u32 v%d, s%d, v%d" % (vT1, sT1, vT0))
    e.i("s_lshl_b32 s%d, s%d, 4" % (sT1, sWave))
    e.i("v_add_u32 v%d, s%d, v%d" % (vSL, sT1, vSoff))
    for j in range(D0):
        issue_own(8, j)
    if WSC:
        e.i("s_mul_i32 s%d, s%d, %d" % (sQi, sQi, CSTR))
        e.i("s_add_u32 s%d, s%d, %d" % (sQi, sQi, CB))
    else:
        e.i("s_lshl_b32 s%d, s%d, 2" % (sQi, sQi))
    e.i("v_mov_b32 v%d, %d" % (vTab, st[-1]))
    for k_, v_ in enumerate(st[:-1]):
        if v_ <= 64:
            e.i("v_writelane_b32 v%d, %d, %d" % (vTab, v_, k_))
        else:
            e.i("s_mov_b32 s%d, %d" % (sT0, v_))
            e.i("v_writelane_b32 v%d, s%d, %d" % (vTab, sT0, k_))
    e.i("v_mov_b32 v%d, 0" % vT2)
    e.i("ds_write_b32 v%d, v%d offset:%d" % (vT2, vT2, CNTOFF))
    for r in (vL, vL + 1, vZ, vZ + 1):
        e.i("v_mov_b32 v%d, 0" % r)
    e.i("v_mov_b32 v%d, 0x%08x" % (vM, f2u(-3.0e38)))
    e.i("s_mov_b32 s%d, 0" % sCnt)
    e.i("s_mov_b32 s%d, 0x%08x" % (sT0, f2u(CSCALE)))
    e.i("s_waitcnt vmcnt(%d)" % D0)
    e.i("s_mov_b32 s%d, s%d" % (sX, sK))
    e.i("s_mov_b32 s%d, s%d" % (sX + 1, sK + 1))
    e.i("s_mov_b32 s%d, %d" % (sX + 2, 32768 * 512))
    e.i("s_mov_b32 s%d, 0x00020000" % (sX + 3))
    e.i("s_mov_b32 s%d, 4" % sGn)
    e.i("s_mov_b32 s%d, %d" % (sXadd, 2 * GB))
    e.i("s_mov_b32 s%d, 0xeeeeeeee" % sMaskE)
    e.i("s_mov_b32 s%d, 0xeeeeeeee" % (sMaskE + 1))
    e.i("s_sub_u32 s%d, s%d, 1" % (sFl, sTkt))
    e.i("s_lshl_b32 s%d, s%d, 3" % (sWoff, sWave))
    e.i("s_add_u32 s%d, s%d, %d" % (sWoff, sWoff, NS * RT))
    for k_ in range(NSL):
        e.i("ds_write_b128 v%d, v[%d:%d] offset:%d" % (vT1, QS + 8 * k_, QS + 8 * k_ + 3, SCB + 1024 * k_))
        e.i("ds_write_b128 v%d, v[%d:%d] offset:%d" % (vT1, QS + 8 * k_ + 4, QS + 8 * k_ + 7, SCB + 8192 + 1024 * k_))
    for seg in range(4):
        for half in range(2):
            src = O + 16 + seg * 2 + half
            d0 = A + seg * 4 + half * 2
            e.i("v_lshlrev_b32 v%d, 16, v%d" % (d0, src))
            e.i("v_and_b32 v%d, 0xffff0000, v%d" % (d0 + 1, src))
    for k in range(16):
        e.i("v_mul_f32 v%d, s%d, v%d" % (A + k, sT0, A + k))
    e.i("s_waitcnt lgkmcnt(0)")
    for h in range(2):
        for seg in range(4):
            for half in range(2):
                src = O + (h * 4 + seg) * 2 + half
                sc0 = seg * 4 + half * 2
                e.i("v_lshlrev_b32 v%d, 16, v%d" % (QS + 2 * sc0 + h, src))
                e.i("v_and_b32 v%d, 0xffff0000, v%d" % (QS + 2 * (sc0 + 1) + h, src))
    for sc in range(16):
        for h in range(2):
            e.i("v_mul_f32 v%d, v%d, v%d" % (QS + 2 * sc + h, QS + 2 * sc + h, A + sc))
    for seg in range(4):
        for half in range(2):
            src = O + 24 + seg * 2 + half
            d0 = A + seg * 4 + half * 2
            e.i("v_lshlrev_b32 v%d, 16, v%d" % (d0, src))
            e.i("v_and_b32 v%d, 0xffff0000, v%d" % (d0 + 1, src))
    for h in range(2):
        t = vT0 + h
        e.i("v_mul_f32 v%d, v%d, v%d" % (t, QS + h, A))
        for sc in range(1, 16):
            e.i("v_fmac_f32 v%d, v%d, v%d" % (t, QS + 2 * sc + h, A + sc))
    for mod in ("quad_perm:[1,0,3,2]", "quad_perm:[2,3,0,1]", "row_half_mirror"):
        for h in range(2):
            t = vT0 + h
            e.i("v_add_f32_dpp v%d, v%d, v%d %s row_mask:0xf bank_mask:0xf" % (t, t, t, mod))
    e.i("v_readfirstlane_b32 s%d, v%d" % (sC0, vT0))
    e.i("v_readfirstlane_b32 s%d, v%d" % (sC1, vT1))
    for k in range(32):
        e.i("v_mov_b32 v%d, 0" % (O + k))
    FUSE = 1

    def stepA(x, y):
        for k in range(2):
            e.i("v_add_f32_dpp v%d, v%d, v%d row_half_mirror row_mask:0xf bank_mask:0x5" % (A + 2 * x + k, A + 2 * x + k, A + 2 * x + k))
        for k in range(2):
            e.i("v_add_f32_dpp v%d, v%d, v%d row_half_mirror row_mask:0xf bank_mask:0xa" % (A + 2 * x + k, A + 2 * y + k, A + 2 * y + k))

    def stepQ(x, y, mask, perm, out):
        for k in range(2):
            X, Y = A + 2 * x + k, A + 2 * y + k
            t = vT0 + k
            e.i("v_cndmask_b32 v%d, v%d, v%d, s[%d:%d]" % (t, Y, X, mask, mask + 1))
            e.i("v_cndmask_b32 v%d, v%d, v%d, s[%d:%d]" % (Y, X, Y, mask, mask + 1))
        for k in range(2):
            Y = A + 2 * y + k
            t = vT0 + k
            e.i("v_add_f32_dpp v%d, v%d, v%d %s row_mask:0xf bank_mask:0xf" % (out + k, t, Y, perm))

    def stepP(perm):
        for k in range(2):
            e.i("v_add_f32_dpp v%d, v%d, v%d %s row_mask:0xf bank_mask:0xf" % (A + k, A + k, A + k, perm))

    def softmax(G):
        S0, S1 = A, A + 1
        e.i("v_mov_b32 v%d, v%d" % (vT0, S0))
        e.i("v_mov_b32 v%d, v%d" % (vT1, S1))
        e.i("v_lshlrev_b32 v%d, 16, v%d" % (vVS, vVS))
        e.i("v_lshlrev_b32 v%d, 16, v%d" % (vVS + 1, vVS + 1))
        e.i("v_permlane32_swap_b32 v%d, v%d" % (vT0, vT1))
        e.i("v_max_f32 v%d, v%d, v%d" % (vT0, vT0, vT1))
        e.i("v_mov_b32 v%d, v%d" % (vT1, vT0))
        e.i("v_permlane16_swap_b32 v%d, v%d" % (vT0, vT1))
        e.i("v_max_f32 v%d, v%d, v%d" % (vT0, vT0, vT1))
        for rr in (8, 4, 2, 1):
            e.i("v_max_f32_dpp v%d, v%d, v%d row_ror:%d row_mask:0xf bank_mask:0xf" % (vT0, vT0, vT0, rr))
        e.i("v_max_f32 v%d, v%d, v%d" % (vT0, vT0, vM))
        e.i("v_sub_f32 v%d, v%d, v%d" % (vT1, vM, vT0))
        e.i("v_exp_f32 v%d, v%d" % (vT1, vT1))
        e.i("v_mov_b32 v%d, v%d" % (vM, vT0))
        e.i("v_readlane_b32 s%d, v%d, 0" % (sM0, vT0))
        e.i("v_readlane_b32 s%d, v%d, 32" % (sM1, vT0))
        e.i("v_readlane_b32 s%d, v%d, 0" % (sF, vT1))
        e.i("v_readlane_b32 s%d, v%d, 32" % (sF + 1, vT1))
        e.i("v_subrev_f32 v%d, s%d, v%d" % (vP, sM0, S0))
        e.i("v_subrev_f32 v%d, s%d, v%d" % (vP + 1, sM1, S1))
        e.i("v_exp_f32 v%d, v%d" % (vP, vP))
        e.i("v_exp_f32 v%d, v%d" % (vP + 1, vP + 1))
        if G < 8:
            mk = sMask0 if G == 4 else sMaskE
            for k in range(2):
                e.i("v_cndmask_b32 v%d, v%d, 0, s[%d:%d]" % (vP + k, vP + k, mk, mk + 1))
        P = "v[%d:%d]" % (vP, vP + 1)
        PP = "v[%d:%d]" % (vPP, vPP + 1)
        L = "v[%d:%d]" % (vL, vL + 1)
        Z = "v[%d:%d]" % (vZ, vZ + 1)
        VS = "v[%d:%d]" % (vVS, vVS + 1)
        F = "s[%d:%d]" % (sF, sF + 1)
        e.i("v_pk_mul_f32 %s, %s, %s" % (Z, Z, F))
        e.i("v_pk_mul_f32 %s, %s, %s op_sel:[0,0] op_sel_hi:[1,0]" % (PP, P, VS))
        e.i("v_pk_fma_f32 %s, %s, %s, %s" % (L, L, F, P))
        e.i("ds_write_b64 v%d, %s" % (vLdsW, PP))
        e.i("v_pk_fma_f32 %s, %s, %s, %s op_sel:[0,1,0] op_sel_hi:[1,1,1]" % (Z, PP, VS, Z))
        for k in range(G // 2):
            e.i("ds_read_b128 v[%d:%d], v%d offset:%d" % (A + 4 * k, A + 4 * k + 3, vLdsR, 16 * k))
        for sc in range(16):
            e.i("v_pk_mul_f32 %s, %s, %s" % (o(sc), o(sc), F))

    def publish(tag):
        e.i("s_cmp_lt_u32 s%d, s%d" % (sCnt, sTkt))
        e.i("s_cbranch_scc1 L_np%s" % tag)
        e.i("s_mov_b64 exec, 1")
        e.i("ds_write_b32 v%d, v%d offset:%d" % (vT2, vT3, TICKOFF))
        e.i("s_mov_b64 exec, -1")
        e.i("s_waitcnt lgkmcnt(0)")
        e.label("L_np%s" % tag)

    def request(G, tag):
        e.i("s_lshl_b32 s%d, s%d, 9" % (sKoff, sCur))
        e.i("s_lshl_b32 s%d, s%d, 9" % (sVoff, sCur))
        e.i("s_add_u32 s%d, s%d, s%d" % (sXoff, sKoff, sXadd))
        if WSC and G == 8 and not tag.endswith("d"):
            e.i("s_cmp_lg_u32 s%d, s%d" % (sCnt, sFl))
            e.i("s_cbranch_scc1 L_nf%s" % tag)
            e.i("s_mov_b64 exec, 1")
            e.i("buffer_load_dword v%d, v%d, s[%d:%d], 0 offen sc1" % (vFl, vT2, sDBG, sDBG + 3))
            e.i("s_mov_b64 exec, -1")
            e.label("L_nf%s" % tag)
        e.i("s_cmp_lt_u32 s%d, s%d" % (sCnt, sTkt))
        e.i("s_cbranch_scc1 L_nt%s" % tag)
        e.i("v_mov_b32 v%d, 1" % vT3)
        e.i("s_mov_b64 exec, 1")
        if WSC and G == 8 and not tag.endswith("d"):
            e.i("v_readfirstlane_b32 s%d, v%d" % (sT0, vFl))
            e.i("s_cmp_lg_u32 s%d, 0" % sT0)
            e.i("s_cbranch_scc1 L_fo%s" % tag)
            e.i("v_mov_b32 v%d, 1" % vFl)
            e.i("buffer_atomic_add v%d, v%d, s[%d:%d], 0 offen offset:4 sc0" % (vFl, vT2, sDBG, sDBG + 3))
            e.i("s_waitcnt vmcnt(0)")
            e.i("v_readfirstlane_b32 s%d, v%d" % (sT0, vFl))
            e.i("s_cmp_lg_u32 s%d, 0" % sT0)
            e.i("s_cbranch_scc1 L_fs%s" % tag)
            e.i("s_mov_b64 exec, -1")
            e.i("v_mul_u32_u24 v%d, %d, v%d" % (vT0, CSTR, vLane))
            e.i("s_mov_b32 s%d, %d" % (sT0, CB))
            e.i("buffer_store_dword v%d, v%d, s[%d:%d], s%d offen sc1" % (vT2, vT0, sWS, sWS + 3, sT0))
            e.i("s_waitcnt vmcnt(0)")
            e.i("s_mov_b64 exec, 1")
            e.i("buffer_store_dword v%d, v%d, s[%d:%d], 0 offen sc1" % (vT3, vT2, sDBG, sDBG + 3))
            e.i("s_waitcnt vmcnt(0)")
            e.i("s_branch L_fo%s" % tag)
            e.label("L_fs%s" % tag)
            e.i("buffer_load_dword v%d, v%d, s[%d:%d], 0 offen sc1" % (vFl, vT2, sDBG, sDBG + 3))
            e.i("s_waitcnt vmcnt(0)")
            e.i("v_readfirstlane_b32 s%d, v%d" % (sT0, vFl))
            e.i("s_cmp_eq_u32 s%d, 0" % sT0)
            e.i("s_cbranch_scc1 L_fs%s" % tag)
            e.label("L_fo%s" % tag)
        if FAKE in (3, 4):
            if FAKE == 3:
                e.i("s_lshl_b32 s%d, s2, 12" % sT0)
            else:
                e.i("s_lshl_b32 s%d, s%d, 10" % (sT0, sQi))
            e.i("s_add_u32 s%d, s%d, %d" % (sT0, sT0, 12 << 20))
            e.i("buffer_atomic_add v%d, v%d, s[%d:%d], s%d offen sc0" % (vT3, vT2, sWS, sWS + 3, sT0))
        elif FAKE == 5:
            e.i("buffer_load_dword v%d, v%d, s[%d:%d], s%d offen sc1" % (vT3, vT2, sDBG, sDBG + 3, sQi))
        elif FAKE == 6:
            e.i("buffer_atomic_add v%d, v%d, s[%d:%d], s%d offen" % (vT3, vT2, sDBG, sDBG + 3, sQi))
        elif WSC:
            e.i("buffer_atomic_add v%d, v%d, s[%d:%d], s%d offen sc0" % (vT3, vT2, sWS, sWS + 3, sQi))
        else:
            e.i("buffer_atomic_add v%d, v%d, s[%d:%d], s%d offen sc0" % (vT3, vT2, sDBG, sDBG + 3, sQi))
        e.i("s_mov_b64 exec, -1")
        e.label("L_nt%s" % tag)

    def decode(G, q):
        tag = "%d" % G
        if G == 8:
            e.i("s_add_u32 s%d, s%d, 1" % (sCnt, sCnt))
            e.i("s_add_u32 s%d, s%d, %d" % (sCur, sCur, RT))
            e.i("v_add_u32 v%d, %d, v%d" % (vSL, 2 * RT, vSL))
            e.i("s_cmp_lt_u32 s%d, %d" % (sCnt, NS))
            e.i("s_cbranch_scc1 L_noc%s" % tag)
        e.i("v_readfirstlane_b32 s%d, v%d" % (sT0, vTk))
        if FAKE:
            e.i("s_mul_i32 s%d, s%d, %d" % (sT1, sCnt, FROT))
            e.i("s_add_u32 s%d, s%d, s2" % (sT1, sT1))
            e.i("s_and_b32 s%d, s%d, 7" % (sT1, sT1))
            e.i("s_sub_u32 s%d, s%d, %d" % (sT0, sCnt, NS))
            e.i("s_lshl_b32 s%d, s%d, 3" % (sT0, sT0))
            e.i("s_add_u32 s%d, s%d, s%d" % (sT0, sT0, sT1))
        if NB and G == 8:
            e.i("s_lshl_b32 s%d, s%d, 2" % (sSoff, sT0))
        if NB:
            e.i("s_sub_i32 s%d, s%d, %d" % (sT0, sT0, NB))
            e.i("s_max_i32 s%d, s%d, 0" % (sT0, sT0))
        e.i("s_min_u32 s%d, s%d, 62" % (sT0, sT0))
        e.i("s_add_u32 s%d, s%d, 1" % (sT1, sT0))
        e.i("s_nop 3")
        e.i("v_readlane_b32 s%d, v%d, s%d" % (sD0, vTab, sT0))
        e.i("v_readlane_b32 s%d, v%d, s%d" % (sD1, vTab, sT1))
        e.i("s_sub_u32 s%d, s%d, s%d" % (sGn, sD1, sD0))
        if NB and G == 8:
            e.i("s_cmp_lt_u32 s%d, %d" % (sSoff, 4 * NB))
            e.i("s_cselect_b32 s%d, s%d, s%d" % (sD0, sSoff, sD0))
            e.i("s_cselect_b32 s%d, 4, s%d" % (sGn, sGn))
        e.i("s_cmp_eq_u32 s%d, 0" % sGn)
        e.i("s_cbranch_scc1 L_last%s" % tag)
        if MAPD:
            e.i("s_lshr_b32 s%d, s%d, 2" % (sT0, sD0))
            e.i("s_and_b32 s%d, s%d, 7" % (sT0, sT0))
            e.i("s_lshr_b32 s%d, s%d, 5" % (sT1, sD0))
            e.i("s_lshl_b32 s%d, s%d, 2" % (sT1, sT1))
            e.i("s_and_b32 s%d, s%d, 3" % (sD1, sD0))
            e.i("s_add_u32 s%d, s%d, s%d" % (sT1, sT1, sD1))
        elif POW2:
            e.i("s_lshr_b32 s%d, s%d, %d" % (sT0, sD0, DT.bit_length() - 1))
            e.i("s_and_b32 s%d, s%d, %d" % (sT1, sD0, DT - 1))
        else:
            e.i("s_mul_i32 s%d, s%d, %d" % (sT0, sD0, DM))
            e.i("s_lshr_b32 s%d, s%d, %d" % (sT0, sT0, DSH))
            e.i("s_mul_i32 s%d, s%d, %d" % (sT1, sT0, DT))
            e.i("s_sub_u32 s%d, s%d, s%d" % (sT1, sD0, sT1))
        e.i("s_lshl_b32 s%d, s%d, 12" % (sT0, sT0))
        e.i("s_lshl_b32 s%d, s%d, 6" % (sT1, sT1))
        e.i("s_add_u32 s%d, s%d, s%d" % (sCur, sT0, sT1))
        e.i("s_add_u32 s%d, s%d, s%d" % (sCur, sCur, sWoff))
        e.i("s_lshl_b32 s%d, s%d, 7" % (sT0, sGn))
        e.i("s_sub_u32 s%d, s%d, 1" % (sT0, sT0))
        e.i("v_and_b32 v%d, s%d, v%d" % (vSoffD, sT0, vSoff))
        e.i("s_lshl_b32 s%d, s%d, 1" % (sSoff, sCur))
        e.i("s_cmp_eq_u32 s%d, 1" % sGn)
        e.i("s_cselect_b32 s%d, s%d, s%d" % (sX, sV, sK))
        e.i("s_cselect_b32 s%d, s%d, s%d" % (sX + 1, sV + 1, sK + 1))
        e.i("s_cselect_b32 s%d, 0, %d" % (sXadd, 2 * GB))
        e.i("buffer_load_ushort v%d, v%d, s[%d:%d], s%d offen" % (vVSn, vSoffD, sVS, sVS + 3, sSoff))
        e.i("buffer_load_ushort v%d, v%d, s[%d:%d], s%d offen" % (vVSn1, vSoffD, sVZ, sVZ + 3, sSoff))
        if G == 8 and not SPLIT8:
            e.label("L_noc%s" % tag)
        elif EXACT:
            q.append(("G", 0))
            q.append(("G", 1))
        request(G, tag + ("d" if (G == 8 and SPLIT8) else ""))

    def wait_for(q, j):
        idx = q.index(("L", j))
        n_after = len(q) - idx - 1
        assert n_after <= 63
        e.i("s_waitcnt vmcnt(%d)" % n_after)
        del q[:idx + 1]

    def compute(G, j):
        r = ring(j % R)
        for c in range(4):
            e.i("v_cvt_f32_i32 v%d, v%d" % (r + c, r + c))
        isK = j < 4 * G
        jj = j if isK else j - 4 * G
        g, seg = jj // 4, jj % 4
        for c in range(4):
            pr = "v[%d:%d]" % (r + (c & 2), r + (c & 2) + 1)
            b = c & 1
            sc = seg * 4 + c
            if isK:
                if seg == 0 and c == 0:
                    e.i("v_pk_mul_f32 %s, %s, %s op_sel:[%d,0] op_sel_hi:[%d,1]" % (a(g), pr, qs(sc), b, b))
                else:
                    e.i("v_pk_fma_f32 %s, %s, %s, %s op_sel:[%d,0,0] op_sel_hi:[%d,1,1]" % (a(g), pr, qs(sc), a(g), b, b))
            else:
                e.i("v_pk_fma_f32 %s, %s, %s, %s op_sel:[%d,0,0] op_sel_hi:[%d,1,1]" % (o(sc), pr, a(g), o(sc), b, b))

    def issue(G, q, j, last):
        nj = j + 16
        if nj < 8 * G:
            issue_own(G, nj)
            q.append(("L", nj))
        elif not last:
            issue_next(nj - 8 * G)
            q.append(("N", nj - 8 * G))

    def reduce_k(G, j):
        if j < 4 * G and j % 4 == 3:
            g = j // 4
            if g % 2 == 1:
                stepA(g - 1, g)
            if g % 4 == 3:
                stepQ(g - 3, g - 1, sMask1, "quad_perm:[2,3,0,1]", A + 2 * (g - 3))
            if g == 7:
                stepQ(0, 4, sMask0, "quad_perm:[1,0,3,2]", A)
            if G == 4 and g == 3:
                stepP("quad_perm:[1,0,3,2]")
            if G == 2 and g == 1:
                stepP("quad_perm:[2,3,0,1]")
                stepP("quad_perm:[1,0,3,2]")

    def do_softmax(G):
        e.i("s_waitcnt lgkmcnt(0)")
        if STAMP == 2:
            e.i("s_memrealtime s[96:97]")
        softmax(G)
        e.i("s_waitcnt lgkmcnt(0)")
        if STAMP == 2:
            e.i("s_mov_b32 m0, s98")
            e.i("s_add_u32 s98, s98, 1")
            e.i("s_and_b32 s98, s98, 63")
            e.i("s_and_b32 s96, s96, 0xfffffffc")
            e.i("s_or_b32 s96, s96, %d" % {8: 0, 4: 1, 2: 2}[G])
            e.i("v_writelane_b32 v%d, s96, m0" % vStamp)

    def step(G, q, j, last, skip_pre=False):
        if not skip_pre:
            if j % BAR == 0 and (not last or LASTBAR):
                e.i("s_barrier")
            if j == 8 and G >= 4:
                e.i("ds_read_b32 v%d, v%d offset:%d" % (vTk, vT2, TICKOFF))
            if G == 8 and j == 20:
                e.i("s_cmp_ge_u32 s%d, %d" % (sCnt, NS))
                e.i("s_cbranch_scc1 L_nsr")
                e.i("ds_read_u16 v%d, v%d offset:%d" % (vVS, vSL, SCB))
                e.i("ds_read_u16 v%d, v%d offset:%d" % (vVS + 1, vSL, SCB + 8192))
                e.label("L_nsr")
        if j == 4 * G:
            do_softmax(G)
        wait_for(q, j)
        if j == 0:
            e.i("v_mov_b32 v%d, v%d" % (vVS, vVSn))
            e.i("v_mov_b32 v%d, v%d" % (vVS + 1, vVSn1))
            publish("%d" % G)
        compute(G, j)
        issue(G, q, j, last)
        reduce_k(G, j)

    def dispatch(G):
        if G == 8:
            e.i("s_cmp_eq_u32 s%d, 4" % sGn)
            e.i("s_cbranch_scc1 L_body8")
        if G >= 4:
            e.i("s_cmp_eq_u32 s%d, 2" % sGn)
            e.i("s_cbranch_scc1 L_body4")
        e.i("s_branch L_body2")

    assert NS >= 3
    lasts = []
    for G in (8, 4):
        e.label("L_body%d" % G)
        q = [("L", j) for j in range(16)]
        JD = 8 * G - 16
        for j in range(JD):
            step(G, q, j, False)
        e.i("s_barrier")
        e.i("s_waitcnt lgkmcnt(0)")
        ql = list(q)
        decode(G, q)
        for j in range(JD, 8 * G):
            step(G, q, j, False, skip_pre=(j == JD))
        dispatch(G)
        if G == 8 and SPLIT8:
            e.label("L_noc8")
            qs_ = list(ql)
            request(G, "8")
            for j in range(JD, 8 * G):
                step(G, qs_, j, False, skip_pre=(j == JD))
            e.i("s_branch L_body8")
        lasts.append((G, ql, JD))
    G = 2
    e.label("L_body2")
    q = [("L", j) for j in range(16)]
    wait_for(q, 0)
    e.i("v_mov_b32 v%d, v%d" % (vVS, vVSn))
    e.i("v_mov_b32 v%d, v%d" % (vVS + 1, vVSn1))
    publish("2")
    e.i("s_barrier")
    e.i("ds_read_b32 v%d, v%d offset:%d" % (vTk, vT2, TICKOFF))
    compute(G, 0)
    e.i("s_waitcnt lgkmcnt(0)")
    ql = list(q)
    decode(G, q)
    issue(G, q, 0, False)
    for j in range(1, 16):
        step(G, q, j, False)
    dispatch(G)
    for (G_, ql_, JD) in lasts:
        e.label("L_last%d" % G_)
        for j in range(JD, 8 * G_):
            step(G_, ql_, j, True, skip_pre=(j == JD))
        e.i("s_branch L_epi")
    e.label("L_last2")
    for j in range(1, 16):
        step(2, ql, j, True)
    e.label("L_epi")
    if STAMP:
        e.i("s_memrealtime s[90:91]")
        e.i("s_getreg_b32 s92, hwreg(HW_REG_XCC_ID)")
        e.i("s_getreg_b32 s93, hwreg(HW_REG_HW_ID)")
        e.i("s_waitcnt lgkmcnt(0)")
        e.i("v_mov_b32 v%d, s88" % (A + 8))
        e.i("v_mov_b32 v%d, s90" % (A + 9))
        e.i("v_mov_b32 v%d, s92" % (A + 10))
        e.i("v_mov_b32 v%d, s93" % (A + 11))
        e.i("s_lshl_b32 s%d, s%d, 4" % (sT0, sGW))
        e.i("s_add_u32 s%d, s%d, %d" % (sT0, sT0, 8 << 20))
        e.i("v_mov_b32 v%d, 0" % (A + 12))
        e.i("buffer_store_dwordx4 v[%d:%d], v%d, s[%d:%d], s%d offen" % (A + 8, A + 11, A + 12, sWS, sWS + 3, sT0))
        if STAMP >= 2:
            e.i("s_lshl_b32 s%d, s%d, 8" % (sT0, sGW))
            e.i("s_add_u32 s%d, s%d, %d" % (sT0, sT0, 9 << 20))
            e.i("v_lshlrev_b32 v%d, 2, v%d" % (A + 13, vLane))
            e.i("buffer_store_dword v%d, v%d, s[%d:%d], s%d offen" % (vStamp, A + 13, sWS, sWS + 3, sT0))
    e.i("v_permlane32_swap_b32 v%d, v%d" % (vL, vL + 1))
    e.i("v_permlane32_swap_b32 v%d, v%d" % (vZ, vZ + 1))
    e.i("v_add_f32 v%d, v%d, v%d" % (vL, vL, vL + 1))
    e.i("v_add_f32 v%d, v%d, v%d" % (vZ, vZ, vZ + 1))
    e.i("v_permlane16_swap_b32 v%d, v%d" % (vL, vZ))
    e.i("v_add_f32 v%d, v%d, v%d" % (vL, vL, vZ))
    for rr in (8, 4, 2, 1):
        e.i("v_add_f32_dpp v%d, v%d, v%d row_ror:%d row_mask:0xf bank_mask:0xf" % (vL, vL, vL, rr))
    e.i("v_readlane_b32 s%d, v%d, 0" % (sL0, vL))
    e.i("v_readlane_b32 s%d, v%d, 16" % (sZ0, vL))
    e.i("v_readlane_b32 s%d, v%d, 32" % (sL1, vL))
    e.i("v_readlane_b32 s%d, v%d, 48" % (sZ1, vL))
    for sc in range(16):
        e.i("v_permlane32_swap_b32 v%d, v%d" % (O + 2 * sc, O + 2 * sc + 1))
    for sc in range(16):
        e.i("v_add_f32 v%d, v%d, v%d" % (O + 2 * sc, O + 2 * sc, O + 2 * sc + 1))
    for sc in range(8):
        e.i("v_permlane16_swap_b32 v%d, v%d" % (O + 2 * sc, O + 2 * (sc + 8)))
    for sc in range(8):
        e.i("v_add_f32 v%d, v%d, v%d" % (O + 2 * sc, O + 2 * sc, O + 2 * (sc + 8)))
    for sc in range(4):
        e.i("v_add_f32_dpp v%d, v%d, v%d row_ror:8 row_mask:0xf bank_mask:0x3" % (A + sc, O + 2 * sc, O + 2 * sc))
    for sc in range(4):
        e.i("v_add_f32_dpp v%d, v%d, v%d row_ror:8 row_mask:0xf bank_mask:0xc" % (A + sc, O + 2 * (sc + 4), O + 2 * (sc + 4)))
    e.i("s_mov_b32 s%d, 0" % sEx)
    e.i("s_mov_b32 s%d, -1" % (sEx + 1))
    e.i("v_mov_b32 v%d, s%d" % (vT0, sZ0))
    e.i("v_mov_b32 v%d, s%d" % (vT1, sZ1))
    e.i("v_cndmask_b32 v%d, v%d, v%d, s[%d:%d]" % (vT0, vT0, vT1, sEx, sEx + 1))
    for sc in range(4):
        e.i("v_sub_f32 v%d, v%d, v%d" % (A + sc, A + sc, vT0))
    e.i("v_mov_b32 v%d, s%d" % (vT0, sC0))
    e.i("v_mov_b32 v%d, s%d" % (vT1, sC1))
    e.i("v_cndmask_b32 v%d, v%d, v%d, s[%d:%d]" % (vT0, vT0, vT1, sEx, sEx + 1))
    e.i("v_sub_f32 v%d, v%d, v%d" % (vP, vM, vT0))
    e.i("v_mov_b32 v%d, s%d" % (vT0, sL0))
    e.i("v_mov_b32 v%d, s%d" % (vT1, sL1))
    e.i("v_cndmask_b32 v%d, v%d, v%d, s[%d:%d]" % (vP + 1, vT0, vT1, sEx, sEx + 1))
    OB = WPW * 512
    MB = OB + WPW * 1024
    LDS = MB + WPW * 16 + 16 + 16384
    e.i("s_lshl_b32 s%d, s%d, 10" % (sT0, sWave))
    e.i("v_lshlrev_b32 v%d, 4, v%d" % (vT2, vLane))
    e.i("v_add_u32 v%d, s%d, v%d" % (vT0, sT0, vT2))
    e.i("ds_write_b128 v%d, v[%d:%d] offset:%d" % (vT0, A, A + 3, OB))
    e.i("s_lshl_b32 s%d, s%d, 4" % (sT0, sWave))
    e.i("v_lshrrev_b32 v%d, 5, v%d" % (vT3, vLane))
    e.i("v_lshlrev_b32 v%d, 3, v%d" % (vT3, vT3))
    e.i("v_add_u32 v%d, s%d, v%d" % (vT1, sT0, vT3))
    e.i("ds_write_b64 v%d, v[%d:%d] offset:%d" % (vT1, vP, vP + 1, MB))
    e.i("s_waitcnt lgkmcnt(0)")
    if True:
        e.i("v_mov_b32 v%d, 0" % vT0)
        e.i("v_mov_b32 v%d, 1" % vT1)
        e.i("s_mov_b64 exec, 1")
        e.i("ds_add_rtn_u32 v%d, v%d, v%d offset:%d" % (vT1, vT0, vT1, CNTOFF))
        e.i("s_mov_b64 exec, -1")
        e.i("s_waitcnt lgkmcnt(0)")
        e.i("v_readfirstlane_b32 s%d, v%d" % (sT0, vT1))
        e.i("s_cmp_lg_u32 s%d, %d" % (sT0, WPW - 1))
        e.i("s_cbranch_scc1 L_done1")
    assert WPW <= 16
    for w in range(WPW):
        e.i("ds_read_b64 v[%d:%d], v%d offset:%d" % (QS + 2 * w, QS + 2 * w + 1, vT3, MB + 16 * w))
    OT = O
    assert O + 4 * WPW <= NV
    for w in range(WPW):
        e.i("ds_read_b128 v[%d:%d], v%d offset:%d" % (OT + 4 * w, OT + 4 * w + 3, vT2, OB + 1024 * w))
    e.i("s_waitcnt lgkmcnt(0)")
    e.i("v_mov_b32 v%d, v%d" % (vT0, QS))
    for w in range(1, WPW):
        e.i("v_max_f32 v%d, v%d, v%d" % (vT0, vT0, QS + 2 * w))
    for w in range(WPW):
        e.i("v_sub_f32 v%d, v%d, v%d" % (QS + 2 * w, QS + 2 * w, vT0))
    for w in range(WPW):
        e.i("v_exp_f32 v%d, v%d" % (QS + 2 * w, QS + 2 * w))
    e.i("v_mul_f32 v%d, v%d, v%d" % (vT1, QS, QS + 1))
    for w in range(1, WPW):
        e.i("v_fmac_f32 v%d, v%d, v%d" % (vT1, QS + 2 * w, QS + 2 * w + 1))
    for c in range(4):
        e.i("v_mul_f32 v%d, v%d, v%d" % (OT + c, OT + c, QS))
    for w in range(1, WPW):
        for c in range(4):
            e.i("v_fmac_f32 v%d, v%d, v%d" % (OT + c, OT + 4 * w + c, QS + 2 * w))
    MLB = 32 * NSPLIT * 512
    e.i("s_lshl_b32 s%d, s%d, %d" % (sT0, sKVH, LOG_NSPLIT + 1))
    e.i("s_add_u32 s%d, s%d, s%d" % (sT0, sT0, sSplit))
    e.i("v_lshrrev_b32 v%d, 5, v%d" % (vT3, vLane))
    e.i("v_lshlrev_b32 v%d, %d, v%d" % (vT3, LOG_NSPLIT, vT3))
    e.i("v_add_u32 v%d, s%d, v%d" % (vT3, sT0, vT3))
    e.i("v_and_b32 v%d, 31, v%d" % (vT2, vLane))
    e.i("v_lshlrev_b32 v%d, 4, v%d" % (vT2, vT2))
    e.i("v_lshl_add_u32 v%d, v%d, 9, v%d" % (vT2, vT3, vT2))
    scf = " sc1" if FUSE else ""
    if STAMP and FUSE:
        e.i("s_memrealtime s[12:13]")
    e.i("buffer_store_dwordx4 v[%d:%d], v%d, s[%d:%d], 0 offen%s" % (OT, OT + 3, vT2, sWS, sWS + 3, scf))
    e.i("v_lshlrev_b32 v%d, 3, v%d" % (vT3, vT3))
    e.i("s_mov_b32 s%d, %d" % (sT1, MLB))
    e.i("buffer_store_dwordx2 v[%d:%d], v%d, s[%d:%d], s%d offen%s" % (vT0, vT1, vT3, sWS, sWS + 3, sT1, scf))
    if FUSE:
        pass
        vA, vB, vC = vP, vP + 1, vPP
        e.i("s_lshl_b32 s%d, s%d, 9" % (sT0, sSplit))
        e.i("v_subrev_u32 v%d, s%d, v%d" % (vB, sT0, vT2))
        e.i("s_lshl_b32 s%d, s%d, 3" % (sT0, sSplit))
        e.i("v_subrev_u32 v%d, s%d, v%d" % (vC, sT0, vT3))
        if WSC:
            e.i("s_mul_i32 s%d, s%d, %d" % (sT0, sKVH, CSTR))
            e.i("s_add_u32 s%d, s%d, %d" % (sT0, sT0, CB + 32 * CSTR))
        else:
            e.i("s_lshl_b32 s%d, s%d, 2" % (sT0, sKVH))
            e.i("s_add_u32 s%d, s%d, 128" % (sT0, sT0))
        e.i("v_mov_b32 v%d, 1" % vA)
        e.i("v_mov_b32 v%d, 0" % vM)
        e.i("s_waitcnt vmcnt(0)")
        if STAMP:
            e.i("s_memrealtime s[14:15]")
        e.i("s_mov_b64 exec, 1")
        sCT = sWS if WSC else sDBG
        e.i("buffer_atomic_add v%d, v%d, s[%d:%d], s%d offen sc0" % (vA, vM, sCT, sCT + 3, sT0))
        e.i("s_mov_b64 exec, -1")
        e.i("s_waitcnt vmcnt(0)")
        if STAMP:
            e.i("s_memrealtime s[16:17]")
            e.i("s_waitcnt lgkmcnt(0)")
            e.i("v_mov_b32 v%d, s12" % (A + 8))
            e.i("v_mov_b32 v%d, s14" % (A + 9))
            e.i("v_mov_b32 v%d, s16" % (A + 10))
            e.i("v_mov_b32 v%d, 0" % (A + 11))
            e.i("s_lshl_b32 s18, s2, 4")
            e.i("s_add_u32 s18, s18, %d" % (10 << 20))
            e.i("v_mov_b32 v%d, 0" % (A + 12))
            e.i("buffer_store_dwordx4 v[%d:%d], v%d, s[%d:%d], s18 offen" % (A + 8, A + 11, A + 12, sWS, sWS + 3))
        e.i("v_readfirstlane_b32 s%d, v%d" % (sT0, vA))
        e.i("s_cmp_lg_u32 s%d, %d" % (sT0, NSPLIT - 1))
        e.i("s_cbranch_scc1 L_done1")
        for t in range(NSPLIT):
            e.i("buffer_load_dwordx2 v[%d:%d], v%d, s[%d:%d], s%d offen offset:%d sc1" % (QS + 2 * t, QS + 2 * t + 1, vC, sWS, sWS + 3, sT1, 8 * t))
        e.i("s_mov_b32 s%d, 4096" % sT0)
        for t in range(NSPLIT):
            e.i("buffer_load_dwordx4 v[%d:%d], v%d, s[%d:%d], %s offen offset:%d sc1" % (RING + 4 * t, RING + 4 * t + 3, vB, sWS, sWS + 3, "0" if t < 8 else "s%d" % sT0, (t % 8) * 512))
        e.i("s_mov_b32 s%d, s%d" % (sK, pout))
        e.i("s_mov_b32 s%d, s%d" % (sK + 1, pout + 1))
        e.i("s_mov_b32 s%d, 8192" % (sK + 2))
        e.i("s_mov_b32 s%d, 0x00020000" % (sK + 3))
        e.i("s_lshl_b32 s%d, s%d, 9" % (sT0, sKVH))
        e.i("v_lshlrev_b32 v%d, 3, v%d" % (vT2, vLane))
        e.i("s_waitcnt vmcnt(%d)" % NSPLIT)
        e.i("v_mov_b32 v%d, v%d" % (vT0, QS))
        for w in range(1, NSPLIT):
            e.i("v_max_f32 v%d, v%d, v%d" % (vT0, vT0, QS + 2 * w))
        for w in range(NSPLIT):
            e.i("v_sub_f32 v%d, v%d, v%d" % (QS + 2 * w, QS + 2 * w, vT0))
        for w in range(NSPLIT):
            e.i("v_exp_f32 v%d, v%d" % (QS + 2 * w, QS + 2 * w))
        e.i("v_mul_f32 v%d, v%d, v%d" % (vT1, QS, QS + 1))
        for w in range(1, NSPLIT):
            e.i("v_fmac_f32 v%d, v%d, v%d" % (vT1, QS + 2 * w, QS + 2 * w + 1))
        e.i("v_rcp_f32 v%d, v%d" % (vT1, vT1))
        e.i("s_waitcnt vmcnt(0)")
        for c in range(4):
            e.i("v_mul_f32 v%d, v%d, v%d" % (RING + c, RING + c, QS))
        for w in range(1, NSPLIT):
            for c in range(4):
                e.i("v_fmac_f32 v%d, v%d, v%d" % (RING + c, RING + 4 * w + c, QS + 2 * w))
        for c in range(4):
            e.i("v_mul_f32 v%d, v%d, v%d" % (RING + c, RING + c, vT1))
        e.i("v_cvt_pk_bf16_f32 v%d, v%d, v%d" % (RING, RING, RING + 1))
        e.i("v_cvt_pk_bf16_f32 v%d, v%d, v%d" % (RING + 1, RING + 2, RING + 3))
        e.i("buffer_store_dwordx2 v[%d:%d], v%d, s[%d:%d], s%d offen" % (RING, RING + 1, vT2, sK, sK + 3, sT0))
        if STAMP:
            e.i("s_memrealtime s[16:17]")
            e.i("s_waitcnt lgkmcnt(0)")
            e.i("v_mov_b32 v%d, s16" % (A + 8))
            e.i("v_mov_b32 v%d, 0" % (A + 12))
            e.i("buffer_store_dword v%d, v%d, s[%d:%d], s18 offen offset:12" % (A + 8, A + 12, sWS, sWS + 3))
    e.raw("L_done1:")
    e.i("s_endpgm")
    if WSC:
        e.label("L_init")
        e.i("s_cmp_lg_u32 s2, %d" % (NWG if WSC == 1 else 100000))
        e.i("s_cbranch_scc1 L_done1")
        e.i("v_readfirstlane_b32 s%d, v0" % sT0)
        e.i("s_cmp_lg_u32 s%d, 0" % sT0)
        e.i("s_cbranch_scc1 L_done1")
        e.i("s_load_dwordx4 s[%d:%d], s[0:1], 64" % (sPtr + 16, sPtr + 19))
        e.i("v_mul_u32_u24 v2, %d, v0" % CSTR)
        e.i("v_mov_b32 v3, 0")
        e.i("v_mov_b32 v4, 1")
        e.i("s_mov_b32 s%d, %d" % (sT1, CB))
        for srd, n in ((sWS, 1 << 24), (sDBG, 256)):
            e.i("s_mov_b32 s%d, %d" % (srd + 2, n))
            e.i("s_mov_b32 s%d, 0x00020000" % (srd + 3))
        e.i("s_waitcnt lgkmcnt(0)")
        for srd, p_ in ((sWS, pws), (sDBG, pdbg)):
            e.i("s_mov_b32 s%d, s%d" % (srd, p_))
            e.i("s_mov_b32 s%d, s%d" % (srd + 1, p_ + 1))
        e.i("v_mov_b32 v5, 1")
        e.i("s_mov_b64 exec, 1")
        e.i("buffer_atomic_add v5, v3, s[%d:%d], 0 offen offset:4 sc0" % (sDBG, sDBG + 3))
        e.i("s_mov_b64 exec, -1")
        e.i("s_waitcnt vmcnt(0)")
        e.i("v_readfirstlane_b32 s%d, v5" % sT0)
        e.i("s_cmp_lg_u32 s%d, 0" % sT0)
        e.i("s_cbranch_scc1 L_done1")
        e.i("buffer_store_dword v3, v2, s[%d:%d], s%d offen sc1" % (sWS, sWS + 3, sT1))
        e.i("s_waitcnt vmcnt(0)")
        e.i("s_mov_b64 exec, 1")
        e.i("buffer_store_dword v4, v3, s[%d:%d], 0 offen sc1" % (sDBG, sDBG + 3))
        e.i("s_endpgm")
    k1 = e.text()


    hdr = open("cdna_kernels/%s.s.ref" % NAME).read().split("; Override launch geometry")[0]
    out = hdr
    if not LIST:
        out += "; @launch grid=(%d,1,1) block=(%d,1,1) lds=%d\n" % (NWG + (1 if WSC else 0), WPW * 64, LDS)
    else:
        out += "; @launch kernel=%s_kernel grid=(%d,1,1) block=(%d,1,1) lds=%d\n" % (NAME, NWG + (1 if WSC else 0), WPW * 64, LDS)
    out += '.amdgcn_target "amdgcn-amd-amdhsa--gfx950"\n.text\n'
    out += ".globl %s_kernel\n.p2align 8\n.type %s_kernel,@function\n" % (NAME, NAME)
    out += k1
    out += '.section .rodata,"a"\n'
    out += (".p2align 6\n.amdhsa_kernel %s\n  .amdhsa_next_free_vgpr %d\n  .amdhsa_next_free_sgpr %d\n"
            "  .amdhsa_accum_offset %d\n  .amdhsa_group_segment_fixed_size 0\n  .amdhsa_kernarg_size 80\n"
            "  .amdhsa_user_sgpr_count 2\n  .amdhsa_user_sgpr_kernarg_segment_ptr 1\n"
            "  .amdhsa_system_sgpr_workgroup_id_x 1\n.end_amdhsa_kernel\n") % (NAME + "_kernel", VG, 100, (VG + 3) // 4 * 4)
    mv = max([int(x) for x in re.findall(r"\bv(\d+)\b", k1)] + [int(x) for x in re.findall(r"v\[\d+:(\d+)\]", k1)])
    ms = max([int(x) for x in re.findall(r"\bs(\d+)\b", k1)] + [int(x) for x in re.findall(r"s\[\d+:(\d+)\]", k1)])
    assert mv < VG <= 256 and ms < 100, (mv, VG, ms)
    return out


def parse_gs(s):
    out = []
    for part in s.split(","):
        if "x" in part:
            v, n = part.split("x")
            out += [int(v)] * int(n)
        else:
            out.append(int(part))
    return out


if __name__ == "__main__":
    ap = argparse.ArgumentParser()
    ap.add_argument("--gs", default="4x8,2x8,1x16")
    ap.add_argument("--ns", type=int, default=14)
    ap.add_argument("--stamp", type=int, default=0)
    ap.add_argument("--list", type=int, default=1)
    ap.add_argument("--exact", type=int, default=1)
    ap.add_argument("--lastbar", type=int, default=0)
    ap.add_argument("--mapd", type=int, default=0)
    ap.add_argument("--fake", type=int, default=0)
    ap.add_argument("--frot", type=int, default=0)
    ap.add_argument("--wsc", type=int, default=0)
    ap.add_argument("--split8", type=int, default=0)
    ap.add_argument("--cstr", type=int, default=4096)
    ap.add_argument("-o", required=True)
    a_ = ap.parse_args()
    s = gen(GS=parse_gs(a_.gs), NS=a_.ns, STAMP=a_.stamp, LIST=a_.list, EXACT=a_.exact, LASTBAR=a_.lastbar, MAPD=a_.mapd, FAKE=a_.fake, FROT=a_.frot, WSC=a_.wsc, SPLIT8=a_.split8, CSTR=a_.cstr)
    open(a_.o, "w").write(s)
    print("wrote", a_.o, len(s), "bytes")
```

```python
import re
import sys
import struct
import argparse

NAME = "standalone__kv_cache_quant_int4_int2_kv_with_per_channel_or_per_token_scales__decode"


def f2u(x):
    return struct.unpack("<I", struct.pack("<f", x))[0]


REG_RE = re.compile(r"\b([vs])(\d+)\b|\b([vs])\[(\d+):(\d+)\]|\b(vcc)\b")


def regs_of(op):
    out = set()
    for m in REG_RE.finditer(op):
        if m.group(1):
            out.add((m.group(1), int(m.group(2))))
        elif m.group(3):
            for r in range(int(m.group(4)), int(m.group(5)) + 1):
                out.add((m.group(3), r))
        else:
            out.add(("vcc", 0))
    return out


TRANS = ("v_exp_f32", "v_log_f32", "v_rcp_f32", "v_rsq_f32", "v_sqrt_f32")


class Emit:
    def __init__(self):
        self.lines = []
        self.hist = []

    def raw(self, s):
        self.lines.append(s)

    def label(self, s):
        self.i("s_nop 4")
        self.lines.append(s + ":")
        self.hist = []

    def comment(self, s):
        self.lines.append("    ; " + s)

    def i(self, text):
        text = text.strip()
        mn = text.split()[0]
        rest = text[len(mn):].strip()
        ops = [o.strip() for o in rest.split(",")] if rest else []
        clean = []
        for o in ops:
            clean.append(o.split()[0] if o.split() else o)
        ops = clean
        is_valu = mn.startswith("v_")
        is_vmem = mn.startswith("buffer_") or mn.startswith("global_")
        is_dpp = "_dpp" in mn
        is_perm = mn.startswith("v_permlane")
        is_rl = mn.startswith("v_readlane") or mn.startswith("v_readfirstlane")
        writes, reads = set(), set()
        if is_valu:
            if is_perm:
                writes = regs_of(ops[0]) | regs_of(ops[1])
                reads = set(writes)
            else:
                writes = regs_of(ops[0])
                for o in ops[1:]:
                    reads |= regs_of(o)
                if "fmac" in mn or is_dpp:
                    reads |= regs_of(ops[0])
                if mn.startswith("v_cndmask") and len(ops) == 3:
                    reads.add(("vcc", 0))
        elif is_vmem:
            for o in ops:
                reads |= regs_of(o)
        elif mn.startswith("ds_"):
            for o in ops:
                reads |= regs_of(o)
        else:
            for o in ops:
                reads |= regs_of(o)
        need = 0
        for dist, h in enumerate(reversed(self.hist)):
            req = 0
            if h["valu"]:
                vw = {r for r in h["writes"] if r[0] == "v"}
                sw = {r for r in h["writes"] if r[0] in ("s", "vcc")}
                if (is_dpp or is_perm) and (vw & reads):
                    req = max(req, 2)
                if is_rl and (vw & reads):
                    req = max(req, 1)
                if is_valu and (sw & reads):
                    req = max(req, 4 if is_rl else 2)
                if is_vmem and (sw & reads):
                    req = max(req, 5)
                if (not is_valu) and (not is_vmem) and (sw & reads):
                    req = max(req, 4)
                if h["trans"] and is_valu and (vw & reads):
                    req = max(req, 1)
            if h["wide_store"] and is_valu and (h["reads"] & writes):
                req = max(req, 2)
            need = max(need, req - h["after"])
        if need > 0:
            self._push("s_nop %d" % (need - 1), need, dict(valu=False, writes=set(), reads=set(), trans=False, wide_store=False))
        wide = is_vmem and "store" in mn and ("x4" in mn or "x3" in mn)
        self._push(text, 1, dict(valu=is_valu, writes=writes, reads=reads, trans=mn.startswith(TRANS), wide_store=wide))

    def _push(self, text, states, info):
        if text.startswith("s_nop"):
            states = int(text.split()[1]) + 1
        for h in self.hist:
            h["after"] += states
        info["after"] = 0
        self.hist.append(info)
        self.hist = [h for h in self.hist if h["after"] < 8]
        self.lines.append("    " + text)

    def text(self):
        return "\n".join(self.lines) + "\n"


def gen(BAR=8, GS=None, NS=14, STAMP=0, LIST=1, EXACT=1, LASTBAR=0, MAPD=0, FAKE=0, FROT=0, WSC=0, SPLIT8=0, CSTR=4096, GOFF=0, PLS=0, LATE=0):
    R = 16
    WPW = 4
    NWG = 256
    NSPLIT = 16
    LOG_WPW = 2
    LOG_NSPLIT = 4
    CSCALE = (128.0 ** -0.5) * 1.4426950408889634
    ntf = " nt"
    assert BAR == 8
    D0 = 16

    e = Emit()
    vLoff, vSoff, vLdsW, vLdsR = 0, 1, 2, 3
    vM = 4
    vT0, vT1, vT2 = 6, 7, 5
    vL = 8
    vZ = 10
    vVS = 12
    vP = 14
    vPP = 16
    vLane = 18
    vT3 = 19
    QS = 20
    O = 52
    A = 84
    RING = 100
    NV = RING + 4 * R
    vStamp = NV
    if STAMP >= 2:
        NV += 1
    vTk, vSL, vTab, vSoffD, vVSn, vVSn1, vFl = range(NV, NV + 7)
    NV += 7
    CB = 12 << 20
    VG = max(NV, RING + 64)
    DT = (16 - NS) * 4
    assert DT >= 4
    assert sum(GS) == 8 * DT and all(x in (1, 2, 4) for x in GS) and all(GS[k] >= GS[k + 1] for k in range(len(GS) - 1))
    st = [0]
    for n_ in GS:
        st.append(st[-1] + n_)
    assert all(st[k] % GS[k] == 0 for k in range(len(GS)))
    NB = 0
    if len(GS) > 60:
        NB = sum(1 for x in GS if x == 4)
        st = st[NB:]
        assert len(st) <= 61
    POW2 = DT & (DT - 1) == 0
    if not POW2:
        DSH = 16
        DM = (1 << DSH) // DT + 1
        assert all((u * DM) >> DSH == u // DT for u in range(8 * DT + 1))
    TICKOFF = WPW * 512 + WPW * 1024 + WPW * 16
    SCB = TICKOFF + 16
    PR = DT * 128
    VZD = 8192 + (8 * PR if PLS else 0)
    if PLS:
        GOFF = 1
    CNTOFF = TICKOFF + 4
    RT = 64 * WPW
    GSTR = 8 * WPW
    GB = GSTR * 512
    NSL = 2 if NS > 8 else 1

    def qs(sc):
        return "v[%d:%d]" % (QS + 2 * sc, QS + 2 * sc + 1)

    def o(sc):
        return "v[%d:%d]" % (O + 2 * sc, O + 2 * sc + 1)

    def a(i):
        return "v[%d:%d]" % (A + 2 * i, A + 2 * i + 1)

    def ring(slot):
        return RING + 4 * slot

    sK, sV, sVS, sVZ = 8, 12, 16, 20
    sQ, sKS, sKZ, sWS = 24, 28, 32, 36
    sX = 24
    sXoff, sGn, sXadd = 28, 29, 30
    sMaskE = 32
    sWoff = 34
    sFl = 35
    sPW = 31
    sKoff, sVoff, sSoff, sCnt = 40, 41, 42, 43
    sMask1, sMask0 = 44, 46
    sM0, sM1 = 48, 49
    sF = 50
    sC0, sC1 = 52, 53
    sWave, sGW, sKVH, sRB, sT0, sT1 = 54, 55, 56, 57, 58, 59
    sPtr = 60
    sL0, sZ0, sL1, sZ1 = 80, 81, 82, 83
    sSplit = 84
    sEx = 86
    sQi = 94
    sDBG = 4
    sCur, sTkt, sD0, sD1, sBar = 95, 85, 91, 92, 93

    def load(slot, srd, so, seg, extra=()):
        r = ring(slot)
        e.i("buffer_load_dwordx4 v[%d:%d], v%d, s[%d:%d], s%d offen offset:%d%s" % (r, r + 3, vLoff, srd, srd + 3, so, seg * 128, ntf))
        if seg == 3:
            for s_ in (so,) + tuple(extra):
                e.i("s_add_u32 s%d, s%d, %d" % (s_, s_, GB))

    def issue_own(G, j):
        if j < 4 * G:
            load(j % R, sK, sKoff, j % 4)
        else:
            load(j % R, sV, sVoff, j % 4)

    def issue_next(i):
        if i < 8:
            load(i % R, sK, sKoff, i % 4)
        else:
            load(i % R, sX, sXoff, i % 4, extra=(sKoff,))

    pq, pqk, pqv, pks, pkz, pvs, pvz, pout, pdbg, pws = [sPtr + 2 * k for k in range(10)]

    e.raw("%s_kernel:" % NAME)
    e.i("s_cmp_ge_u32 s2, %d" % NWG)
    e.i("s_cbranch_scc1 %s" % ("L_init" if WSC else "L_done1"))
    if STAMP:
        e.i("s_memrealtime s[88:89]")
    e.i("s_load_dwordx16 s[%d:%d], s[0:1], 0" % (sPtr, sPtr + 15))
    e.i("s_load_dwordx4 s[%d:%d], s[0:1], 64" % (sPtr + 16, sPtr + 19))
    e.i("v_lshrrev_b32 v%d, 6, v0" % vT0)
    e.i("v_and_b32 v%d, 63, v0" % vLane)
    e.i("v_readfirstlane_b32 s%d, v%d" % (sWave, vT0))
    e.i("v_lshrrev_b32 v%d, 3, v%d" % (vT0, vLane))
    e.i("v_and_b32 v%d, 7, v%d" % (vT1, vLane))
    e.i("v_lshlrev_b32 v%d, 9, v%d" % (vLoff, vT0))
    e.i("v_lshl_add_u32 v%d, v%d, 4, v%d" % (vLoff, vT1, vLoff))
    e.i("s_lshr_b32 s%d, s2, 3" % sQi)
    e.i("s_lshl_b32 s%d, s%d, 24" % (sRB, sQi))
    e.i("s_and_b32 s%d, s2, 7" % sT0)
    e.i("s_lshl_b32 s%d, s%d, 12" % (sT0, sT0))
    e.i("s_lshl_b32 s%d, s%d, 3" % (sCur, sWave))
    e.i("s_add_u32 s%d, s%d, s%d" % (sCur, sCur, sT0))
    e.i("s_lshl_b32 s%d, s%d, 9" % (sKoff, sCur))
    e.i("s_lshl_b32 s%d, s%d, 9" % (sVoff, sCur))
    for srd in (sK, sV):
        e.i("s_mov_b32 s%d, %d" % (srd + 2, 32768 * 512))
        e.i("s_mov_b32 s%d, 0x00020000" % (srd + 3))
    e.i("v_lshrrev_b32 v%d, 2, v%d" % (vT2, vT1))
    e.i("v_and_b32 v%d, 2, v%d" % (vT3, vT1))
    e.i("v_add_u32 v%d, v%d, v%d" % (vT2, vT2, vT3))
    e.i("v_and_b32 v%d, 1, v%d" % (vT3, vT1))
    e.i("v_lshl_add_u32 v%d, v%d, 2, v%d" % (vT2, vT3, vT2))
    e.i("v_lshl_add_u32 v%d, v%d, %d, v%d" % (vSoff, vT2, GSTR.bit_length() - 1, vT0))
    e.i("v_lshlrev_b32 v%d, 1, v%d" % (vSoff, vSoff))
    e.i("s_lshl_b32 s%d, s%d, 9" % (sT0, sWave))
    e.i("v_lshlrev_b32 v%d, 6, v%d" % (vLdsR, vT0))
    e.i("v_add_u32 v%d, s%d, v%d" % (vLdsR, sT0, vLdsR))
    e.i("v_lshl_add_u32 v%d, v%d, 3, v%d" % (vLdsW, vT2, vLdsR))
    e.i("s_mov_b32 s%d, 0xcccccccc" % sMask1)
    e.i("s_mov_b32 s%d, 0xcccccccc" % (sMask1 + 1))
    e.i("s_mov_b32 s%d, 0xaaaaaaaa" % sMask0)
    e.i("s_mov_b32 s%d, 0xaaaaaaaa" % (sMask0 + 1))
    e.i("s_lshl_b32 s%d, s2, %d" % (sGW, LOG_WPW))
    e.i("s_add_u32 s%d, s%d, s%d" % (sGW, sGW, sWave))
    e.i("s_lshr_b32 s%d, s2, 4" % sKVH)
    e.i("s_and_b32 s%d, s2, %d" % (sSplit, NSPLIT - 1))
    e.i("s_cmp_eq_u32 s%d, 0" % sWave)
    e.i("s_cselect_b32 s%d, %d, 1000" % (sTkt, NS - 1 if FAKE != 1 else 1000))
    e.i("v_lshlrev_b32 v%d, 3, v%d" % (vT3, vT1))
    e.i("v_lshlrev_b32 v%d, 4, v%d" % (vT0, vLane))
    for srd, n in ((sVS, 65536), (sVZ, 65536), (sQ, 8192), (sKS, 8192), (sKZ, 8192), (sWS, 1 << 24), (sDBG, 256)):
        e.i("s_mov_b32 s%d, %d" % (srd + 2, n))
        e.i("s_mov_b32 s%d, 0x00020000" % (srd + 3))
    e.i("s_waitcnt lgkmcnt(0)")
    if STAMP >= 2:
        e.i("s_mov_b32 s98, 0")
        e.i("v_mov_b32 v%d, 0" % vStamp)
        e.i("s_memtime s[96:97]")
        e.i("s_waitcnt lgkmcnt(0)")
        e.i("v_writelane_b32 v%d, s96, 63" % vStamp)
        e.i("s_memrealtime s[96:97]")
        e.i("s_waitcnt lgkmcnt(0)")
        e.i("v_writelane_b32 v%d, s96, 61" % vStamp)
    for srd, p in ((sK, pqk), (sV, pqv)):
        e.i("s_add_u32 s%d, s%d, s%d" % (srd, p, sRB))
        e.i("s_addc_u32 s%d, s%d, 0" % (srd + 1, p + 1))
    e.i("s_lshl_b32 s%d, s%d, 16" % (sT0, sQi))
    for srd, p in ((sVS, pvs), (sVZ, pvz)):
        e.i("s_add_u32 s%d, s%d, s%d" % (srd, p, sT0))
        e.i("s_addc_u32 s%d, s%d, 0" % (srd + 1, p + 1))
    for srd, p in ((sQ, pq), (sKS, pks), (sKZ, pkz), (sWS, pws), (sDBG, pdbg)):
        e.i("s_mov_b32 s%d, s%d" % (srd, p))
        e.i("s_mov_b32 s%d, s%d" % (srd + 1, p + 1))
    e.i("s_lshl_b32 s%d, s%d, 9" % (sT0, sKVH))
    e.i("s_lshl_b32 s%d, s%d, 8" % (sT1, sQi))
    order = [("q", 0, 0), ("ks", 0, 0), ("kz", 0, 0)] + [("q", h, s_) for h in range(2) for s_ in range(4) if (h, s_) != (0, 0)] + [("ks", 0, s_) for s_ in range(1, 4)] + [("kz", 0, s_) for s_ in range(1, 4)]
    for kind, h, seg in order:
        if kind == "q":
            r = O + (h * 4 + seg) * 2
            e.i("buffer_load_dwordx2 v[%d:%d], v%d, s[%d:%d], s%d offen offset:%d" % (r, r + 1, vT3, sQ, sQ + 3, sT0, h * 256 + seg * 64))
        elif kind == "ks":
            r = O + 16 + seg * 2
            e.i("buffer_load_dwordx2 v[%d:%d], v%d, s[%d:%d], s%d offen offset:%d" % (r, r + 1, vT3, sKS, sKS + 3, sT1, seg * 64))
        else:
            r = O + 24 + seg * 2
            e.i("buffer_load_dwordx2 v[%d:%d], v%d, s[%d:%d], s%d offen offset:%d" % (r, r + 1, vT3, sKZ, sKZ + 3, sT1, seg * 64))
    e.i("s_and_b32 s%d, s2, 7" % sT0)
    e.i("s_lshl_b32 s%d, s%d, 13" % (sT0, sT0))
    e.i("s_mul_i32 s%d, s%d, %d" % (sT1, sWave, 1024 * NSL))
    e.i("s_add_u32 s%d, s%d, s%d" % (sT0, sT0, sT1))
    for k_ in range(NSL):
        e.i("buffer_load_dwordx4 v[%d:%d], v%d, s[%d:%d], s%d offen offset:%d" % (QS + 8 * k_, QS + 8 * k_ + 3, vT0, sVS, sVS + 3, sT0, 1024 * k_))
        e.i("buffer_load_dwordx4 v[%d:%d], v%d, s[%d:%d], s%d offen offset:%d" % (QS + 8 * k_ + 4, QS + 8 * k_ + 7, vT0, sVZ, sVZ + 3, sT0, 1024 * k_))
    e.i("v_add_u32 v%d, s%d, v%d" % (vT1, sT1, vT0))
    e.i("s_lshl_b32 s%d, s%d, 4" % (sT1, sWave))
    e.i("v_add_u32 v%d, s%d, v%d" % (vSL, sT1, vSoff))
    pool = []
    if PLS:
        assert NSL == 2
        PW = 4 if PR % 1024 == 0 else 2
        PB = 256 * PW
        free = list(range(QS + 16, QS + 32)) + list(range(A, A + 16))
        e.i("v_lshlrev_b32 v%d, %d, v%d" % (vVSn, PW.bit_length() + 1, vLane))
        e.i("s_mul_i32 s%d, s%d, %d" % (sT1, sWave, 2 * PR))
        e.i("v_add_u32 v%d, s%d, v%d" % (vVSn1, sT1, vVSn))
        e.i("s_lshl_b32 s%d, s%d, 14" % (sSoff, sWave))
        e.i("s_add_u32 s%d, s%d, %d" % (sSoff, sSoff, NS * 512))
        e.i("s_add_u32 s%d, s%d, 8192" % (sD0, sSoff))
        for rr in range(2):
            for k_ in range(PR // PB):
                for ai, srd in enumerate((sVS, sVZ)):
                    r0 = free[0]
                    assert free[:PW] == list(range(r0, r0 + PW))
                    del free[:PW]
                    e.i("buffer_load_dwordx%d v[%d:%d], v%d, s[%d:%d], s%d offen offset:%d" % (PW, r0, r0 + PW - 1, vVSn, srd, srd + 3, (sSoff, sD0)[rr], PB * k_))
                    pool.append((r0, SCB + 8192 + ai * VZD + rr * PR + PB * k_))
    for j in range(D0):
        issue_own(8, j)
    if WSC:
        e.i("s_mul_i32 s%d, s%d, %d" % (sQi, sQi, CSTR))
        e.i("s_add_u32 s%d, s%d, %d" % (sQi, sQi, CB))
    else:
        e.i("s_lshl_b32 s%d, s%d, 2" % (sQi, sQi))
    e.i("v_mov_b32 v%d, %d" % (vTab, st[-1]))
    for k_, v_ in enumerate(st[:-1]):
        if v_ <= 64:
            e.i("v_writelane_b32 v%d, %d, %d" % (vTab, v_, k_))
        else:
            e.i("s_mov_b32 s%d, %d" % (sT0, v_))
            e.i("v_writelane_b32 v%d, s%d, %d" % (vTab, sT0, k_))
    e.i("v_mov_b32 v%d, 0" % vT2)
    e.i("ds_write_b32 v%d, v%d offset:%d" % (vT2, vT2, CNTOFF))
    for r in (vL, vL + 1, vZ, vZ + 1):
        e.i("v_mov_b32 v%d, 0" % r)
    e.i("v_mov_b32 v%d, 0x%08x" % (vM, f2u(-3.0e38)))
    e.i("s_mov_b32 s%d, 0" % sCnt)
    e.i("s_mov_b32 s%d, 0x%08x" % (sT0, f2u(CSCALE)))
    e.i("s_waitcnt vmcnt(%d)" % D0)
    e.i("s_mov_b32 s%d, s%d" % (sX, sK))
    e.i("s_mov_b32 s%d, s%d" % (sX + 1, sK + 1))
    e.i("s_mov_b32 s%d, %d" % (sX + 2, 32768 * 512))
    e.i("s_mov_b32 s%d, 0x00020000" % (sX + 3))
    e.i("s_mov_b32 s%d, 4" % sGn)
    e.i("s_mov_b32 s%d, %d" % (sXadd, 2 * GB))
    e.i("s_mov_b32 s%d, 0xeeeeeeee" % sMaskE)
    e.i("s_mov_b32 s%d, 0xeeeeeeee" % (sMaskE + 1))
    e.i("s_sub_u32 s%d, s%d, %d" % (sFl, sTkt, 0 if LATE else 1))
    e.i("s_lshl_b32 s%d, s%d, 3" % (sWoff, sWave))
    e.i("s_add_u32 s%d, s%d, %d" % (sWoff, sWoff, NS * RT))
    for k_ in range(NSL):
        e.i("ds_write_b128 v%d, v[%d:%d] offset:%d" % (vT1, QS + 8 * k_, QS + 8 * k_ + 3, SCB + 1024 * k_))
        e.i("ds_write_b128 v%d, v[%d:%d] offset:%d" % (vT1, QS + 8 * k_ + 4, QS + 8 * k_ + 7, SCB + VZD + 1024 * k_))
    if PLS:
        e.i("s_lshl_b32 s%d, s%d, 4" % (sPW, sWave))
        e.i("s_add_u32 s%d, s%d, 8192" % (sPW, sPW))
        for r0, off in pool:
            e.i("ds_write_b%d v%d, v[%d:%d] offset:%d" % (32 * PW, vVSn1, r0, r0 + PW - 1, off))
        if any(r0 >= A for r0, _ in pool):
            e.i("s_waitcnt lgkmcnt(0)")
    for seg in range(4):
        for half in range(2):
            src = O + 16 + seg * 2 + half
            d0 = A + seg * 4 + half * 2
            e.i("v_lshlrev_b32 v%d, 16, v%d" % (d0, src))
            e.i("v_and_b32 v%d, 0xffff0000, v%d" % (d0 + 1, src))
    for k in range(16):
        e.i("v_mul_f32 v%d, s%d, v%d" % (A + k, sT0, A + k))
    e.i("s_waitcnt lgkmcnt(0)")
    for h in range(2):
        for seg in range(4):
            for half in range(2):
                src = O + (h * 4 + seg) * 2 + half
                sc0 = seg * 4 + half * 2
                e.i("v_lshlrev_b32 v%d, 16, v%d" % (QS + 2 * sc0 + h, src))
                e.i("v_and_b32 v%d, 0xffff0000, v%d" % (QS + 2 * (sc0 + 1) + h, src))
    for sc in range(16):
        for h in range(2):
            e.i("v_mul_f32 v%d, v%d, v%d" % (QS + 2 * sc + h, QS + 2 * sc + h, A + sc))
    for seg in range(4):
        for half in range(2):
            src = O + 24 + seg * 2 + half
            d0 = A + seg * 4 + half * 2
            e.i("v_lshlrev_b32 v%d, 16, v%d" % (d0, src))
            e.i("v_and_b32 v%d, 0xffff0000, v%d" % (d0 + 1, src))
    for h in range(2):
        t = vT0 + h
        e.i("v_mul_f32 v%d, v%d, v%d" % (t, QS + h, A))
        for sc in range(1, 16):
            e.i("v_fmac_f32 v%d, v%d, v%d" % (t, QS + 2 * sc + h, A + sc))
    for mod in ("quad_perm:[1,0,3,2]", "quad_perm:[2,3,0,1]", "row_half_mirror"):
        for h in range(2):
            t = vT0 + h
            e.i("v_add_f32_dpp v%d, v%d, v%d %s row_mask:0xf bank_mask:0xf" % (t, t, t, mod))
    e.i("v_readfirstlane_b32 s%d, v%d" % (sC0, vT0))
    e.i("v_readfirstlane_b32 s%d, v%d" % (sC1, vT1))
    for k in range(32):
        e.i("v_mov_b32 v%d, 0" % (O + k))
    FUSE = 1

    def stepA(x, y):
        for k in range(2):
            e.i("v_add_f32_dpp v%d, v%d, v%d row_half_mirror row_mask:0xf bank_mask:0x5" % (A + 2 * x + k, A + 2 * x + k, A + 2 * x + k))
        for k in range(2):
            e.i("v_add_f32_dpp v%d, v%d, v%d row_half_mirror row_mask:0xf bank_mask:0xa" % (A + 2 * x + k, A + 2 * y + k, A + 2 * y + k))

    def stepQ(x, y, mask, perm, out):
        for k in range(2):
            X, Y = A + 2 * x + k, A + 2 * y + k
            t = vT0 + k
            e.i("v_cndmask_b32 v%d, v%d, v%d, s[%d:%d]" % (t, Y, X, mask, mask + 1))
            e.i("v_cndmask_b32 v%d, v%d, v%d, s[%d:%d]" % (Y, X, Y, mask, mask + 1))
        for k in range(2):
            Y = A + 2 * y + k
            t = vT0 + k
            e.i("v_add_f32_dpp v%d, v%d, v%d %s row_mask:0xf bank_mask:0xf" % (out + k, t, Y, perm))

    def stepP(perm):
        for k in range(2):
            e.i("v_add_f32_dpp v%d, v%d, v%d %s row_mask:0xf bank_mask:0xf" % (A + k, A + k, A + k, perm))

    def softmax(G):
        S0, S1 = A, A + 1
        e.i("v_mov_b32 v%d, v%d" % (vT0, S0))
        e.i("v_mov_b32 v%d, v%d" % (vT1, S1))
        e.i("v_lshlrev_b32 v%d, 16, v%d" % (vVS, vVS))
        e.i("v_lshlrev_b32 v%d, 16, v%d" % (vVS + 1, vVS + 1))
        e.i("v_permlane32_swap_b32 v%d, v%d" % (vT0, vT1))
        e.i("v_max_f32 v%d, v%d, v%d" % (vT0, vT0, vT1))
        e.i("v_mov_b32 v%d, v%d" % (vT1, vT0))
        e.i("v_permlane16_swap_b32 v%d, v%d" % (vT0, vT1))
        e.i("v_max_f32 v%d, v%d, v%d" % (vT0, vT0, vT1))
        for rr in (8, 4, 2, 1):
            e.i("v_max_f32_dpp v%d, v%d, v%d row_ror:%d row_mask:0xf bank_mask:0xf" % (vT0, vT0, vT0, rr))
        e.i("v_max_f32 v%d, v%d, v%d" % (vT0, vT0, vM))
        e.i("v_sub_f32 v%d, v%d, v%d" % (vT1, vM, vT0))
        e.i("v_exp_f32 v%d, v%d" % (vT1, vT1))
        e.i("v_mov_b32 v%d, v%d" % (vM, vT0))
        e.i("v_readlane_b32 s%d, v%d, 0" % (sM0, vT0))
        e.i("v_readlane_b32 s%d, v%d, 32" % (sM1, vT0))
        e.i("v_readlane_b32 s%d, v%d, 0" % (sF, vT1))
        e.i("v_readlane_b32 s%d, v%d, 32" % (sF + 1, vT1))
        e.i("v_subrev_f32 v%d, s%d, v%d" % (vP, sM0, S0))
        e.i("v_subrev_f32 v%d, s%d, v%d" % (vP + 1, sM1, S1))
        e.i("v_exp_f32 v%d, v%d" % (vP, vP))
        e.i("v_exp_f32 v%d, v%d" % (vP + 1, vP + 1))
        if G < 8:
            mk = sMask0 if G == 4 else sMaskE
            for k in range(2):
                e.i("v_cndmask_b32 v%d, v%d, 0, s[%d:%d]" % (vP + k, vP + k, mk, mk + 1))
        P = "v[%d:%d]" % (vP, vP + 1)
        PP = "v[%d:%d]" % (vPP, vPP + 1)
        L = "v[%d:%d]" % (vL, vL + 1)
        Z = "v[%d:%d]" % (vZ, vZ + 1)
        VS = "v[%d:%d]" % (vVS, vVS + 1)
        F = "s[%d:%d]" % (sF, sF + 1)
        e.i("v_pk_mul_f32 %s, %s, %s" % (Z, Z, F))
        e.i("v_pk_mul_f32 %s, %s, %s op_sel:[0,0] op_sel_hi:[1,0]" % (PP, P, VS))
        e.i("v_pk_fma_f32 %s, %s, %s, %s" % (L, L, F, P))
        e.i("ds_write_b64 v%d, %s" % (vLdsW, PP))
        e.i("v_pk_fma_f32 %s, %s, %s, %s op_sel:[0,1,0] op_sel_hi:[1,1,1]" % (Z, PP, VS, Z))
        for k in range(G // 2):
            e.i("ds_read_b128 v[%d:%d], v%d offset:%d" % (A + 4 * k, A + 4 * k + 3, vLdsR, 16 * k))
        for sc in range(16):
            e.i("v_pk_mul_f32 %s, %s, %s" % (o(sc), o(sc), F))

    def publish(tag):
        e.i("s_cmp_lt_u32 s%d, s%d" % (sCnt, sTkt))
        e.i("s_cbranch_scc1 L_np%s" % tag)
        e.i("s_mov_b64 exec, 1")
        e.i("ds_write_b32 v%d, v%d offset:%d" % (vT2, vT3, TICKOFF))
        e.i("s_mov_b64 exec, -1")
        e.i("s_waitcnt lgkmcnt(0)")
        e.label("L_np%s" % tag)

    def request(G, tag):
        e.i("s_lshl_b32 s%d, s%d, 9" % (sKoff, sCur))
        e.i("s_lshl_b32 s%d, s%d, 9" % (sVoff, sCur))
        e.i("s_add_u32 s%d, s%d, s%d" % (sXoff, sKoff, sXadd))
        if WSC and G == 8 and not tag.endswith("d"):
            e.i("s_cmp_lg_u32 s%d, s%d" % (sCnt, sFl))
            e.i("s_cbranch_scc1 L_nf%s" % tag)
            e.i("s_mov_b64 exec, 1")
            e.i("buffer_load_dword v%d, v%d, s[%d:%d], 0 offen sc1" % (vFl, vT2, sDBG, sDBG + 3))
            e.i("s_mov_b64 exec, -1")
            e.label("L_nf%s" % tag)
        if LATE and G == 8:
            assert SPLIT8
            if not tag.endswith("d"):
                return
            e.i("s_cmp_eq_u32 s%d, 4" % sGn)
            e.i("s_cbranch_scc1 L_nt%s" % tag)
        ticket(tag, WSC and G == 8 and not tag.endswith("d"))

    def ticket(tag, check):
        e.i("s_cmp_lt_u32 s%d, s%d" % (sCnt, sTkt))
        e.i("s_cbranch_scc1 L_nt%s" % tag)
        e.i("v_mov_b32 v%d, 1" % vT3)
        e.i("s_mov_b64 exec, 1")
        if check:
            e.i("v_readfirstlane_b32 s%d, v%d" % (sT0, vFl))
            e.i("s_cmp_lg_u32 s%d, 0" % sT0)
            e.i("s_cbranch_scc1 L_fo%s" % tag)
            e.i("v_mov_b32 v%d, 1" % vFl)
            e.i("buffer_atomic_add v%d, v%d, s[%d:%d], 0 offen offset:4 sc0" % (vFl, vT2, sDBG, sDBG + 3))
            e.i("s_waitcnt vmcnt(0)")
            e.i("v_readfirstlane_b32 s%d, v%d" % (sT0, vFl))
            e.i("s_cmp_lg_u32 s%d, 0" % sT0)
            e.i("s_cbranch_scc1 L_fs%s" % tag)
            e.i("s_mov_b64 exec, -1")
            e.i("v_mul_u32_u24 v%d, %d, v%d" % (vT0, CSTR, vLane))
            e.i("s_mov_b32 s%d, %d" % (sT0, CB))
            e.i("buffer_store_dword v%d, v%d, s[%d:%d], s%d offen sc1" % (vT2, vT0, sWS, sWS + 3, sT0))
            e.i("s_waitcnt vmcnt(0)")
            e.i("s_mov_b64 exec, 1")
            e.i("buffer_store_dword v%d, v%d, s[%d:%d], 0 offen sc1" % (vT3, vT2, sDBG, sDBG + 3))
            e.i("s_waitcnt vmcnt(0)")
            e.i("v_mov_b32 v%d, 1" % vFl)
            e.i("s_branch L_fo%s" % tag)
            e.label("L_fs%s" % tag)
            e.i("buffer_load_dword v%d, v%d, s[%d:%d], 0 offen sc1" % (vFl, vT2, sDBG, sDBG + 3))
            e.i("s_waitcnt vmcnt(0)")
            e.i("v_readfirstlane_b32 s%d, v%d" % (sT0, vFl))
            e.i("s_cmp_eq_u32 s%d, 0" % sT0)
            e.i("s_cbranch_scc1 L_fs%s" % tag)
            e.label("L_fo%s" % tag)
        if FAKE in (3, 4):
            if FAKE == 3:
                e.i("s_lshl_b32 s%d, s2, 12" % sT0)
            else:
                e.i("s_lshl_b32 s%d, s%d, 10" % (sT0, sQi))
            e.i("s_add_u32 s%d, s%d, %d" % (sT0, sT0, 12 << 20))
            e.i("buffer_atomic_add v%d, v%d, s[%d:%d], s%d offen sc0" % (vT3, vT2, sWS, sWS + 3, sT0))
        elif FAKE == 5:
            e.i("buffer_load_dword v%d, v%d, s[%d:%d], s%d offen sc1" % (vT3, vT2, sDBG, sDBG + 3, sQi))
        elif FAKE == 6:
            e.i("buffer_atomic_add v%d, v%d, s[%d:%d], s%d offen" % (vT3, vT2, sDBG, sDBG + 3, sQi))
        elif WSC:
            e.i("buffer_atomic_add v%d, v%d, s[%d:%d], s%d offen sc0" % (vT3, vT2, sWS, sWS + 3, sQi))
        else:
            e.i("buffer_atomic_add v%d, v%d, s[%d:%d], s%d offen sc0" % (vT3, vT2, sDBG, sDBG + 3, sQi))
        e.i("s_mov_b64 exec, -1")
        e.label("L_nt%s" % tag)

    def decode(G, q):
        tag = "%d" % G
        if G == 8:
            e.i("s_add_u32 s%d, s%d, 1" % (sCnt, sCnt))
            e.i("s_add_u32 s%d, s%d, %d" % (sCur, sCur, RT))
            e.i("v_add_u32 v%d, %d, v%d" % (vSL, 2 * RT, vSL))
            e.i("s_cmp_lt_u32 s%d, %d" % (sCnt, NS))
            e.i("s_cbranch_scc1 L_noc%s" % tag)
        e.i("v_readfirstlane_b32 s%d, v%d" % (sT0, vTk))
        if FAKE:
            e.i("s_mul_i32 s%d, s%d, %d" % (sT1, sCnt, FROT))
            e.i("s_add_u32 s%d, s%d, s2" % (sT1, sT1))
            e.i("s_and_b32 s%d, s%d, 7" % (sT1, sT1))
            e.i("s_sub_u32 s%d, s%d, %d" % (sT0, sCnt, NS))
            e.i("s_lshl_b32 s%d, s%d, 3" % (sT0, sT0))
            e.i("s_add_u32 s%d, s%d, s%d" % (sT0, sT0, sT1))
        if NB and G == 8:
            e.i("s_lshl_b32 s%d, s%d, 2" % (sSoff, sT0))
        if NB:
            e.i("s_sub_i32 s%d, s%d, %d" % (sT0, sT0, NB))
            e.i("s_max_i32 s%d, s%d, 0" % (sT0, sT0))
        e.i("s_min_u32 s%d, s%d, 62" % (sT0, sT0))
        e.i("s_add_u32 s%d, s%d, 1" % (sT1, sT0))
        e.i("s_nop 3")
        e.i("v_readlane_b32 s%d, v%d, s%d" % (sD0, vTab, sT0))
        e.i("v_readlane_b32 s%d, v%d, s%d" % (sD1, vTab, sT1))
        e.i("s_sub_u32 s%d, s%d, s%d" % (sGn, sD1, sD0))
        if NB and G == 8:
            e.i("s_cmp_lt_u32 s%d, %d" % (sSoff, 4 * NB))
            e.i("s_cselect_b32 s%d, s%d, s%d" % (sD0, sSoff, sD0))
            e.i("s_cselect_b32 s%d, 4, s%d" % (sGn, sGn))
        e.i("s_cmp_eq_u32 s%d, 0" % sGn)
        e.i("s_cbranch_scc1 L_last%s" % tag)
        if MAPD:
            e.i("s_lshr_b32 s%d, s%d, 2" % (sT0, sD0))
            e.i("s_and_b32 s%d, s%d, 7" % (sT0, sT0))
            e.i("s_lshr_b32 s%d, s%d, 5" % (sT1, sD0))
            e.i("s_lshl_b32 s%d, s%d, 2" % (sT1, sT1))
            e.i("s_and_b32 s%d, s%d, 3" % (sD1, sD0))
            e.i("s_add_u32 s%d, s%d, s%d" % (sT1, sT1, sD1))
        elif POW2:
            e.i("s_lshr_b32 s%d, s%d, %d" % (sT0, sD0, DT.bit_length() - 1))
            e.i("s_and_b32 s%d, s%d, %d" % (sT1, sD0, DT - 1))
        else:
            e.i("s_mul_i32 s%d, s%d, %d" % (sT0, sD0, DM))
            e.i("s_lshr_b32 s%d, s%d, %d" % (sT0, sT0, DSH))
            e.i("s_mul_i32 s%d, s%d, %d" % (sT1, sT0, DT))
            e.i("s_sub_u32 s%d, s%d, s%d" % (sT1, sD0, sT1))
        if PLS and MAPD:
            e.i("s_mul_i32 s%d, s%d, %d" % (sD0, sT0, DT))
            e.i("s_add_u32 s%d, s%d, s%d" % (sD0, sD0, sT1))
        e.i("s_lshl_b32 s%d, s%d, 12" % (sT0, sT0))
        e.i("s_lshl_b32 s%d, s%d, 6" % (sT1, sT1))
        e.i("s_add_u32 s%d, s%d, s%d" % (sCur, sT0, sT1))
        e.i("s_add_u32 s%d, s%d, s%d" % (sCur, sCur, sWoff))
        e.i("s_lshl_b32 s%d, s%d, 7" % (sT0, sGn))
        e.i("s_sub_u32 s%d, s%d, 1" % (sT0, sT0))
        e.i("v_and_b32 v%d, s%d, v%d" % (vSoffD, sT0, vSoff))
        if PLS:
            e.i("s_lshl_b32 s%d, s%d, 7" % (sSoff, sD0))
            e.i("s_add_u32 s%d, s%d, s%d" % (sSoff, sSoff, sPW))
            e.i("v_add_u32 v%d, s%d, v%d" % (vSL, sSoff, vSoffD))
        else:
            e.i("s_lshl_b32 s%d, s%d, 1" % (sSoff, sCur))
        e.i("s_cmp_eq_u32 s%d, 1" % sGn)
        e.i("s_cselect_b32 s%d, s%d, s%d" % (sX, sV, sK))
        e.i("s_cselect_b32 s%d, s%d, s%d" % (sX + 1, sV + 1, sK + 1))
        e.i("s_cselect_b32 s%d, 0, %d" % (sXadd, 2 * GB))
        if not GOFF:
            e.i("buffer_load_ushort v%d, v%d, s[%d:%d], s%d offen" % (vVSn, vSoffD, sVS, sVS + 3, sSoff))
            e.i("buffer_load_ushort v%d, v%d, s[%d:%d], s%d offen" % (vVSn1, vSoffD, sVZ, sVZ + 3, sSoff))
        if G == 8 and not SPLIT8:
            e.label("L_noc%s" % tag)
        elif EXACT and not GOFF:
            q.append(("G", 0))
            q.append(("G", 1))
        request(G, tag + ("d" if (G == 8 and SPLIT8) else ""))

    def wait_for(q, j):
        idx = q.index(("L", j))
        n_after = len(q) - idx - 1
        assert n_after <= 63
        e.i("s_waitcnt vmcnt(%d)" % n_after)
        del q[:idx + 1]

    def compute(G, j):
        r = ring(j % R)
        for c in range(4):
            e.i("v_cvt_f32_i32 v%d, v%d" % (r + c, r + c))
        isK = j < 4 * G
        jj = j if isK else j - 4 * G
        g, seg = jj // 4, jj % 4
        for c in range(4):
            pr = "v[%d:%d]" % (r + (c & 2), r + (c & 2) + 1)
            b = c & 1
            sc = seg * 4 + c
            if isK:
                if seg == 0 and c == 0:
                    e.i("v_pk_mul_f32 %s, %s, %s op_sel:[%d,0] op_sel_hi:[%d,1]" % (a(g), pr, qs(sc), b, b))
                else:
                    e.i("v_pk_fma_f32 %s, %s, %s, %s op_sel:[%d,0,0] op_sel_hi:[%d,1,1]" % (a(g), pr, qs(sc), a(g), b, b))
            else:
                e.i("v_pk_fma_f32 %s, %s, %s, %s op_sel:[%d,0,0] op_sel_hi:[%d,1,1]" % (o(sc), pr, a(g), o(sc), b, b))

    def issue(G, q, j, last):
        nj = j + 16
        if nj < 8 * G:
            issue_own(G, nj)
            q.append(("L", nj))
        elif not last:
            issue_next(nj - 8 * G)
            q.append(("N", nj - 8 * G))

    def reduce_k(G, j):
        if j < 4 * G and j % 4 == 3:
            g = j // 4
            if g % 2 == 1:
                stepA(g - 1, g)
            if g % 4 == 3:
                stepQ(g - 3, g - 1, sMask1, "quad_perm:[2,3,0,1]", A + 2 * (g - 3))
            if g == 7:
                stepQ(0, 4, sMask0, "quad_perm:[1,0,3,2]", A)
            if G == 4 and g == 3:
                stepP("quad_perm:[1,0,3,2]")
            if G == 2 and g == 1:
                stepP("quad_perm:[2,3,0,1]")
                stepP("quad_perm:[1,0,3,2]")

    def do_softmax(G):
        e.i("s_waitcnt lgkmcnt(0)")
        if STAMP == 2:
            e.i("s_memrealtime s[96:97]")
        softmax(G)
        e.i("s_waitcnt lgkmcnt(0)")
        if STAMP == 2:
            e.i("s_mov_b32 m0, s98")
            e.i("s_add_u32 s98, s98, 1")
            e.i("s_and_b32 s98, s98, 63")
            e.i("s_and_b32 s96, s96, 0xfffffffc")
            e.i("s_or_b32 s96, s96, %d" % {8: 0, 4: 1, 2: 2}[G])
            e.i("v_writelane_b32 v%d, s96, m0" % vStamp)

    def read_scales():
        e.i("ds_read_u16 v%d, v%d offset:%d" % (vVS, vSL, SCB))
        e.i("ds_read_u16 v%d, v%d offset:%d" % (vVS + 1, vSL, SCB + VZD))

    def step(G, q, j, last, skip_pre=False):
        if not skip_pre:
            if j % BAR == 0 and (not last or LASTBAR):
                e.i("s_barrier")
            if j == (LATE + 24 if (LATE and G == 8) else 8) and G >= 4:
                e.i("ds_read_b32 v%d, v%d offset:%d" % (vTk, vT2, TICKOFF))
            if PLS:
                if (G == 8 and j == 20) or (G == 4 and j == 8):
                    read_scales()
            elif G == 8 and j == 20:
                e.i("s_cmp_ge_u32 s%d, %d" % (sCnt, NS))
                e.i("s_cbranch_scc1 L_nsr")
                read_scales()
                e.label("L_nsr")
        if j == 4 * G:
            do_softmax(G)
        wait_for(q, j)
        if j == 0:
            if not PLS:
                e.i("v_mov_b32 v%d, v%d" % (vVS, vVSn))
                e.i("v_mov_b32 v%d, v%d" % (vVS + 1, vVSn1))
        if j == (LATE + 16 if (LATE and G == 8) else 0):
            publish("%d" % G)
        if LATE and G == 8 and j == LATE:
            ticket("8l", WSC)
        compute(G, j)
        issue(G, q, j, last)
        reduce_k(G, j)

    def dispatch(G):
        if G == 8:
            e.i("s_cmp_eq_u32 s%d, 4" % sGn)
            e.i("s_cbranch_scc1 L_body8")
        if G >= 4:
            e.i("s_cmp_eq_u32 s%d, 2" % sGn)
            e.i("s_cbranch_scc1 L_body4")
        e.i("s_branch L_body2")

    assert NS >= 3 and LATE in (0, 8, 16)
    lasts = []
    for G in (8, 4):
        e.label("L_body%d" % G)
        q = [("L", j) for j in range(16)]
        JD = 8 * G - 16
        for j in range(JD):
            step(G, q, j, False)
        e.i("s_barrier")
        e.i("s_waitcnt lgkmcnt(0)")
        ql = list(q)
        decode(G, q)
        for j in range(JD, 8 * G):
            step(G, q, j, False, skip_pre=(j == JD))
        dispatch(G)
        if G == 8 and SPLIT8:
            e.label("L_noc8")
            qs_ = list(ql)
            request(G, "8")
            for j in range(JD, 8 * G):
                step(G, qs_, j, False, skip_pre=(j == JD))
            e.i("s_branch L_body8")
        lasts.append((G, ql, JD))
    G = 2
    e.label("L_body2")
    q = [("L", j) for j in range(16)]
    if PLS:
        read_scales()
    wait_for(q, 0)
    if not PLS:
        e.i("v_mov_b32 v%d, v%d" % (vVS, vVSn))
        e.i("v_mov_b32 v%d, v%d" % (vVS + 1, vVSn1))
    publish("2")
    e.i("s_barrier")
    e.i("ds_read_b32 v%d, v%d offset:%d" % (vTk, vT2, TICKOFF))
    compute(G, 0)
    e.i("s_waitcnt lgkmcnt(0)")
    ql = list(q)
    decode(G, q)
    issue(G, q, 0, False)
    for j in range(1, 16):
        step(G, q, j, False)
    dispatch(G)
    for (G_, ql_, JD) in lasts:
        e.label("L_last%d" % G_)
        for j in range(JD, 8 * G_):
            step(G_, ql_, j, True, skip_pre=(j == JD))
        e.i("s_branch L_epi")
    e.label("L_last2")
    for j in range(1, 16):
        step(2, ql, j, True)
    e.label("L_epi")
    if STAMP:
        e.i("s_memrealtime s[90:91]")
        e.i("s_getreg_b32 s92, hwreg(HW_REG_XCC_ID)")
        e.i("s_getreg_b32 s93, hwreg(HW_REG_HW_ID)")
        e.i("s_waitcnt lgkmcnt(0)")
        e.i("v_mov_b32 v%d, s88" % (A + 8))
        e.i("v_mov_b32 v%d, s90" % (A + 9))
        e.i("v_mov_b32 v%d, s92" % (A + 10))
        e.i("v_mov_b32 v%d, s93" % (A + 11))
        e.i("s_lshl_b32 s%d, s%d, 4" % (sT0, sGW))
        e.i("s_add_u32 s%d, s%d, %d" % (sT0, sT0, 8 << 20))
        e.i("v_mov_b32 v%d, 0" % (A + 12))
        e.i("buffer_store_dwordx4 v[%d:%d], v%d, s[%d:%d], s%d offen" % (A + 8, A + 11, A + 12, sWS, sWS + 3, sT0))
        if STAMP >= 2:
            e.i("s_memtime s[96:97]")
            e.i("s_waitcnt lgkmcnt(0)")
            e.i("v_writelane_b32 v%d, s96, 62" % vStamp)
            e.i("s_lshl_b32 s%d, s%d, 8" % (sT0, sGW))
            e.i("s_add_u32 s%d, s%d, %d" % (sT0, sT0, 9 << 20))
            e.i("v_lshlrev_b32 v%d, 2, v%d" % (A + 13, vLane))
            e.i("buffer_store_dword v%d, v%d, s[%d:%d], s%d offen" % (vStamp, A + 13, sWS, sWS + 3, sT0))
    e.i("v_permlane32_swap_b32 v%d, v%d" % (vL, vL + 1))
    e.i("v_permlane32_swap_b32 v%d, v%d" % (vZ, vZ + 1))
    e.i("v_add_f32 v%d, v%d, v%d" % (vL, vL, vL + 1))
    e.i("v_add_f32 v%d, v%d, v%d" % (vZ, vZ, vZ + 1))
    e.i("v_permlane16_swap_b32 v%d, v%d" % (vL, vZ))
    e.i("v_add_f32 v%d, v%d, v%d" % (vL, vL, vZ))
    for rr in (8, 4, 2, 1):
        e.i("v_add_f32_dpp v%d, v%d, v%d row_ror:%d row_mask:0xf bank_mask:0xf" % (vL, vL, vL, rr))
    e.i("v_readlane_b32 s%d, v%d, 0" % (sL0, vL))
    e.i("v_readlane_b32 s%d, v%d, 16" % (sZ0, vL))
    e.i("v_readlane_b32 s%d, v%d, 32" % (sL1, vL))
    e.i("v_readlane_b32 s%d, v%d, 48" % (sZ1, vL))
    for sc in range(16):
        e.i("v_permlane32_swap_b32 v%d, v%d" % (O + 2 * sc, O + 2 * sc + 1))
    for sc in range(16):
        e.i("v_add_f32 v%d, v%d, v%d" % (O + 2 * sc, O + 2 * sc, O + 2 * sc + 1))
    for sc in range(8):
        e.i("v_permlane16_swap_b32 v%d, v%d" % (O + 2 * sc, O + 2 * (sc + 8)))
    for sc in range(8):
        e.i("v_add_f32 v%d, v%d, v%d" % (O + 2 * sc, O + 2 * sc, O + 2 * (sc + 8)))
    for sc in range(4):
        e.i("v_add_f32_dpp v%d, v%d, v%d row_ror:8 row_mask:0xf bank_mask:0x3" % (A + sc, O + 2 * sc, O + 2 * sc))
    for sc in range(4):
        e.i("v_add_f32_dpp v%d, v%d, v%d row_ror:8 row_mask:0xf bank_mask:0xc" % (A + sc, O + 2 * (sc + 4), O + 2 * (sc + 4)))
    e.i("s_mov_b32 s%d, 0" % sEx)
    e.i("s_mov_b32 s%d, -1" % (sEx + 1))
    e.i("v_mov_b32 v%d, s%d" % (vT0, sZ0))
    e.i("v_mov_b32 v%d, s%d" % (vT1, sZ1))
    e.i("v_cndmask_b32 v%d, v%d, v%d, s[%d:%d]" % (vT0, vT0, vT1, sEx, sEx + 1))
    for sc in range(4):
        e.i("v_sub_f32 v%d, v%d, v%d" % (A + sc, A + sc, vT0))
    e.i("v_mov_b32 v%d, s%d" % (vT0, sC0))
    e.i("v_mov_b32 v%d, s%d" % (vT1, sC1))
    e.i("v_cndmask_b32 v%d, v%d, v%d, s[%d:%d]" % (vT0, vT0, vT1, sEx, sEx + 1))
    e.i("v_sub_f32 v%d, v%d, v%d" % (vP, vM, vT0))
    e.i("v_mov_b32 v%d, s%d" % (vT0, sL0))
    e.i("v_mov_b32 v%d, s%d" % (vT1, sL1))
    e.i("v_cndmask_b32 v%d, v%d, v%d, s[%d:%d]" % (vP + 1, vT0, vT1, sEx, sEx + 1))
    OB = WPW * 512
    MB = OB + WPW * 1024
    LDS = MB + WPW * 16 + 16 + 2 * VZD
    e.i("s_lshl_b32 s%d, s%d, 10" % (sT0, sWave))
    e.i("v_lshlrev_b32 v%d, 4, v%d" % (vT2, vLane))
    e.i("v_add_u32 v%d, s%d, v%d" % (vT0, sT0, vT2))
    e.i("ds_write_b128 v%d, v[%d:%d] offset:%d" % (vT0, A, A + 3, OB))
    e.i("s_lshl_b32 s%d, s%d, 4" % (sT0, sWave))
    e.i("v_lshrrev_b32 v%d, 5, v%d" % (vT3, vLane))
    e.i("v_lshlrev_b32 v%d, 3, v%d" % (vT3, vT3))
    e.i("v_add_u32 v%d, s%d, v%d" % (vT1, sT0, vT3))
    e.i("ds_write_b64 v%d, v[%d:%d] offset:%d" % (vT1, vP, vP + 1, MB))
    e.i("s_waitcnt lgkmcnt(0)")
    if True:
        e.i("v_mov_b32 v%d, 0" % vT0)
        e.i("v_mov_b32 v%d, 1" % vT1)
        e.i("s_mov_b64 exec, 1")
        e.i("ds_add_rtn_u32 v%d, v%d, v%d offset:%d" % (vT1, vT0, vT1, CNTOFF))
        e.i("s_mov_b64 exec, -1")
        e.i("s_waitcnt lgkmcnt(0)")
        e.i("v_readfirstlane_b32 s%d, v%d" % (sT0, vT1))
        e.i("s_cmp_lg_u32 s%d, %d" % (sT0, WPW - 1))
        e.i("s_cbranch_scc1 L_done1")
    assert WPW <= 16
    for w in range(WPW):
        e.i("ds_read_b64 v[%d:%d], v%d offset:%d" % (QS + 2 * w, QS + 2 * w + 1, vT3, MB + 16 * w))
    OT = O
    assert O + 4 * WPW <= NV
    for w in range(WPW):
        e.i("ds_read_b128 v[%d:%d], v%d offset:%d" % (OT + 4 * w, OT + 4 * w + 3, vT2, OB + 1024 * w))
    e.i("s_waitcnt lgkmcnt(0)")
    e.i("v_mov_b32 v%d, v%d" % (vT0, QS))
    for w in range(1, WPW):
        e.i("v_max_f32 v%d, v%d, v%d" % (vT0, vT0, QS + 2 * w))
    for w in range(WPW):
        e.i("v_sub_f32 v%d, v%d, v%d" % (QS + 2 * w, QS + 2 * w, vT0))
    for w in range(WPW):
        e.i("v_exp_f32 v%d, v%d" % (QS + 2 * w, QS + 2 * w))
    e.i("v_mul_f32 v%d, v%d, v%d" % (vT1, QS, QS + 1))
    for w in range(1, WPW):
        e.i("v_fmac_f32 v%d, v%d, v%d" % (vT1, QS + 2 * w, QS + 2 * w + 1))
    for c in range(4):
        e.i("v_mul_f32 v%d, v%d, v%d" % (OT + c, OT + c, QS))
    for w in range(1, WPW):
        for c in range(4):
            e.i("v_fmac_f32 v%d, v%d, v%d" % (OT + c, OT + 4 * w + c, QS + 2 * w))
    MLB = 32 * NSPLIT * 512
    e.i("s_lshl_b32 s%d, s%d, %d" % (sT0, sKVH, LOG_NSPLIT + 1))
    e.i("s_add_u32 s%d, s%d, s%d" % (sT0, sT0, sSplit))
    e.i("v_lshrrev_b32 v%d, 5, v%d" % (vT3, vLane))
    e.i("v_lshlrev_b32 v%d, %d, v%d" % (vT3, LOG_NSPLIT, vT3))
    e.i("v_add_u32 v%d, s%d, v%d" % (vT3, sT0, vT3))
    e.i("v_and_b32 v%d, 31, v%d" % (vT2, vLane))
    e.i("v_lshlrev_b32 v%d, 4, v%d" % (vT2, vT2))
    e.i("v_lshl_add_u32 v%d, v%d, 9, v%d" % (vT2, vT3, vT2))
    scf = " sc1" if FUSE else ""
    if STAMP and FUSE:
        e.i("s_memrealtime s[12:13]")
    e.i("buffer_store_dwordx4 v[%d:%d], v%d, s[%d:%d], 0 offen%s" % (OT, OT + 3, vT2, sWS, sWS + 3, scf))
    e.i("v_lshlrev_b32 v%d, 3, v%d" % (vT3, vT3))
    e.i("s_mov_b32 s%d, %d" % (sT1, MLB))
    e.i("buffer_store_dwordx2 v[%d:%d], v%d, s[%d:%d], s%d offen%s" % (vT0, vT1, vT3, sWS, sWS + 3, sT1, scf))
    if FUSE:
        pass
        vA, vB, vC = vP, vP + 1, vPP
        e.i("s_lshl_b32 s%d, s%d, 9" % (sT0, sSplit))
        e.i("v_subrev_u32 v%d, s%d, v%d" % (vB, sT0, vT2))
        e.i("s_lshl_b32 s%d, s%d, 3" % (sT0, sSplit))
        e.i("v_subrev_u32 v%d, s%d, v%d" % (vC, sT0, vT3))
        if WSC:
            e.i("s_mul_i32 s%d, s%d, %d" % (sT0, sKVH, CSTR))
            e.i("s_add_u32 s%d, s%d, %d" % (sT0, sT0, CB + 32 * CSTR))
        else:
            e.i("s_lshl_b32 s%d, s%d, 2" % (sT0, sKVH))
            e.i("s_add_u32 s%d, s%d, 128" % (sT0, sT0))
        e.i("v_mov_b32 v%d, 1" % vA)
        e.i("v_mov_b32 v%d, 0" % vM)
        e.i("s_waitcnt vmcnt(0)")
        if STAMP:
            e.i("s_memrealtime s[14:15]")
        e.i("s_mov_b64 exec, 1")
        sCT = sWS if WSC else sDBG
        e.i("buffer_atomic_add v%d, v%d, s[%d:%d], s%d offen sc0" % (vA, vM, sCT, sCT + 3, sT0))
        e.i("s_mov_b64 exec, -1")
        e.i("s_waitcnt vmcnt(0)")
        if STAMP:
            e.i("s_memrealtime s[16:17]")
            e.i("s_waitcnt lgkmcnt(0)")
            e.i("v_mov_b32 v%d, s12" % (A + 8))
            e.i("v_mov_b32 v%d, s14" % (A + 9))
            e.i("v_mov_b32 v%d, s16" % (A + 10))
            e.i("v_mov_b32 v%d, 0" % (A + 11))
            e.i("s_lshl_b32 s18, s2, 4")
            e.i("s_add_u32 s18, s18, %d" % (10 << 20))
            e.i("v_mov_b32 v%d, 0" % (A + 12))
            e.i("buffer_store_dwordx4 v[%d:%d], v%d, s[%d:%d], s18 offen" % (A + 8, A + 11, A + 12, sWS, sWS + 3))
        e.i("v_readfirstlane_b32 s%d, v%d" % (sT0, vA))
        e.i("s_cmp_lg_u32 s%d, %d" % (sT0, NSPLIT - 1))
        e.i("s_cbranch_scc1 L_done1")
        for t in range(NSPLIT):
            e.i("buffer_load_dwordx2 v[%d:%d], v%d, s[%d:%d], s%d offen offset:%d sc1" % (QS + 2 * t, QS + 2 * t + 1, vC, sWS, sWS + 3, sT1, 8 * t))
        e.i("s_mov_b32 s%d, 4096" % sT0)
        for t in range(NSPLIT):
            e.i("buffer_load_dwordx4 v[%d:%d], v%d, s[%d:%d], %s offen offset:%d sc1" % (RING + 4 * t, RING + 4 * t + 3, vB, sWS, sWS + 3, "0" if t < 8 else "s%d" % sT0, (t % 8) * 512))
        e.i("s_mov_b32 s%d, s%d" % (sK, pout))
        e.i("s_mov_b32 s%d, s%d" % (sK + 1, pout + 1))
        e.i("s_mov_b32 s%d, 8192" % (sK + 2))
        e.i("s_mov_b32 s%d, 0x00020000" % (sK + 3))
        e.i("s_lshl_b32 s%d, s%d, 9" % (sT0, sKVH))
        e.i("v_lshlrev_b32 v%d, 3, v%d" % (vT2, vLane))
        e.i("s_waitcnt vmcnt(%d)" % NSPLIT)
        e.i("v_mov_b32 v%d, v%d" % (vT0, QS))
        for w in range(1, NSPLIT):
            e.i("v_max_f32 v%d, v%d, v%d" % (vT0, vT0, QS + 2 * w))
        for w in range(NSPLIT):
            e.i("v_sub_f32 v%d, v%d, v%d" % (QS + 2 * w, QS + 2 * w, vT0))
        for w in range(NSPLIT):
            e.i("v_exp_f32 v%d, v%d" % (QS + 2 * w, QS + 2 * w))
        e.i("v_mul_f32 v%d, v%d, v%d" % (vT1, QS, QS + 1))
        for w in range(1, NSPLIT):
            e.i("v_fmac_f32 v%d, v%d, v%d" % (vT1, QS + 2 * w, QS + 2 * w + 1))
        e.i("v_rcp_f32 v%d, v%d" % (vT1, vT1))
        e.i("s_waitcnt vmcnt(0)")
        for c in range(4):
            e.i("v_mul_f32 v%d, v%d, v%d" % (RING + c, RING + c, QS))
        for w in range(1, NSPLIT):
            for c in range(4):
                e.i("v_fmac_f32 v%d, v%d, v%d" % (RING + c, RING + 4 * w + c, QS + 2 * w))
        for c in range(4):
            e.i("v_mul_f32 v%d, v%d, v%d" % (RING + c, RING + c, vT1))
        e.i("v_cvt_pk_bf16_f32 v%d, v%d, v%d" % (RING, RING, RING + 1))
        e.i("v_cvt_pk_bf16_f32 v%d, v%d, v%d" % (RING + 1, RING + 2, RING + 3))
        e.i("buffer_store_dwordx2 v[%d:%d], v%d, s[%d:%d], s%d offen" % (RING, RING + 1, vT2, sK, sK + 3, sT0))
        if STAMP:
            e.i("s_memrealtime s[16:17]")
            e.i("s_waitcnt lgkmcnt(0)")
            e.i("v_mov_b32 v%d, s16" % (A + 8))
            e.i("v_mov_b32 v%d, 0" % (A + 12))
            e.i("buffer_store_dword v%d, v%d, s[%d:%d], s18 offen offset:12" % (A + 8, A + 12, sWS, sWS + 3))
    e.raw("L_done1:")
    e.i("s_endpgm")
    if WSC:
        e.label("L_init")
        e.i("s_cmp_lg_u32 s2, %d" % (NWG if WSC == 1 else 100000))
        e.i("s_cbranch_scc1 L_done1")
        e.i("v_readfirstlane_b32 s%d, v0" % sT0)
        e.i("s_cmp_lg_u32 s%d, 0" % sT0)
        e.i("s_cbranch_scc1 L_done1")
        e.i("s_load_dwordx4 s[%d:%d], s[0:1], 64" % (sPtr + 16, sPtr + 19))
        e.i("v_mul_u32_u24 v2, %d, v0" % CSTR)
        e.i("v_mov_b32 v3, 0")
        e.i("v_mov_b32 v4, 1")
        e.i("s_mov_b32 s%d, %d" % (sT1, CB))
        for srd, n in ((sWS, 1 << 24), (sDBG, 256)):
            e.i("s_mov_b32 s%d, %d" % (srd + 2, n))
            e.i("s_mov_b32 s%d, 0x00020000" % (srd + 3))
        e.i("s_waitcnt lgkmcnt(0)")
        for srd, p_ in ((sWS, pws), (sDBG, pdbg)):
            e.i("s_mov_b32 s%d, s%d" % (srd, p_))
            e.i("s_mov_b32 s%d, s%d" % (srd + 1, p_ + 1))
        e.i("v_mov_b32 v5, 1")
        e.i("s_mov_b64 exec, 1")
        e.i("buffer_atomic_add v5, v3, s[%d:%d], 0 offen offset:4 sc0" % (sDBG, sDBG + 3))
        e.i("s_mov_b64 exec, -1")
        e.i("s_waitcnt vmcnt(0)")
        e.i("v_readfirstlane_b32 s%d, v5" % sT0)
        e.i("s_cmp_lg_u32 s%d, 0" % sT0)
        e.i("s_cbranch_scc1 L_done1")
        e.i("buffer_store_dword v3, v2, s[%d:%d], s%d offen sc1" % (sWS, sWS + 3, sT1))
        e.i("s_waitcnt vmcnt(0)")
        e.i("s_mov_b64 exec, 1")
        e.i("buffer_store_dword v4, v3, s[%d:%d], 0 offen sc1" % (sDBG, sDBG + 3))
        e.i("s_endpgm")
    k1 = e.text()


    hdr = open("cdna_kernels/%s.s.ref" % NAME).read().split("; Override launch geometry")[0]
    out = hdr
    if not LIST:
        out += "; @launch grid=(%d,1,1) block=(%d,1,1) lds=%d\n" % (NWG + (1 if WSC else 0), WPW * 64, LDS)
    else:
        out += "; @launch kernel=%s_kernel grid=(%d,1,1) block=(%d,1,1) lds=%d\n" % (NAME, NWG + (1 if WSC else 0), WPW * 64, LDS)
    out += '.amdgcn_target "amdgcn-amd-amdhsa--gfx950"\n.text\n'
    out += ".globl %s_kernel\n.p2align 8\n.type %s_kernel,@function\n" % (NAME, NAME)
    out += k1
    out += '.section .rodata,"a"\n'
    out += (".p2align 6\n.amdhsa_kernel %s\n  .amdhsa_next_free_vgpr %d\n  .amdhsa_next_free_sgpr %d\n"
            "  .amdhsa_accum_offset %d\n  .amdhsa_group_segment_fixed_size 0\n  .amdhsa_kernarg_size 80\n"
            "  .amdhsa_user_sgpr_count 2\n  .amdhsa_user_sgpr_kernarg_segment_ptr 1\n"
            "  .amdhsa_system_sgpr_workgroup_id_x 1\n.end_amdhsa_kernel\n") % (NAME + "_kernel", VG, 100, (VG + 3) // 4 * 4)
    mv = max([int(x) for x in re.findall(r"\bv(\d+)\b", k1)] + [int(x) for x in re.findall(r"v\[\d+:(\d+)\]", k1)])
    ms = max([int(x) for x in re.findall(r"\bs(\d+)\b", k1)] + [int(x) for x in re.findall(r"s\[\d+:(\d+)\]", k1)])
    assert mv < VG <= 256 and ms < 100, (mv, VG, ms)
    return out


def parse_gs(s):
    out = []
    for part in s.split(","):
        if "x" in part:
            v, n = part.split("x")
            out += [int(v)] * int(n)
        else:
            out.append(int(part))
    return out


if __name__ == "__main__":
    ap = argparse.ArgumentParser()
    ap.add_argument("--gs", default="4x8,2x8,1x16")
    ap.add_argument("--ns", type=int, default=14)
    ap.add_argument("--stamp", type=int, default=0)
    ap.add_argument("--list", type=int, default=1)
    ap.add_argument("--exact", type=int, default=1)
    ap.add_argument("--lastbar", type=int, default=0)
    ap.add_argument("--mapd", type=int, default=0)
    ap.add_argument("--fake", type=int, default=0)
    ap.add_argument("--frot", type=int, default=0)
    ap.add_argument("--wsc", type=int, default=0)
    ap.add_argument("--split8", type=int, default=0)
    ap.add_argument("--cstr", type=int, default=4096)
    ap.add_argument("--goff", type=int, default=0)
    ap.add_argument("--pls", type=int, default=0)
    ap.add_argument("--late", type=int, default=0)
    ap.add_argument("-o", required=True)
    a_ = ap.parse_args()
    s = gen(GS=parse_gs(a_.gs), NS=a_.ns, STAMP=a_.stamp, LIST=a_.list, EXACT=a_.exact, LASTBAR=a_.lastbar, MAPD=a_.mapd, FAKE=a_.fake, FROT=a_.frot, WSC=a_.wsc, SPLIT8=a_.split8, CSTR=a_.cstr, GOFF=a_.goff, PLS=a_.pls, LATE=a_.late)
    open(a_.o, "w").write(s)
    print("wrote", a_.o, len(s), "bytes")
```

```python
import re
import sys
import struct
import argparse

NAME = "standalone__kv_cache_quant_int4_int2_kv_with_per_channel_or_per_token_scales__decode"


def f2u(x):
    return struct.unpack("<I", struct.pack("<f", x))[0]


REG_RE = re.compile(r"\b([vs])(\d+)\b|\b([vs])\[(\d+):(\d+)\]|\b(vcc)\b")


def regs_of(op):
    out = set()
    for m in REG_RE.finditer(op):
        if m.group(1):
            out.add((m.group(1), int(m.group(2))))
        elif m.group(3):
            for r in range(int(m.group(4)), int(m.group(5)) + 1):
                out.add((m.group(3), r))
        else:
            out.add(("vcc", 0))
    return out


TRANS = ("v_exp_f32", "v_log_f32", "v_rcp_f32", "v_rsq_f32", "v_sqrt_f32")


class Emit:
    def __init__(self):
        self.lines = []
        self.hist = []

    def raw(self, s):
        self.lines.append(s)

    def label(self, s):
        self.i("s_nop 4")
        self.lines.append(s + ":")
        self.hist = []

    def comment(self, s):
        self.lines.append("    ; " + s)

    def i(self, text):
        text = text.strip()
        mn = text.split()[0]
        rest = text[len(mn):].strip()
        ops = [o.strip() for o in rest.split(",")] if rest else []
        clean = []
        for o in ops:
            clean.append(o.split()[0] if o.split() else o)
        ops = clean
        is_valu = mn.startswith("v_")
        is_vmem = mn.startswith("buffer_") or mn.startswith("global_")
        is_dpp = "_dpp" in mn
        is_perm = mn.startswith("v_permlane")
        is_rl = mn.startswith("v_readlane") or mn.startswith("v_readfirstlane")
        writes, reads = set(), set()
        if is_valu:
            if is_perm:
                writes = regs_of(ops[0]) | regs_of(ops[1])
                reads = set(writes)
            else:
                writes = regs_of(ops[0])
                for o in ops[1:]:
                    reads |= regs_of(o)
                if "fmac" in mn or is_dpp:
                    reads |= regs_of(ops[0])
                if mn.startswith("v_cndmask") and len(ops) == 3:
                    reads.add(("vcc", 0))
        elif is_vmem:
            for o in ops:
                reads |= regs_of(o)
        elif mn.startswith("ds_"):
            for o in ops:
                reads |= regs_of(o)
        else:
            for o in ops:
                reads |= regs_of(o)
        need = 0
        for dist, h in enumerate(reversed(self.hist)):
            req = 0
            if h["valu"]:
                vw = {r for r in h["writes"] if r[0] == "v"}
                sw = {r for r in h["writes"] if r[0] in ("s", "vcc")}
                if (is_dpp or is_perm) and (vw & reads):
                    req = max(req, 2)
                if is_rl and (vw & reads):
                    req = max(req, 1)
                if is_valu and (sw & reads):
                    req = max(req, 4 if is_rl else 2)
                if is_vmem and (sw & reads):
                    req = max(req, 5)
                if (not is_valu) and (not is_vmem) and (sw & reads):
                    req = max(req, 4)
                if h["trans"] and is_valu and (vw & reads):
                    req = max(req, 1)
            if h["wide_store"] and is_valu and (h["reads"] & writes):
                req = max(req, 2)
            need = max(need, req - h["after"])
        if need > 0:
            self._push("s_nop %d" % (need - 1), need, dict(valu=False, writes=set(), reads=set(), trans=False, wide_store=False))
        wide = is_vmem and "store" in mn and ("x4" in mn or "x3" in mn)
        self._push(text, 1, dict(valu=is_valu, writes=writes, reads=reads, trans=mn.startswith(TRANS), wide_store=wide))

    def _push(self, text, states, info):
        if text.startswith("s_nop"):
            states = int(text.split()[1]) + 1
        for h in self.hist:
            h["after"] += states
        info["after"] = 0
        self.hist.append(info)
        self.hist = [h for h in self.hist if h["after"] < 8]
        self.lines.append("    " + text)

    def text(self):
        return "\n".join(self.lines) + "\n"


def gen(BAR=8, GS=None, NS=14, STAMP=0, LIST=1, EXACT=1, LASTBAR=0, MAPD=0, FAKE=0, FROT=0, WSC=0, SPLIT8=0, CSTR=4096, GOFF=0, PLS=0, LATE=0, MBX=0, SPEC=0):
    R = 16
    WPW = 4
    NWG = 256
    NSPLIT = 16
    LOG_WPW = 2
    LOG_NSPLIT = 4
    CSCALE = (128.0 ** -0.5) * 1.4426950408889634
    ntf = " nt"
    assert BAR == 8
    D0 = 16

    e = Emit()
    vLoff, vSoff, vLdsW, vLdsR = 0, 1, 2, 3
    vM = 4
    vT0, vT1, vT2 = 6, 7, 5
    vL = 8
    vZ = 10
    vVS = 12
    vP = 14
    vPP = 16
    vLane = 18
    vT3 = 19
    QS = 20
    O = 52
    A = 84
    RING = 100
    NV = RING + 4 * R
    vStamp = NV
    if STAMP >= 2:
        NV += 1
    vTk, vSL, vTab, vSoffD, vVSn, vVSn1, vFl = range(NV, NV + 7)
    NV += 7
    CB = 12 << 20
    MBXB = 32 * NSPLIT * 512 + 32 * NSPLIT * 8
    assert not MBX or (WSC and len(GS) <= 60)
    VG = max(NV, RING + 64)
    DT = (16 - NS) * 4
    assert DT >= 4
    assert sum(GS) == 8 * DT and all(x in (1, 2, 4) for x in GS) and all(GS[k] >= GS[k + 1] for k in range(len(GS) - 1))
    st = [0]
    for n_ in GS:
        st.append(st[-1] + n_)
    assert all(st[k] % GS[k] == 0 for k in range(len(GS)))
    NB = 0
    if len(GS) > 60:
        NB = sum(1 for x in GS if x == 4)
        st = st[NB:]
        assert len(st) <= 61
    POW2 = DT & (DT - 1) == 0
    if not POW2:
        DSH = 16
        DM = (1 << DSH) // DT + 1
        assert all((u * DM) >> DSH == u // DT for u in range(8 * DT + 1))
    TICKOFF = WPW * 512 + WPW * 1024 + WPW * 16
    SCB = TICKOFF + 16
    PR = DT * 128
    VZD = 8192 + (8 * PR if PLS else 0)
    if PLS:
        GOFF = 1
    CNTOFF = TICKOFF + 4
    RT = 64 * WPW
    GSTR = 8 * WPW
    GB = GSTR * 512
    NSL = 2 if NS > 8 else 1

    def qs(sc):
        return "v[%d:%d]" % (QS + 2 * sc, QS + 2 * sc + 1)

    def o(sc):
        return "v[%d:%d]" % (O + 2 * sc, O + 2 * sc + 1)

    def a(i):
        return "v[%d:%d]" % (A + 2 * i, A + 2 * i + 1)

    def ring(slot):
        return RING + 4 * slot

    sK, sV, sVS, sVZ = 8, 12, 16, 20
    sQ, sKS, sKZ, sWS = 24, 28, 32, 36
    sX = 24
    sXoff, sGn, sXadd = 28, 29, 30
    sMaskE = 32
    sWoff = 34
    sFl = 35
    sPW = 31
    sKoff, sVoff, sSoff, sCnt = 40, 41, 42, 43
    sMask1, sMask0 = 44, 46
    sM0, sM1 = 48, 49
    sF = 50
    sC0, sC1 = 52, 53
    sWave, sGW, sKVH, sRB, sT0, sT1 = 54, 55, 56, 57, 58, 59
    sPtr = 60
    sL0, sZ0, sL1, sZ1 = 80, 81, 82, 83
    sSplit = 84
    sEx = 86
    sQi = 94
    sDBG = 4
    sCur, sTkt, sD0, sD1, sBar = 95, 85, 91, 92, 93

    def load(slot, srd, so, seg, extra=()):
        r = ring(slot)
        e.i("buffer_load_dwordx4 v[%d:%d], v%d, s[%d:%d], s%d offen offset:%d%s" % (r, r + 3, vLoff, srd, srd + 3, so, seg * 128, ntf))
        if seg == 3:
            for s_ in (so,) + tuple(extra):
                e.i("s_add_u32 s%d, s%d, %d" % (s_, s_, GB))

    def issue_own(G, j):
        if j < 4 * G:
            load(j % R, sK, sKoff, j % 4)
        else:
            load(j % R, sV, sVoff, j % 4)

    def issue_next(i):
        if i < 8:
            load(i % R, sK, sKoff, i % 4)
        else:
            load(i % R, sX, sXoff, i % 4, extra=(sKoff,))

    pq, pqk, pqv, pks, pkz, pvs, pvz, pout, pdbg, pws = [sPtr + 2 * k for k in range(10)]

    e.raw("%s_kernel:" % NAME)
    e.i("s_cmp_ge_u32 s2, %d" % NWG)
    e.i("s_cbranch_scc1 %s" % ("L_init" if WSC else "L_done1"))
    if STAMP:
        e.i("s_memrealtime s[88:89]")
    e.i("s_load_dwordx16 s[%d:%d], s[0:1], 0" % (sPtr, sPtr + 15))
    e.i("s_load_dwordx4 s[%d:%d], s[0:1], 64" % (sPtr + 16, sPtr + 19))
    e.i("v_lshrrev_b32 v%d, 6, v0" % vT0)
    e.i("v_and_b32 v%d, 63, v0" % vLane)
    e.i("v_readfirstlane_b32 s%d, v%d" % (sWave, vT0))
    e.i("v_lshrrev_b32 v%d, 3, v%d" % (vT0, vLane))
    e.i("v_and_b32 v%d, 7, v%d" % (vT1, vLane))
    e.i("v_lshlrev_b32 v%d, 9, v%d" % (vLoff, vT0))
    e.i("v_lshl_add_u32 v%d, v%d, 4, v%d" % (vLoff, vT1, vLoff))
    e.i("s_lshr_b32 s%d, s2, 3" % sQi)
    e.i("s_lshl_b32 s%d, s%d, 24" % (sRB, sQi))
    e.i("s_and_b32 s%d, s2, 7" % sT0)
    e.i("s_lshl_b32 s%d, s%d, 12" % (sT0, sT0))
    e.i("s_lshl_b32 s%d, s%d, 3" % (sCur, sWave))
    e.i("s_add_u32 s%d, s%d, s%d" % (sCur, sCur, sT0))
    e.i("s_lshl_b32 s%d, s%d, 9" % (sKoff, sCur))
    e.i("s_lshl_b32 s%d, s%d, 9" % (sVoff, sCur))
    for srd in (sK, sV):
        e.i("s_mov_b32 s%d, %d" % (srd + 2, 32768 * 512))
        e.i("s_mov_b32 s%d, 0x00020000" % (srd + 3))
    e.i("v_lshrrev_b32 v%d, 2, v%d" % (vT2, vT1))
    e.i("v_and_b32 v%d, 2, v%d" % (vT3, vT1))
    e.i("v_add_u32 v%d, v%d, v%d" % (vT2, vT2, vT3))
    e.i("v_and_b32 v%d, 1, v%d" % (vT3, vT1))
    e.i("v_lshl_add_u32 v%d, v%d, 2, v%d" % (vT2, vT3, vT2))
    e.i("v_lshl_add_u32 v%d, v%d, %d, v%d" % (vSoff, vT2, GSTR.bit_length() - 1, vT0))
    e.i("v_lshlrev_b32 v%d, 1, v%d" % (vSoff, vSoff))
    e.i("s_lshl_b32 s%d, s%d, 9" % (sT0, sWave))
    e.i("v_lshlrev_b32 v%d, 6, v%d" % (vLdsR, vT0))
    e.i("v_add_u32 v%d, s%d, v%d" % (vLdsR, sT0, vLdsR))
    e.i("v_lshl_add_u32 v%d, v%d, 3, v%d" % (vLdsW, vT2, vLdsR))
    e.i("s_mov_b32 s%d, 0xcccccccc" % sMask1)
    e.i("s_mov_b32 s%d, 0xcccccccc" % (sMask1 + 1))
    e.i("s_mov_b32 s%d, 0xaaaaaaaa" % sMask0)
    e.i("s_mov_b32 s%d, 0xaaaaaaaa" % (sMask0 + 1))
    e.i("s_lshl_b32 s%d, s2, %d" % (sGW, LOG_WPW))
    e.i("s_add_u32 s%d, s%d, s%d" % (sGW, sGW, sWave))
    e.i("s_lshr_b32 s%d, s2, 4" % sKVH)
    e.i("s_and_b32 s%d, s2, %d" % (sSplit, NSPLIT - 1))
    e.i("s_cmp_eq_u32 s%d, 0" % sWave)
    e.i("s_cselect_b32 s%d, %d, 1000" % (sTkt, NS - 1 if FAKE != 1 else 1000))
    e.i("v_lshlrev_b32 v%d, 3, v%d" % (vT3, vT1))
    e.i("v_lshlrev_b32 v%d, 4, v%d" % (vT0, vLane))
    for srd, n in ((sVS, 65536), (sVZ, 65536), (sQ, 8192), (sKS, 8192), (sKZ, 8192), (sWS, 1 << 24), (sDBG, 256)):
        e.i("s_mov_b32 s%d, %d" % (srd + 2, n))
        e.i("s_mov_b32 s%d, 0x00020000" % (srd + 3))
    e.i("s_waitcnt lgkmcnt(0)")
    if STAMP >= 2:
        e.i("s_mov_b32 s98, 0")
        e.i("v_mov_b32 v%d, 0" % vStamp)
        e.i("s_memtime s[96:97]")
        e.i("s_waitcnt lgkmcnt(0)")
        e.i("v_writelane_b32 v%d, s96, 63" % vStamp)
        e.i("s_memrealtime s[96:97]")
        e.i("s_waitcnt lgkmcnt(0)")
        e.i("v_writelane_b32 v%d, s96, 61" % vStamp)
    for srd, p in ((sK, pqk), (sV, pqv)):
        e.i("s_add_u32 s%d, s%d, s%d" % (srd, p, sRB))
        e.i("s_addc_u32 s%d, s%d, 0" % (srd + 1, p + 1))
    e.i("s_lshl_b32 s%d, s%d, 16" % (sT0, sQi))
    for srd, p in ((sVS, pvs), (sVZ, pvz)):
        e.i("s_add_u32 s%d, s%d, s%d" % (srd, p, sT0))
        e.i("s_addc_u32 s%d, s%d, 0" % (srd + 1, p + 1))
    for srd, p in ((sQ, pq), (sKS, pks), (sKZ, pkz), (sWS, pws), (sDBG, pdbg)):
        e.i("s_mov_b32 s%d, s%d" % (srd, p))
        e.i("s_mov_b32 s%d, s%d" % (srd + 1, p + 1))
    e.i("s_lshl_b32 s%d, s%d, 9" % (sT0, sKVH))
    e.i("s_lshl_b32 s%d, s%d, 8" % (sT1, sQi))
    order = [("q", 0, 0), ("ks", 0, 0), ("kz", 0, 0)] + [("q", h, s_) for h in range(2) for s_ in range(4) if (h, s_) != (0, 0)] + [("ks", 0, s_) for s_ in range(1, 4)] + [("kz", 0, s_) for s_ in range(1, 4)]
    for kind, h, seg in order:
        if kind == "q":
            r = O + (h * 4 + seg) * 2
            e.i("buffer_load_dwordx2 v[%d:%d], v%d, s[%d:%d], s%d offen offset:%d" % (r, r + 1, vT3, sQ, sQ + 3, sT0, h * 256 + seg * 64))
        elif kind == "ks":
            r = O + 16 + seg * 2
            e.i("buffer_load_dwordx2 v[%d:%d], v%d, s[%d:%d], s%d offen offset:%d" % (r, r + 1, vT3, sKS, sKS + 3, sT1, seg * 64))
        else:
            r = O + 24 + seg * 2
            e.i("buffer_load_dwordx2 v[%d:%d], v%d, s[%d:%d], s%d offen offset:%d" % (r, r + 1, vT3, sKZ, sKZ + 3, sT1, seg * 64))
    e.i("s_and_b32 s%d, s2, 7" % sT0)
    e.i("s_lshl_b32 s%d, s%d, 13" % (sT0, sT0))
    e.i("s_mul_i32 s%d, s%d, %d" % (sT1, sWave, 1024 * NSL))
    e.i("s_add_u32 s%d, s%d, s%d" % (sT0, sT0, sT1))
    for k_ in range(NSL):
        e.i("buffer_load_dwordx4 v[%d:%d], v%d, s[%d:%d], s%d offen offset:%d" % (QS + 8 * k_, QS + 8 * k_ + 3, vT0, sVS, sVS + 3, sT0, 1024 * k_))
        e.i("buffer_load_dwordx4 v[%d:%d], v%d, s[%d:%d], s%d offen offset:%d" % (QS + 8 * k_ + 4, QS + 8 * k_ + 7, vT0, sVZ, sVZ + 3, sT0, 1024 * k_))
    e.i("v_add_u32 v%d, s%d, v%d" % (vT1, sT1, vT0))
    e.i("s_lshl_b32 s%d, s%d, 4" % (sT1, sWave))
    e.i("v_add_u32 v%d, s%d, v%d" % (vSL, sT1, vSoff))
    pool = []
    if PLS:
        assert NSL == 2
        PW = 4 if PR % 1024 == 0 else 2
        PB = 256 * PW
        free = list(range(QS + 16, QS + 32)) + list(range(A, A + 16))
        e.i("v_lshlrev_b32 v%d, %d, v%d" % (vVSn, PW.bit_length() + 1, vLane))
        e.i("s_mul_i32 s%d, s%d, %d" % (sT1, sWave, 2 * PR))
        e.i("v_add_u32 v%d, s%d, v%d" % (vVSn1, sT1, vVSn))
        e.i("s_lshl_b32 s%d, s%d, 14" % (sSoff, sWave))
        e.i("s_add_u32 s%d, s%d, %d" % (sSoff, sSoff, NS * 512))
        e.i("s_add_u32 s%d, s%d, 8192" % (sD0, sSoff))
        for rr in range(2):
            for k_ in range(PR // PB):
                for ai, srd in enumerate((sVS, sVZ)):
                    r0 = free[0]
                    assert free[:PW] == list(range(r0, r0 + PW))
                    del free[:PW]
                    e.i("buffer_load_dwordx%d v[%d:%d], v%d, s[%d:%d], s%d offen offset:%d" % (PW, r0, r0 + PW - 1, vVSn, srd, srd + 3, (sSoff, sD0)[rr], PB * k_))
                    pool.append((r0, SCB + 8192 + ai * VZD + rr * PR + PB * k_))
    for j in range(D0):
        issue_own(8, j)
    if WSC:
        e.i("s_mul_i32 s%d, s%d, %d" % (sQi, sQi, CSTR))
        e.i("s_add_u32 s%d, s%d, %d" % (sQi, sQi, CB))
    else:
        e.i("s_lshl_b32 s%d, s%d, 2" % (sQi, sQi))
    e.i("v_mov_b32 v%d, %d" % (vTab, st[-1]))
    for k_, v_ in enumerate(st[:-1]):
        if v_ <= 64:
            e.i("v_writelane_b32 v%d, %d, %d" % (vTab, v_, k_))
        else:
            e.i("s_mov_b32 s%d, %d" % (sT0, v_))
            e.i("v_writelane_b32 v%d, s%d, %d" % (vTab, sT0, k_))
    e.i("v_mov_b32 v%d, 0" % vT2)
    e.i("ds_write_b32 v%d, v%d offset:%d" % (vT2, vT2, CNTOFF))
    for r in (vL, vL + 1, vZ, vZ + 1):
        e.i("v_mov_b32 v%d, 0" % r)
    e.i("v_mov_b32 v%d, 0x%08x" % (vM, f2u(-3.0e38)))
    e.i("s_mov_b32 s%d, 0" % sCnt)
    e.i("s_mov_b32 s%d, 0x%08x" % (sT0, f2u(CSCALE)))
    e.i("s_waitcnt vmcnt(%d)" % D0)
    e.i("s_mov_b32 s%d, s%d" % (sX, sK))
    e.i("s_mov_b32 s%d, s%d" % (sX + 1, sK + 1))
    e.i("s_mov_b32 s%d, %d" % (sX + 2, 32768 * 512))
    e.i("s_mov_b32 s%d, 0x00020000" % (sX + 3))
    e.i("s_mov_b32 s%d, 4" % sGn)
    e.i("s_mov_b32 s%d, %d" % (sXadd, 2 * GB))
    e.i("s_mov_b32 s%d, 0xeeeeeeee" % sMaskE)
    e.i("s_mov_b32 s%d, 0xeeeeeeee" % (sMaskE + 1))
    e.i("s_sub_u32 s%d, s%d, %d" % (sFl, sTkt, 0 if LATE else 1))
    e.i("s_lshl_b32 s%d, s%d, 3" % (sWoff, sWave))
    e.i("s_add_u32 s%d, s%d, %d" % (sWoff, sWoff, NS * RT))
    for k_ in range(NSL):
        e.i("ds_write_b128 v%d, v[%d:%d] offset:%d" % (vT1, QS + 8 * k_, QS + 8 * k_ + 3, SCB + 1024 * k_))
        e.i("ds_write_b128 v%d, v[%d:%d] offset:%d" % (vT1, QS + 8 * k_ + 4, QS + 8 * k_ + 7, SCB + VZD + 1024 * k_))
    if PLS:
        e.i("s_lshl_b32 s%d, s%d, 4" % (sPW, sWave))
        e.i("s_add_u32 s%d, s%d, 8192" % (sPW, sPW))
        for r0, off in pool:
            e.i("ds_write_b%d v%d, v[%d:%d] offset:%d" % (32 * PW, vVSn1, r0, r0 + PW - 1, off))
        if any(r0 >= A for r0, _ in pool):
            e.i("s_waitcnt lgkmcnt(0)")
    for seg in range(4):
        for half in range(2):
            src = O + 16 + seg * 2 + half
            d0 = A + seg * 4 + half * 2
            e.i("v_lshlrev_b32 v%d, 16, v%d" % (d0, src))
            e.i("v_and_b32 v%d, 0xffff0000, v%d" % (d0 + 1, src))
    for k in range(16):
        e.i("v_mul_f32 v%d, s%d, v%d" % (A + k, sT0, A + k))
    e.i("s_waitcnt lgkmcnt(0)")
    for h in range(2):
        for seg in range(4):
            for half in range(2):
                src = O + (h * 4 + seg) * 2 + half
                sc0 = seg * 4 + half * 2
                e.i("v_lshlrev_b32 v%d, 16, v%d" % (QS + 2 * sc0 + h, src))
                e.i("v_and_b32 v%d, 0xffff0000, v%d" % (QS + 2 * (sc0 + 1) + h, src))
    for sc in range(16):
        for h in range(2):
            e.i("v_mul_f32 v%d, v%d, v%d" % (QS + 2 * sc + h, QS + 2 * sc + h, A + sc))
    for seg in range(4):
        for half in range(2):
            src = O + 24 + seg * 2 + half
            d0 = A + seg * 4 + half * 2
            e.i("v_lshlrev_b32 v%d, 16, v%d" % (d0, src))
            e.i("v_and_b32 v%d, 0xffff0000, v%d" % (d0 + 1, src))
    for h in range(2):
        t = vT0 + h
        e.i("v_mul_f32 v%d, v%d, v%d" % (t, QS + h, A))
        for sc in range(1, 16):
            e.i("v_fmac_f32 v%d, v%d, v%d" % (t, QS + 2 * sc + h, A + sc))
    for mod in ("quad_perm:[1,0,3,2]", "quad_perm:[2,3,0,1]", "row_half_mirror"):
        for h in range(2):
            t = vT0 + h
            e.i("v_add_f32_dpp v%d, v%d, v%d %s row_mask:0xf bank_mask:0xf" % (t, t, t, mod))
    e.i("v_readfirstlane_b32 s%d, v%d" % (sC0, vT0))
    e.i("v_readfirstlane_b32 s%d, v%d" % (sC1, vT1))
    for k in range(32):
        e.i("v_mov_b32 v%d, 0" % (O + k))
    FUSE = 1

    def stepA(x, y):
        for k in range(2):
            e.i("v_add_f32_dpp v%d, v%d, v%d row_half_mirror row_mask:0xf bank_mask:0x5" % (A + 2 * x + k, A + 2 * x + k, A + 2 * x + k))
        for k in range(2):
            e.i("v_add_f32_dpp v%d, v%d, v%d row_half_mirror row_mask:0xf bank_mask:0xa" % (A + 2 * x + k, A + 2 * y + k, A + 2 * y + k))

    def stepQ(x, y, mask, perm, out):
        for k in range(2):
            X, Y = A + 2 * x + k, A + 2 * y + k
            t = vT0 + k
            e.i("v_cndmask_b32 v%d, v%d, v%d, s[%d:%d]" % (t, Y, X, mask, mask + 1))
            e.i("v_cndmask_b32 v%d, v%d, v%d, s[%d:%d]" % (Y, X, Y, mask, mask + 1))
        for k in range(2):
            Y = A + 2 * y + k
            t = vT0 + k
            e.i("v_add_f32_dpp v%d, v%d, v%d %s row_mask:0xf bank_mask:0xf" % (out + k, t, Y, perm))

    def stepP(perm):
        for k in range(2):
            e.i("v_add_f32_dpp v%d, v%d, v%d %s row_mask:0xf bank_mask:0xf" % (A + k, A + k, A + k, perm))

    def softmax(G):
        S0, S1 = A, A + 1
        e.i("v_mov_b32 v%d, v%d" % (vT0, S0))
        e.i("v_mov_b32 v%d, v%d" % (vT1, S1))
        e.i("v_lshlrev_b32 v%d, 16, v%d" % (vVS, vVS))
        e.i("v_lshlrev_b32 v%d, 16, v%d" % (vVS + 1, vVS + 1))
        e.i("v_permlane32_swap_b32 v%d, v%d" % (vT0, vT1))
        e.i("v_max_f32 v%d, v%d, v%d" % (vT0, vT0, vT1))
        e.i("v_mov_b32 v%d, v%d" % (vT1, vT0))
        e.i("v_permlane16_swap_b32 v%d, v%d" % (vT0, vT1))
        e.i("v_max_f32 v%d, v%d, v%d" % (vT0, vT0, vT1))
        for rr in (8, 4, 2, 1):
            e.i("v_max_f32_dpp v%d, v%d, v%d row_ror:%d row_mask:0xf bank_mask:0xf" % (vT0, vT0, vT0, rr))
        e.i("v_max_f32 v%d, v%d, v%d" % (vT0, vT0, vM))
        e.i("v_sub_f32 v%d, v%d, v%d" % (vT1, vM, vT0))
        e.i("v_exp_f32 v%d, v%d" % (vT1, vT1))
        e.i("v_mov_b32 v%d, v%d" % (vM, vT0))
        e.i("v_readlane_b32 s%d, v%d, 0" % (sM0, vT0))
        e.i("v_readlane_b32 s%d, v%d, 32" % (sM1, vT0))
        e.i("v_readlane_b32 s%d, v%d, 0" % (sF, vT1))
        e.i("v_readlane_b32 s%d, v%d, 32" % (sF + 1, vT1))
        e.i("v_subrev_f32 v%d, s%d, v%d" % (vP, sM0, S0))
        e.i("v_subrev_f32 v%d, s%d, v%d" % (vP + 1, sM1, S1))
        e.i("v_exp_f32 v%d, v%d" % (vP, vP))
        e.i("v_exp_f32 v%d, v%d" % (vP + 1, vP + 1))
        if G < 8:
            mk = sMask0 if G == 4 else sMaskE
            for k in range(2):
                e.i("v_cndmask_b32 v%d, v%d, 0, s[%d:%d]" % (vP + k, vP + k, mk, mk + 1))
        P = "v[%d:%d]" % (vP, vP + 1)
        PP = "v[%d:%d]" % (vPP, vPP + 1)
        L = "v[%d:%d]" % (vL, vL + 1)
        Z = "v[%d:%d]" % (vZ, vZ + 1)
        VS = "v[%d:%d]" % (vVS, vVS + 1)
        F = "s[%d:%d]" % (sF, sF + 1)
        e.i("v_pk_mul_f32 %s, %s, %s" % (Z, Z, F))
        e.i("v_pk_mul_f32 %s, %s, %s op_sel:[0,0] op_sel_hi:[1,0]" % (PP, P, VS))
        e.i("v_pk_fma_f32 %s, %s, %s, %s" % (L, L, F, P))
        e.i("ds_write_b64 v%d, %s" % (vLdsW, PP))
        e.i("v_pk_fma_f32 %s, %s, %s, %s op_sel:[0,1,0] op_sel_hi:[1,1,1]" % (Z, PP, VS, Z))
        for k in range(G // 2):
            e.i("ds_read_b128 v[%d:%d], v%d offset:%d" % (A + 4 * k, A + 4 * k + 3, vLdsR, 16 * k))
        for sc in range(16):
            e.i("v_pk_mul_f32 %s, %s, %s" % (o(sc), o(sc), F))

    def publish(tag):
        e.i("s_cmp_lt_u32 s%d, s%d" % (sCnt, sTkt))
        e.i("s_cbranch_scc1 L_np%s" % tag)
        e.i("s_mov_b64 exec, 1")
        e.i("ds_write_b32 v%d, v%d offset:%d" % (vT2, vT3, TICKOFF))
        e.i("s_mov_b64 exec, -1")
        e.i("s_waitcnt lgkmcnt(0)")
        e.label("L_np%s" % tag)

    def request(G, tag):
        e.i("s_lshl_b32 s%d, s%d, 9" % (sKoff, sCur))
        e.i("s_lshl_b32 s%d, s%d, 9" % (sVoff, sCur))
        e.i("s_add_u32 s%d, s%d, s%d" % (sXoff, sKoff, sXadd))
        if WSC and G == 8 and not tag.endswith("d"):
            e.i("s_cmp_lg_u32 s%d, s%d" % (sCnt, sFl))
            e.i("s_cbranch_scc1 L_nf%s" % tag)
            e.i("s_mov_b64 exec, 1")
            e.i("buffer_load_dword v%d, v%d, s[%d:%d], 0 offen sc1" % (vFl, vT2, sDBG, sDBG + 3))
            e.i("s_mov_b64 exec, -1")
            e.label("L_nf%s" % tag)
        if LATE and G == 8:
            assert SPLIT8
            if not tag.endswith("d"):
                return
            e.i("s_cmp_eq_u32 s%d, 4" % sGn)
            e.i("s_cbranch_scc1 L_nt%s" % tag)
        ticket(tag, WSC and G == 8 and not tag.endswith("d"))

    def ticket(tag, check):
        e.i("s_cmp_lt_u32 s%d, s%d" % (sCnt, sTkt))
        e.i("s_cbranch_scc1 L_nt%s" % tag)
        e.i("v_mov_b32 v%d, 1" % vT3)
        e.i("s_mov_b64 exec, 1")
        if check:
            e.i("v_readfirstlane_b32 s%d, v%d" % (sT0, vFl))
            e.i("s_cmp_lg_u32 s%d, 0" % sT0)
            e.i("s_cbranch_scc1 L_fo%s" % tag)
            e.i("v_mov_b32 v%d, 1" % vFl)
            e.i("buffer_atomic_add v%d, v%d, s[%d:%d], 0 offen offset:4 sc0" % (vFl, vT2, sDBG, sDBG + 3))
            e.i("s_waitcnt vmcnt(0)")
            e.i("v_readfirstlane_b32 s%d, v%d" % (sT0, vFl))
            e.i("s_cmp_lg_u32 s%d, 0" % sT0)
            e.i("s_cbranch_scc1 L_fs%s" % tag)
            e.i("s_mov_b64 exec, -1")
            e.i("v_mul_u32_u24 v%d, %d, v%d" % (vT0, CSTR, vLane))
            e.i("s_mov_b32 s%d, %d" % (sT0, CB))
            e.i("buffer_store_dword v%d, v%d, s[%d:%d], s%d offen sc1" % (vT2, vT0, sWS, sWS + 3, sT0))
            if MBX:
                e.i("s_waitcnt vmcnt(0)")
                e.i("v_lshlrev_b32 v%d, 2, v%d" % (vT0, vLane))
                e.i("s_mov_b32 s%d, 0" % sT0)
                e.label("L_fz%s" % tag)
                e.i("buffer_store_dword v%d, v%d, s[%d:%d], s%d offen sc1" % (vT2, vT0, sWS, sWS + 3, sT0))
                e.i("s_add_u32 s%d, s%d, 256" % (sT0, sT0))
                e.i("s_cmp_lt_u32 s%d, %d" % (sT0, MBXB))
                e.i("s_cbranch_scc1 L_fz%s" % tag)
            e.i("s_waitcnt vmcnt(0)")
            e.i("s_mov_b64 exec, 1")
            e.i("buffer_store_dword v%d, v%d, s[%d:%d], 0 offen sc1" % (vT3, vT2, sDBG, sDBG + 3))
            e.i("s_waitcnt vmcnt(0)")
            e.i("v_mov_b32 v%d, 1" % vFl)
            e.i("s_branch L_fo%s" % tag)
            e.label("L_fs%s" % tag)
            e.i("buffer_load_dword v%d, v%d, s[%d:%d], 0 offen sc1" % (vFl, vT2, sDBG, sDBG + 3))
            e.i("s_waitcnt vmcnt(0)")
            e.i("v_readfirstlane_b32 s%d, v%d" % (sT0, vFl))
            e.i("s_cmp_eq_u32 s%d, 0" % sT0)
            e.i("s_cbranch_scc1 L_fs%s" % tag)
            e.label("L_fo%s" % tag)
        if FAKE in (3, 4):
            if FAKE == 3:
                e.i("s_lshl_b32 s%d, s2, 12" % sT0)
            else:
                e.i("s_lshl_b32 s%d, s%d, 10" % (sT0, sQi))
            e.i("s_add_u32 s%d, s%d, %d" % (sT0, sT0, 12 << 20))
            e.i("buffer_atomic_add v%d, v%d, s[%d:%d], s%d offen sc0" % (vT3, vT2, sWS, sWS + 3, sT0))
        elif FAKE == 5:
            e.i("buffer_load_dword v%d, v%d, s[%d:%d], s%d offen sc1" % (vT3, vT2, sDBG, sDBG + 3, sQi))
        elif FAKE == 6:
            e.i("buffer_atomic_add v%d, v%d, s[%d:%d], s%d offen" % (vT3, vT2, sDBG, sDBG + 3, sQi))
        elif WSC:
            e.i("buffer_atomic_add v%d, v%d, s[%d:%d], s%d offen sc0" % (vT3, vT2, sWS, sWS + 3, sQi))
        else:
            e.i("buffer_atomic_add v%d, v%d, s[%d:%d], s%d offen sc0" % (vT3, vT2, sDBG, sDBG + 3, sQi))
        e.i("s_mov_b64 exec, -1")
        e.label("L_nt%s" % tag)

    def decode(G, q):
        tag = "%d" % G
        if G == 8:
            e.i("s_add_u32 s%d, s%d, 1" % (sCnt, sCnt))
            e.i("s_add_u32 s%d, s%d, %d" % (sCur, sCur, RT))
            e.i("v_add_u32 v%d, %d, v%d" % (vSL, 2 * RT, vSL))
            e.i("s_cmp_lt_u32 s%d, %d" % (sCnt, NS))
            e.i("s_cbranch_scc1 L_noc%s" % tag)
        e.i("v_readfirstlane_b32 s%d, v%d" % (sT0, vTk))
        if FAKE:
            e.i("s_mul_i32 s%d, s%d, %d" % (sT1, sCnt, FROT))
            e.i("s_add_u32 s%d, s%d, s2" % (sT1, sT1))
            e.i("s_and_b32 s%d, s%d, 7" % (sT1, sT1))
            e.i("s_sub_u32 s%d, s%d, %d" % (sT0, sCnt, NS))
            e.i("s_lshl_b32 s%d, s%d, 3" % (sT0, sT0))
            e.i("s_add_u32 s%d, s%d, s%d" % (sT0, sT0, sT1))
        if NB and G == 8:
            e.i("s_lshl_b32 s%d, s%d, 2" % (sSoff, sT0))
        if NB:
            e.i("s_sub_i32 s%d, s%d, %d" % (sT0, sT0, NB))
            e.i("s_max_i32 s%d, s%d, 0" % (sT0, sT0))
        e.i("s_min_u32 s%d, s%d, 62" % (sT0, sT0))
        e.i("s_add_u32 s%d, s%d, 1" % (sT1, sT0))
        e.i("s_nop 3")
        e.i("v_readlane_b32 s%d, v%d, s%d" % (sD0, vTab, sT0))
        e.i("v_readlane_b32 s%d, v%d, s%d" % (sD1, vTab, sT1))
        e.i("s_sub_u32 s%d, s%d, s%d" % (sGn, sD1, sD0))
        if NB and G == 8:
            e.i("s_cmp_lt_u32 s%d, %d" % (sSoff, 4 * NB))
            e.i("s_cselect_b32 s%d, s%d, s%d" % (sD0, sSoff, sD0))
            e.i("s_cselect_b32 s%d, 4, s%d" % (sGn, sGn))
        e.i("s_cmp_eq_u32 s%d, 0" % sGn)
        e.i("s_cbranch_scc1 L_last%s" % tag)
        if MAPD:
            e.i("s_lshr_b32 s%d, s%d, 2" % (sT0, sD0))
            e.i("s_and_b32 s%d, s%d, 7" % (sT0, sT0))
            e.i("s_lshr_b32 s%d, s%d, 5" % (sT1, sD0))
            e.i("s_lshl_b32 s%d, s%d, 2" % (sT1, sT1))
            e.i("s_and_b32 s%d, s%d, 3" % (sD1, sD0))
            e.i("s_add_u32 s%d, s%d, s%d" % (sT1, sT1, sD1))
        elif POW2:
            e.i("s_lshr_b32 s%d, s%d, %d" % (sT0, sD0, DT.bit_length() - 1))
            e.i("s_and_b32 s%d, s%d, %d" % (sT1, sD0, DT - 1))
        else:
            e.i("s_mul_i32 s%d, s%d, %d" % (sT0, sD0, DM))
            e.i("s_lshr_b32 s%d, s%d, %d" % (sT0, sT0, DSH))
            e.i("s_mul_i32 s%d, s%d, %d" % (sT1, sT0, DT))
            e.i("s_sub_u32 s%d, s%d, s%d" % (sT1, sD0, sT1))
        if PLS and MAPD:
            e.i("s_mul_i32 s%d, s%d, %d" % (sD0, sT0, DT))
            e.i("s_add_u32 s%d, s%d, s%d" % (sD0, sD0, sT1))
        e.i("s_lshl_b32 s%d, s%d, 12" % (sT0, sT0))
        e.i("s_lshl_b32 s%d, s%d, 6" % (sT1, sT1))
        e.i("s_add_u32 s%d, s%d, s%d" % (sCur, sT0, sT1))
        e.i("s_add_u32 s%d, s%d, s%d" % (sCur, sCur, sWoff))
        e.i("s_lshl_b32 s%d, s%d, 7" % (sT0, sGn))
        e.i("s_sub_u32 s%d, s%d, 1" % (sT0, sT0))
        e.i("v_and_b32 v%d, s%d, v%d" % (vSoffD, sT0, vSoff))
        if PLS:
            e.i("s_lshl_b32 s%d, s%d, 7" % (sSoff, sD0))
            e.i("s_add_u32 s%d, s%d, s%d" % (sSoff, sSoff, sPW))
            e.i("v_add_u32 v%d, s%d, v%d" % (vSL, sSoff, vSoffD))
        else:
            e.i("s_lshl_b32 s%d, s%d, 1" % (sSoff, sCur))
        e.i("s_cmp_eq_u32 s%d, 1" % sGn)
        e.i("s_cselect_b32 s%d, s%d, s%d" % (sX, sV, sK))
        e.i("s_cselect_b32 s%d, s%d, s%d" % (sX + 1, sV + 1, sK + 1))
        e.i("s_cselect_b32 s%d, 0, %d" % (sXadd, 2 * GB))
        if not GOFF:
            e.i("buffer_load_ushort v%d, v%d, s[%d:%d], s%d offen" % (vVSn, vSoffD, sVS, sVS + 3, sSoff))
            e.i("buffer_load_ushort v%d, v%d, s[%d:%d], s%d offen" % (vVSn1, vSoffD, sVZ, sVZ + 3, sSoff))
        if G == 8 and not SPLIT8:
            e.label("L_noc%s" % tag)
        elif EXACT and not GOFF:
            q.append(("G", 0))
            q.append(("G", 1))
        request(G, tag + ("d" if (G == 8 and SPLIT8) else ""))

    def wait_for(q, j):
        idx = q.index(("L", j))
        n_after = len(q) - idx - 1
        assert n_after <= 63
        e.i("s_waitcnt vmcnt(%d)" % n_after)
        del q[:idx + 1]

    def compute(G, j):
        r = ring(j % R)
        for c in range(4):
            e.i("v_cvt_f32_i32 v%d, v%d" % (r + c, r + c))
        isK = j < 4 * G
        jj = j if isK else j - 4 * G
        g, seg = jj // 4, jj % 4
        for c in range(4):
            pr = "v[%d:%d]" % (r + (c & 2), r + (c & 2) + 1)
            b = c & 1
            sc = seg * 4 + c
            if isK:
                if seg == 0 and c == 0:
                    e.i("v_pk_mul_f32 %s, %s, %s op_sel:[%d,0] op_sel_hi:[%d,1]" % (a(g), pr, qs(sc), b, b))
                else:
                    e.i("v_pk_fma_f32 %s, %s, %s, %s op_sel:[%d,0,0] op_sel_hi:[%d,1,1]" % (a(g), pr, qs(sc), a(g), b, b))
            else:
                e.i("v_pk_fma_f32 %s, %s, %s, %s op_sel:[%d,0,0] op_sel_hi:[%d,1,1]" % (o(sc), pr, a(g), o(sc), b, b))

    def issue(G, q, j, last):
        nj = j + 16
        if nj < 8 * G:
            issue_own(G, nj)
            q.append(("L", nj))
        elif not last:
            issue_next(nj - 8 * G)
            q.append(("N", nj - 8 * G))

    def reduce_k(G, j):
        if j < 4 * G and j % 4 == 3:
            g = j // 4
            if g % 2 == 1:
                stepA(g - 1, g)
            if g % 4 == 3:
                stepQ(g - 3, g - 1, sMask1, "quad_perm:[2,3,0,1]", A + 2 * (g - 3))
            if g == 7:
                stepQ(0, 4, sMask0, "quad_perm:[1,0,3,2]", A)
            if G == 4 and g == 3:
                stepP("quad_perm:[1,0,3,2]")
            if G == 2 and g == 1:
                stepP("quad_perm:[2,3,0,1]")
                stepP("quad_perm:[1,0,3,2]")

    def do_softmax(G):
        e.i("s_waitcnt lgkmcnt(0)")
        if STAMP == 2:
            e.i("s_memrealtime s[96:97]")
        softmax(G)
        e.i("s_waitcnt lgkmcnt(0)")
        if STAMP == 2:
            e.i("s_mov_b32 m0, s98")
            e.i("s_add_u32 s98, s98, 1")
            e.i("s_and_b32 s98, s98, 63")
            e.i("s_and_b32 s96, s96, 0xfffffffc")
            e.i("s_or_b32 s96, s96, %d" % {8: 0, 4: 1, 2: 2}[G])
            e.i("v_writelane_b32 v%d, s96, m0" % vStamp)

    def read_scales():
        e.i("ds_read_u16 v%d, v%d offset:%d" % (vVS, vSL, SCB))
        e.i("ds_read_u16 v%d, v%d offset:%d" % (vVS + 1, vSL, SCB + VZD))

    def step(G, q, j, last, skip_pre=False):
        if not skip_pre:
            if j % BAR == 0 and (not last or LASTBAR):
                e.i("s_barrier")
            if j == (LATE + 24 if (LATE and G == 8) else 8) and G >= 4:
                e.i("ds_read_b32 v%d, v%d offset:%d" % (vTk, vT2, TICKOFF))
            if PLS:
                if (G == 8 and j == 20) or (G == 4 and j == 8):
                    read_scales()
            elif G == 8 and j == 20:
                e.i("s_cmp_ge_u32 s%d, %d" % (sCnt, NS))
                e.i("s_cbranch_scc1 L_nsr")
                read_scales()
                e.label("L_nsr")
        if j == 4 * G:
            do_softmax(G)
        wait_for(q, j)
        if j == 0:
            if not PLS:
                e.i("v_mov_b32 v%d, v%d" % (vVS, vVSn))
                e.i("v_mov_b32 v%d, v%d" % (vVS + 1, vVSn1))
        if j == (LATE + 16 if (LATE and G == 8) else 0):
            publish("%d" % G)
        if LATE and G == 8 and j == LATE:
            ticket("8l", WSC)
        compute(G, j)
        issue(G, q, j, last)
        reduce_k(G, j)

    def dispatch(G):
        if G == 8:
            e.i("s_cmp_eq_u32 s%d, 4" % sGn)
            e.i("s_cbranch_scc1 L_body8")
        if G >= 4:
            e.i("s_cmp_eq_u32 s%d, 2" % sGn)
            e.i("s_cbranch_scc1 L_body4")
        e.i("s_branch L_body2")

    assert NS >= 3 and LATE in (0, 8, 16)
    lasts = []
    for G in (8, 4):
        e.label("L_body%d" % G)
        q = [("L", j) for j in range(16)]
        JD = 8 * G - 16
        for j in range(JD):
            step(G, q, j, False)
        e.i("s_barrier")
        e.i("s_waitcnt lgkmcnt(0)")
        ql = list(q)
        decode(G, q)
        for j in range(JD, 8 * G):
            step(G, q, j, False, skip_pre=(j == JD))
        dispatch(G)
        if G == 8 and SPLIT8:
            e.label("L_noc8")
            qs_ = list(ql)
            request(G, "8")
            for j in range(JD, 8 * G):
                step(G, qs_, j, False, skip_pre=(j == JD))
            e.i("s_branch L_body8")
        lasts.append((G, ql, JD))
    G = 2
    e.label("L_body2")
    q = [("L", j) for j in range(16)]
    if PLS:
        read_scales()
    wait_for(q, 0)
    if not PLS:
        e.i("v_mov_b32 v%d, v%d" % (vVS, vVSn))
        e.i("v_mov_b32 v%d, v%d" % (vVS + 1, vVSn1))
    publish("2")
    e.i("s_barrier")
    e.i("ds_read_b32 v%d, v%d offset:%d" % (vTk, vT2, TICKOFF))
    compute(G, 0)
    e.i("s_waitcnt lgkmcnt(0)")
    ql = list(q)
    decode(G, q)
    issue(G, q, 0, False)
    for j in range(1, 16):
        step(G, q, j, False)
    dispatch(G)
    for (G_, ql_, JD) in lasts:
        e.label("L_last%d" % G_)
        if MBX:
            e.i("s_mov_b32 s%d, s%d" % (sXadd, sT0))
        for j in range(JD, 8 * G_):
            step(G_, ql_, j, True, skip_pre=(j == JD))
        e.i("s_branch L_epi")
    e.label("L_last2")
    if MBX:
        e.i("s_mov_b32 s%d, s%d" % (sXadd, sT0))
    for j in range(1, 16):
        step(2, ql, j, True)
    e.label("L_epi")
    if STAMP:
        e.i("s_memrealtime s[90:91]")
        e.i("s_getreg_b32 s92, hwreg(HW_REG_XCC_ID)")
        e.i("s_getreg_b32 s93, hwreg(HW_REG_HW_ID)")
        e.i("s_waitcnt lgkmcnt(0)")
        e.i("v_mov_b32 v%d, s88" % (A + 8))
        e.i("v_mov_b32 v%d, s90" % (A + 9))
        e.i("v_mov_b32 v%d, s92" % (A + 10))
        e.i("v_mov_b32 v%d, s93" % (A + 11))
        e.i("s_lshl_b32 s%d, s%d, 4" % (sT0, sGW))
        e.i("s_add_u32 s%d, s%d, %d" % (sT0, sT0, 8 << 20))
        e.i("v_mov_b32 v%d, 0" % (A + 12))
        e.i("buffer_store_dwordx4 v[%d:%d], v%d, s[%d:%d], s%d offen" % (A + 8, A + 11, A + 12, sWS, sWS + 3, sT0))
        if STAMP >= 2:
            e.i("s_memtime s[96:97]")
            e.i("s_waitcnt lgkmcnt(0)")
            e.i("v_writelane_b32 v%d, s96, 62" % vStamp)
            e.i("s_lshl_b32 s%d, s%d, 8" % (sT0, sGW))
            e.i("s_add_u32 s%d, s%d, %d" % (sT0, sT0, 9 << 20))
            e.i("v_lshlrev_b32 v%d, 2, v%d" % (A + 13, vLane))
            e.i("buffer_store_dword v%d, v%d, s[%d:%d], s%d offen" % (vStamp, A + 13, sWS, sWS + 3, sT0))
    e.i("v_permlane32_swap_b32 v%d, v%d" % (vL, vL + 1))
    e.i("v_permlane32_swap_b32 v%d, v%d" % (vZ, vZ + 1))
    e.i("v_add_f32 v%d, v%d, v%d" % (vL, vL, vL + 1))
    e.i("v_add_f32 v%d, v%d, v%d" % (vZ, vZ, vZ + 1))
    e.i("v_permlane16_swap_b32 v%d, v%d" % (vL, vZ))
    e.i("v_add_f32 v%d, v%d, v%d" % (vL, vL, vZ))
    for rr in (8, 4, 2, 1):
        e.i("v_add_f32_dpp v%d, v%d, v%d row_ror:%d row_mask:0xf bank_mask:0xf" % (vL, vL, vL, rr))
    e.i("v_readlane_b32 s%d, v%d, 0" % (sL0, vL))
    e.i("v_readlane_b32 s%d, v%d, 16" % (sZ0, vL))
    e.i("v_readlane_b32 s%d, v%d, 32" % (sL1, vL))
    e.i("v_readlane_b32 s%d, v%d, 48" % (sZ1, vL))
    for sc in range(16):
        e.i("v_permlane32_swap_b32 v%d, v%d" % (O + 2 * sc, O + 2 * sc + 1))
    for sc in range(16):
        e.i("v_add_f32 v%d, v%d, v%d" % (O + 2 * sc, O + 2 * sc, O + 2 * sc + 1))
    for sc in range(8):
        e.i("v_permlane16_swap_b32 v%d, v%d" % (O + 2 * sc, O + 2 * (sc + 8)))
    for sc in range(8):
        e.i("v_add_f32 v%d, v%d, v%d" % (O + 2 * sc, O + 2 * sc, O + 2 * (sc + 8)))
    for sc in range(4):
        e.i("v_add_f32_dpp v%d, v%d, v%d row_ror:8 row_mask:0xf bank_mask:0x3" % (A + sc, O + 2 * sc, O + 2 * sc))
    for sc in range(4):
        e.i("v_add_f32_dpp v%d, v%d, v%d row_ror:8 row_mask:0xf bank_mask:0xc" % (A + sc, O + 2 * (sc + 4), O + 2 * (sc + 4)))
    e.i("s_mov_b32 s%d, 0" % sEx)
    e.i("s_mov_b32 s%d, -1" % (sEx + 1))
    e.i("v_mov_b32 v%d, s%d" % (vT0, sZ0))
    e.i("v_mov_b32 v%d, s%d" % (vT1, sZ1))
    e.i("v_cndmask_b32 v%d, v%d, v%d, s[%d:%d]" % (vT0, vT0, vT1, sEx, sEx + 1))
    for sc in range(4):
        e.i("v_sub_f32 v%d, v%d, v%d" % (A + sc, A + sc, vT0))
    e.i("v_mov_b32 v%d, s%d" % (vT0, sC0))
    e.i("v_mov_b32 v%d, s%d" % (vT1, sC1))
    e.i("v_cndmask_b32 v%d, v%d, v%d, s[%d:%d]" % (vT0, vT0, vT1, sEx, sEx + 1))
    e.i("v_sub_f32 v%d, v%d, v%d" % (vP, vM, vT0))
    e.i("v_mov_b32 v%d, s%d" % (vT0, sL0))
    e.i("v_mov_b32 v%d, s%d" % (vT1, sL1))
    e.i("v_cndmask_b32 v%d, v%d, v%d, s[%d:%d]" % (vP + 1, vT0, vT1, sEx, sEx + 1))
    OB = WPW * 512
    MB = OB + WPW * 1024
    LDS = MB + WPW * 16 + 16 + 2 * VZD
    e.i("s_lshl_b32 s%d, s%d, 10" % (sT0, sWave))
    e.i("v_lshlrev_b32 v%d, 4, v%d" % (vT2, vLane))
    e.i("v_add_u32 v%d, s%d, v%d" % (vT0, sT0, vT2))
    e.i("ds_write_b128 v%d, v[%d:%d] offset:%d" % (vT0, A, A + 3, OB))
    e.i("s_lshl_b32 s%d, s%d, 4" % (sT0, sWave))
    e.i("v_lshrrev_b32 v%d, 5, v%d" % (vT3, vLane))
    e.i("v_lshlrev_b32 v%d, 3, v%d" % (vT3, vT3))
    e.i("v_add_u32 v%d, s%d, v%d" % (vT1, sT0, vT3))
    e.i("ds_write_b64 v%d, v[%d:%d] offset:%d" % (vT1, vP, vP + 1, MB))
    if MBX:
        e.i("v_lshrrev_b32 v%d, 5, v%d" % (vPP, vLane))
        e.i("s_lshl_b32 s%d, s%d, 1" % (sT0, sKVH))
        e.i("v_add_u32 v%d, s%d, v%d" % (vPP, sT0, vPP))
        e.i("v_and_b32 v%d, 31, v%d" % (vPP + 1, vLane))
        e.i("v_lshlrev_b32 v%d, 4, v%d" % (vPP + 1, vPP + 1))
        e.i("v_lshl_add_u32 v%d, v%d, 13, v%d" % (vPP + 1, vPP, vPP + 1))
        e.i("v_and_b32 v%d, 15, v%d" % (vVS, vLane))
        e.i("v_lshlrev_b32 v%d, 3, v%d" % (vVS, vVS))
        e.i("v_lshl_add_u32 v%d, v%d, 7, v%d" % (vPP, vPP, vVS))
        e.i("v_lshlrev_b32 v%d, 3, v%d" % (vVS, vLane))
        e.i("s_mov_b32 s%d, s%d" % (sK, pout))
        e.i("s_mov_b32 s%d, s%d" % (sK + 1, pout + 1))
        e.i("s_mov_b32 s%d, 8192" % (sK + 2))
        e.i("s_mov_b32 s%d, 0x00020000" % (sK + 3))
        e.i("s_mov_b32 s%d, 4096" % sEx)
        e.i("s_lshl_b32 s%d, s%d, 9" % (sEx + 1, sKVH))
    e.i("s_waitcnt lgkmcnt(0)")
    if MBX:
        e.i("v_mov_b32 v%d, v%d" % (vP + 1, vPP + 1))
        e.i("v_mov_b32 v%d, 1" % vP)
        e.i("v_mov_b32 v%d, 0" % vM)
    if True:
        e.i("v_mov_b32 v%d, 0" % vT0)
        e.i("v_mov_b32 v%d, 1" % vT1)
        e.i("s_mov_b64 exec, 1")
        e.i("ds_add_rtn_u32 v%d, v%d, v%d offset:%d" % (vT1, vT0, vT1, CNTOFF))
        e.i("s_mov_b64 exec, -1")
        e.i("s_waitcnt lgkmcnt(0)")
        e.i("v_readfirstlane_b32 s%d, v%d" % (sT0, vT1))
        e.i("s_cmp_lg_u32 s%d, %d" % (sT0, WPW - 1))
        e.i("s_cbranch_scc1 L_done1")
    assert WPW <= 16
    for w in range(WPW):
        e.i("ds_read_b64 v[%d:%d], v%d offset:%d" % (QS + 2 * w, QS + 2 * w + 1, vT3, MB + 16 * w))
    OT = O
    assert O + 4 * WPW <= NV
    for w in range(WPW):
        e.i("ds_read_b128 v[%d:%d], v%d offset:%d" % (OT + 4 * w, OT + 4 * w + 3, vT2, OB + 1024 * w))
    e.i("s_waitcnt lgkmcnt(0)")
    e.i("v_mov_b32 v%d, v%d" % (vT0, QS))
    for w in range(1, WPW):
        e.i("v_max_f32 v%d, v%d, v%d" % (vT0, vT0, QS + 2 * w))
    for w in range(WPW):
        e.i("v_sub_f32 v%d, v%d, v%d" % (QS + 2 * w, QS + 2 * w, vT0))
    for w in range(WPW):
        e.i("v_exp_f32 v%d, v%d" % (QS + 2 * w, QS + 2 * w))
    e.i("v_mul_f32 v%d, v%d, v%d" % (vT1, QS, QS + 1))
    for w in range(1, WPW):
        e.i("v_fmac_f32 v%d, v%d, v%d" % (vT1, QS + 2 * w, QS + 2 * w + 1))
    for c in range(4):
        e.i("v_mul_f32 v%d, v%d, v%d" % (OT + c, OT + c, QS))
    for w in range(1, WPW):
        for c in range(4):
            e.i("v_fmac_f32 v%d, v%d, v%d" % (OT + c, OT + 4 * w + c, QS + 2 * w))
    MLB = 32 * NSPLIT * 512
    e.i("s_lshl_b32 s%d, s%d, %d" % (sT0, sKVH, LOG_NSPLIT + 1))
    e.i("s_add_u32 s%d, s%d, s%d" % (sT0, sT0, sSplit))
    e.i("v_lshrrev_b32 v%d, 5, v%d" % (vT3, vLane))
    e.i("v_lshlrev_b32 v%d, %d, v%d" % (vT3, LOG_NSPLIT, vT3))
    e.i("v_add_u32 v%d, s%d, v%d" % (vT3, sT0, vT3))
    e.i("v_and_b32 v%d, 31, v%d" % (vT2, vLane))
    e.i("v_lshlrev_b32 v%d, 4, v%d" % (vT2, vT2))
    e.i("v_lshl_add_u32 v%d, v%d, 9, v%d" % (vT2, vT3, vT2))
    scf = " sc1" if FUSE else ""
    if MBX:
        for r_ in (OT, OT + 1, OT + 2, OT + 3, vT0, vT1):
            e.i("v_max_u32 v%d, 1, v%d" % (r_, r_))
    if STAMP and FUSE:
        e.i("s_memrealtime s[12:13]")
    e.i("buffer_store_dwordx4 v[%d:%d], v%d, s[%d:%d], 0 offen%s" % (OT, OT + 3, vT2, sWS, sWS + 3, scf))
    e.i("v_lshlrev_b32 v%d, 3, v%d" % (vT3, vT3))
    e.i("s_mov_b32 s%d, %d" % (sT1, MLB))
    e.i("buffer_store_dwordx2 v[%d:%d], v%d, s[%d:%d], s%d offen%s" % (vT0, vT1, vT3, sWS, sWS + 3, sT1, scf))
    if MBX:
        vA, vB, vC = vP, vP + 1, vPP
        vW, vS, vZm = vL, vL + 1, vZ
        e.i("s_mul_i32 s%d, s%d, %d" % (sT0, sKVH, CSTR))
        e.i("s_add_u32 s%d, s%d, %d" % (sT0, sT0, CB + 32 * CSTR))
        e.i("s_mov_b64 exec, 1")
        e.i("buffer_atomic_add v%d, v%d, s[%d:%d], s%d offen sc0" % (vA, vM, sWS, sWS + 3, sT0))
        e.i("s_mov_b64 exec, -1")

        def poll():
            e.i("buffer_load_dwordx2 v[%d:%d], v%d, s[%d:%d], s%d offen sc1" % (QS, QS + 1, vC, sWS, sWS + 3, sT1))
            for t in range(NSPLIT):
                e.i("buffer_load_dwordx4 v[%d:%d], v%d, s[%d:%d], %s offen offset:%d sc1" % (RING + 4 * t, RING + 4 * t + 3, vB, sWS, sWS + 3, "0" if t < 8 else "s%d" % sEx, (t % 8) * 512))

        def stamp_a():
            if STAMP:
                e.i("s_memrealtime s[16:17]")
                e.i("s_waitcnt lgkmcnt(0)")
                e.i("v_mov_b32 v%d, s12" % (A + 8))
                e.i("v_mov_b32 v%d, s12" % (A + 9))
                e.i("v_mov_b32 v%d, s16" % (A + 10))
                e.i("v_mov_b32 v%d, 0" % (A + 11))
                e.i("s_lshl_b32 s18, s2, 4")
                e.i("s_add_u32 s18, s18, %d" % (10 << 20))
                e.i("v_mov_b32 v%d, 0" % (A + 12))
                e.i("s_mov_b32 s19, 0")

        def stamp_b():
            if STAMP:
                e.i("buffer_store_dwordx4 v[%d:%d], v%d, s[%d:%d], s18 offen" % (A + 8, A + 11, A + 12, sWS, sWS + 3))

        if SPEC < 8:
            if SPEC > 0:
                e.i("s_cmp_lt_u32 s%d, %d" % (sXadd, len(GS) + SPEC))
                e.i("s_cbranch_scc1 L_nospec")
            poll()
            e.i("s_waitcnt vmcnt(%d)" % (NSPLIT + 1))
            stamp_a()
            e.i("v_readfirstlane_b32 s%d, v%d" % (sT0, vA))
            e.i("s_cmp_eq_u32 s%d, %d" % (sT0, NSPLIT - 1))
            e.i("s_cbranch_scc1 L_check")
            stamp_b()
            e.i("s_endpgm")
        if SPEC > 0:
            e.label("L_nospec")
            e.i("s_waitcnt vmcnt(0)")
            stamp_a()
            e.i("v_readfirstlane_b32 s%d, v%d" % (sT0, vA))
            e.i("s_cmp_eq_u32 s%d, %d" % (sT0, NSPLIT - 1))
            e.i("s_cbranch_scc1 L_poll")
            stamp_b()
            e.i("s_endpgm")
        e.label("L_poll")
        if STAMP:
            e.i("s_add_u32 s19, s19, 1")
        poll()
        e.label("L_check")
        e.i("s_waitcnt vmcnt(%d)" % NSPLIT)
        e.i("v_max_f32_dpp v%d, v%d, v%d row_ror:8 row_mask:0xf bank_mask:0xf" % (vS, QS, QS))
        e.i("v_min_u32 v%d, v%d, v%d" % (vZm, QS, QS + 1))
        for rr in (4, 2, 1):
            e.i("v_max_f32_dpp v%d, v%d, v%d row_ror:%d row_mask:0xf bank_mask:0xf" % (vS, vS, vS, rr))
        e.i("v_sub_f32 v%d, v%d, v%d" % (vW, QS, vS))
        e.i("v_exp_f32 v%d, v%d" % (vW, vW))
        e.i("v_mul_f32 v%d, v%d, v%d" % (vS, vW, QS + 1))
        for rr in (8, 4, 2, 1):
            e.i("v_add_f32_dpp v%d, v%d, v%d row_ror:%d row_mask:0xf bank_mask:0xf" % (vS, vS, vS, rr))
        e.i("v_rcp_f32 v%d, v%d" % (vS, vS))
        e.i("v_mul_f32 v%d, v%d, v%d" % (vW, vW, vS))
        for t in range(NSPLIT):
            if t % 4 == 0:
                e.i("s_waitcnt vmcnt(%d)" % (NSPLIT - 4 - t))
            r = RING + 4 * t
            e.i("v_min3_u32 v%d, v%d, v%d, v%d" % (vZm, vZm, r, r + 1))
            e.i("v_min3_u32 v%d, v%d, v%d, v%d" % (vZm, vZm, r + 2, r + 3))
            for c in range(4):
                e.i("v_%s_f32_dpp v%d, v%d, v%d row_newbcast:%d row_mask:0xf bank_mask:0xf" % ("mul" if t == 0 else "fmac", OT + c, vW, r + c, t))
        e.i("v_cmp_eq_u32 vcc, 0, v%d" % vZm)
        e.i("v_cvt_pk_bf16_f32 v%d, v%d, v%d" % (OT, OT, OT + 1))
        e.i("v_cvt_pk_bf16_f32 v%d, v%d, v%d" % (OT + 1, OT + 2, OT + 3))
        e.i("s_nop 2")
        e.i("s_cbranch_vccnz L_poll")
        e.i("buffer_store_dwordx2 v[%d:%d], v%d, s[%d:%d], s%d offen" % (OT, OT + 1, vVS, sK, sK + 3, sEx + 1))
        if STAMP:
            e.i("s_memrealtime s[16:17]")
            e.i("s_waitcnt lgkmcnt(0)")
            e.i("v_mov_b32 v%d, s16" % (A + 11))
            e.i("s_mul_i32 s19, s19, 100")
            e.i("v_add_u32 v%d, s19, v%d" % (A + 9, A + 9))
            stamp_b()
    elif FUSE:
        pass
        vA, vB, vC = vP, vP + 1, vPP
        e.i("s_lshl_b32 s%d, s%d, 9" % (sT0, sSplit))
        e.i("v_subrev_u32 v%d, s%d, v%d" % (vB, sT0, vT2))
        e.i("s_lshl_b32 s%d, s%d, 3" % (sT0, sSplit))
        e.i("v_subrev_u32 v%d, s%d, v%d" % (vC, sT0, vT3))
        if WSC:
            e.i("s_mul_i32 s%d, s%d, %d" % (sT0, sKVH, CSTR))
            e.i("s_add_u32 s%d, s%d, %d" % (sT0, sT0, CB + 32 * CSTR))
        else:
            e.i("s_lshl_b32 s%d, s%d, 2" % (sT0, sKVH))
            e.i("s_add_u32 s%d, s%d, 128" % (sT0, sT0))
        e.i("v_mov_b32 v%d, 1" % vA)
        e.i("v_mov_b32 v%d, 0" % vM)
        e.i("s_waitcnt vmcnt(0)")
        if STAMP:
            e.i("s_memrealtime s[14:15]")
        e.i("s_mov_b64 exec, 1")
        sCT = sWS if WSC else sDBG
        e.i("buffer_atomic_add v%d, v%d, s[%d:%d], s%d offen sc0" % (vA, vM, sCT, sCT + 3, sT0))
        e.i("s_mov_b64 exec, -1")
        e.i("s_waitcnt vmcnt(0)")
        if STAMP:
            e.i("s_memrealtime s[16:17]")
            e.i("s_waitcnt lgkmcnt(0)")
            e.i("v_mov_b32 v%d, s12" % (A + 8))
            e.i("v_mov_b32 v%d, s14" % (A + 9))
            e.i("v_mov_b32 v%d, s16" % (A + 10))
            e.i("v_mov_b32 v%d, 0" % (A + 11))
            e.i("s_lshl_b32 s18, s2, 4")
            e.i("s_add_u32 s18, s18, %d" % (10 << 20))
            e.i("v_mov_b32 v%d, 0" % (A + 12))
            e.i("buffer_store_dwordx4 v[%d:%d], v%d, s[%d:%d], s18 offen" % (A + 8, A + 11, A + 12, sWS, sWS + 3))
        e.i("v_readfirstlane_b32 s%d, v%d" % (sT0, vA))
        e.i("s_cmp_lg_u32 s%d, %d" % (sT0, NSPLIT - 1))
        e.i("s_cbranch_scc1 L_done1")
        for t in range(NSPLIT):
            e.i("buffer_load_dwordx2 v[%d:%d], v%d, s[%d:%d], s%d offen offset:%d sc1" % (QS + 2 * t, QS + 2 * t + 1, vC, sWS, sWS + 3, sT1, 8 * t))
        e.i("s_mov_b32 s%d, 4096" % sT0)
        for t in range(NSPLIT):
            e.i("buffer_load_dwordx4 v[%d:%d], v%d, s[%d:%d], %s offen offset:%d sc1" % (RING + 4 * t, RING + 4 * t + 3, vB, sWS, sWS + 3, "0" if t < 8 else "s%d" % sT0, (t % 8) * 512))
        e.i("s_mov_b32 s%d, s%d" % (sK, pout))
        e.i("s_mov_b32 s%d, s%d" % (sK + 1, pout + 1))
        e.i("s_mov_b32 s%d, 8192" % (sK + 2))
        e.i("s_mov_b32 s%d, 0x00020000" % (sK + 3))
        e.i("s_lshl_b32 s%d, s%d, 9" % (sT0, sKVH))
        e.i("v_lshlrev_b32 v%d, 3, v%d" % (vT2, vLane))
        e.i("s_waitcnt vmcnt(%d)" % NSPLIT)
        e.i("v_mov_b32 v%d, v%d" % (vT0, QS))
        for w in range(1, NSPLIT):
            e.i("v_max_f32 v%d, v%d, v%d" % (vT0, vT0, QS + 2 * w))
        for w in range(NSPLIT):
            e.i("v_sub_f32 v%d, v%d, v%d" % (QS + 2 * w, QS + 2 * w, vT0))
        for w in range(NSPLIT):
            e.i("v_exp_f32 v%d, v%d" % (QS + 2 * w, QS + 2 * w))
        e.i("v_mul_f32 v%d, v%d, v%d" % (vT1, QS, QS + 1))
        for w in range(1, NSPLIT):
            e.i("v_fmac_f32 v%d, v%d, v%d" % (vT1, QS + 2 * w, QS + 2 * w + 1))
        e.i("v_rcp_f32 v%d, v%d" % (vT1, vT1))
        e.i("s_waitcnt vmcnt(0)")
        for c in range(4):
            e.i("v_mul_f32 v%d, v%d, v%d" % (RING + c, RING + c, QS))
        for w in range(1, NSPLIT):
            for c in range(4):
                e.i("v_fmac_f32 v%d, v%d, v%d" % (RING + c, RING + 4 * w + c, QS + 2 * w))
        for c in range(4):
            e.i("v_mul_f32 v%d, v%d, v%d" % (RING + c, RING + c, vT1))
        e.i("v_cvt_pk_bf16_f32 v%d, v%d, v%d" % (RING, RING, RING + 1))
        e.i("v_cvt_pk_bf16_f32 v%d, v%d, v%d" % (RING + 1, RING + 2, RING + 3))
        e.i("buffer_store_dwordx2 v[%d:%d], v%d, s[%d:%d], s%d offen" % (RING, RING + 1, vT2, sK, sK + 3, sT0))
        if STAMP:
            e.i("s_memrealtime s[16:17]")
            e.i("s_waitcnt lgkmcnt(0)")
            e.i("v_mov_b32 v%d, s16" % (A + 8))
            e.i("v_mov_b32 v%d, 0" % (A + 12))
            e.i("buffer_store_dword v%d, v%d, s[%d:%d], s18 offen offset:12" % (A + 8, A + 12, sWS, sWS + 3))
    e.raw("L_done1:")
    e.i("s_endpgm")
    if WSC:
        e.label("L_init")
        e.i("s_cmp_lg_u32 s2, %d" % (NWG if WSC == 1 else 100000))
        e.i("s_cbranch_scc1 L_done1")
        e.i("v_readfirstlane_b32 s%d, v0" % sT0)
        e.i("s_cmp_lg_u32 s%d, 0" % sT0)
        e.i("s_cbranch_scc1 L_done1")
        e.i("s_load_dwordx4 s[%d:%d], s[0:1], 64" % (sPtr + 16, sPtr + 19))
        e.i("v_mul_u32_u24 v2, %d, v0" % CSTR)
        e.i("v_mov_b32 v3, 0")
        e.i("v_mov_b32 v4, 1")
        e.i("s_mov_b32 s%d, %d" % (sT1, CB))
        for srd, n in ((sWS, 1 << 24), (sDBG, 256)):
            e.i("s_mov_b32 s%d, %d" % (srd + 2, n))
            e.i("s_mov_b32 s%d, 0x00020000" % (srd + 3))
        e.i("s_waitcnt lgkmcnt(0)")
        for srd, p_ in ((sWS, pws), (sDBG, pdbg)):
            e.i("s_mov_b32 s%d, s%d" % (srd, p_))
            e.i("s_mov_b32 s%d, s%d" % (srd + 1, p_ + 1))
        e.i("v_mov_b32 v5, 1")
        e.i("s_mov_b64 exec, 1")
        e.i("buffer_atomic_add v5, v3, s[%d:%d], 0 offen offset:4 sc0" % (sDBG, sDBG + 3))
        e.i("s_mov_b64 exec, -1")
        e.i("s_waitcnt vmcnt(0)")
        e.i("v_readfirstlane_b32 s%d, v5" % sT0)
        e.i("s_cmp_lg_u32 s%d, 0" % sT0)
        e.i("s_cbranch_scc1 L_done1")
        e.i("buffer_store_dword v3, v2, s[%d:%d], s%d offen sc1" % (sWS, sWS + 3, sT1))
        if MBX:
            e.i("v_lshlrev_b32 v6, 4, v0")
            for r_ in range(8, 12):
                e.i("v_mov_b32 v%d, 0" % r_)
            e.i("s_mov_b32 s%d, 0" % sT0)
            e.label("L_iz")
            e.i("buffer_store_dwordx4 v[8:11], v6, s[%d:%d], s%d offen sc1" % (sWS, sWS + 3, sT0))
            e.i("s_add_u32 s%d, s%d, 1024" % (sT0, sT0))
            e.i("s_cmp_lt_u32 s%d, %d" % (sT0, MBXB))
            e.i("s_cbranch_scc1 L_iz")
        e.i("s_waitcnt vmcnt(0)")
        e.i("s_mov_b64 exec, 1")
        e.i("buffer_store_dword v4, v3, s[%d:%d], 0 offen sc1" % (sDBG, sDBG + 3))
        e.i("s_endpgm")
    k1 = e.text()


    hdr = open("cdna_kernels/%s.s.ref" % NAME).read().split("; Override launch geometry")[0]
    out = hdr
    if not LIST:
        out += "; @launch grid=(%d,1,1) block=(%d,1,1) lds=%d\n" % (NWG + (1 if WSC else 0), WPW * 64, LDS)
    else:
        out += "; @launch kernel=%s_kernel grid=(%d,1,1) block=(%d,1,1) lds=%d\n" % (NAME, NWG + (1 if WSC else 0), WPW * 64, LDS)
    out += '.amdgcn_target "amdgcn-amd-amdhsa--gfx950"\n.text\n'
    out += ".globl %s_kernel\n.p2align 8\n.type %s_kernel,@function\n" % (NAME, NAME)
    out += k1
    out += '.section .rodata,"a"\n'
    out += (".p2align 6\n.amdhsa_kernel %s\n  .amdhsa_next_free_vgpr %d\n  .amdhsa_next_free_sgpr %d\n"
            "  .amdhsa_accum_offset %d\n  .amdhsa_group_segment_fixed_size 0\n  .amdhsa_kernarg_size 80\n"
            "  .amdhsa_user_sgpr_count 2\n  .amdhsa_user_sgpr_kernarg_segment_ptr 1\n"
            "  .amdhsa_system_sgpr_workgroup_id_x 1\n.end_amdhsa_kernel\n") % (NAME + "_kernel", VG, 100, (VG + 3) // 4 * 4)
    mv = max([int(x) for x in re.findall(r"\bv(\d+)\b", k1)] + [int(x) for x in re.findall(r"v\[\d+:(\d+)\]", k1)])
    ms = max([int(x) for x in re.findall(r"\bs(\d+)\b", k1)] + [int(x) for x in re.findall(r"s\[\d+:(\d+)\]", k1)])
    assert mv < VG <= 256 and ms < 100, (mv, VG, ms)
    return out


def parse_gs(s):
    out = []
    for part in s.split(","):
        if "x" in part:
            v, n = part.split("x")
            out += [int(v)] * int(n)
        else:
            out.append(int(part))
    return out


if __name__ == "__main__":
    ap = argparse.ArgumentParser()
    ap.add_argument("--gs", default="4x8,2x8,1x16")
    ap.add_argument("--ns", type=int, default=14)
    ap.add_argument("--stamp", type=int, default=0)
    ap.add_argument("--list", type=int, default=1)
    ap.add_argument("--exact", type=int, default=1)
    ap.add_argument("--lastbar", type=int, default=0)
    ap.add_argument("--mapd", type=int, default=0)
    ap.add_argument("--fake", type=int, default=0)
    ap.add_argument("--frot", type=int, default=0)
    ap.add_argument("--wsc", type=int, default=0)
    ap.add_argument("--split8", type=int, default=0)
    ap.add_argument("--cstr", type=int, default=4096)
    ap.add_argument("--goff", type=int, default=0)
    ap.add_argument("--pls", type=int, default=0)
    ap.add_argument("--late", type=int, default=0)
    ap.add_argument("--mbx", type=int, default=0)
    ap.add_argument("--spec", type=int, default=0)
    ap.add_argument("-o", required=True)
    a_ = ap.parse_args()
    s = gen(GS=parse_gs(a_.gs), NS=a_.ns, STAMP=a_.stamp, LIST=a_.list, EXACT=a_.exact, LASTBAR=a_.lastbar, MAPD=a_.mapd, FAKE=a_.fake, FROT=a_.frot, WSC=a_.wsc, SPLIT8=a_.split8, CSTR=a_.cstr, GOFF=a_.goff, PLS=a_.pls, LATE=a_.late, MBX=a_.mbx, SPEC=a_.spec)
    open(a_.o, "w").write(s)
    print("wrote", a_.o, len(s), "bytes")
```

```python
import re
import sys
import struct
import argparse

NAME = "standalone__kv_cache_quant_int4_int2_kv_with_per_channel_or_per_token_scales__decode"


def f2u(x):
    return struct.unpack("<I", struct.pack("<f", x))[0]


REG_RE = re.compile(r"\b([vs])(\d+)\b|\b([vs])\[(\d+):(\d+)\]|\b(vcc)\b")


def regs_of(op):
    out = set()
    for m in REG_RE.finditer(op):
        if m.group(1):
            out.add((m.group(1), int(m.group(2))))
        elif m.group(3):
            for r in range(int(m.group(4)), int(m.group(5)) + 1):
                out.add((m.group(3), r))
        else:
            out.add(("vcc", 0))
    return out


TRANS = ("v_exp_f32", "v_log_f32", "v_rcp_f32", "v_rsq_f32", "v_sqrt_f32")


class Emit:
    def __init__(self):
        self.lines = []
        self.hist = []

    def raw(self, s):
        self.lines.append(s)

    def label(self, s):
        self.i("s_nop 4")
        self.lines.append(s + ":")
        self.hist = []

    def comment(self, s):
        self.lines.append("    ; " + s)

    def i(self, text):
        text = text.strip()
        mn = text.split()[0]
        rest = text[len(mn):].strip()
        ops = [o.strip() for o in rest.split(",")] if rest else []
        clean = []
        for o in ops:
            clean.append(o.split()[0] if o.split() else o)
        ops = clean
        is_valu = mn.startswith("v_")
        is_vmem = mn.startswith("buffer_") or mn.startswith("global_")
        is_dpp = "_dpp" in mn
        is_perm = mn.startswith("v_permlane")
        is_rl = mn.startswith("v_readlane") or mn.startswith("v_readfirstlane")
        writes, reads = set(), set()
        if is_valu:
            if is_perm:
                writes = regs_of(ops[0]) | regs_of(ops[1])
                reads = set(writes)
            else:
                writes = regs_of(ops[0])
                for o in ops[1:]:
                    reads |= regs_of(o)
                if "fmac" in mn or is_dpp:
                    reads |= regs_of(ops[0])
                if mn.startswith("v_cndmask") and len(ops) == 3:
                    reads.add(("vcc", 0))
        elif is_vmem:
            for o in ops:
                reads |= regs_of(o)
        elif mn.startswith("ds_"):
            for o in ops:
                reads |= regs_of(o)
        else:
            for o in ops:
                reads |= regs_of(o)
        need = 0
        for dist, h in enumerate(reversed(self.hist)):
            req = 0
            if h["valu"]:
                vw = {r for r in h["writes"] if r[0] == "v"}
                sw = {r for r in h["writes"] if r[0] in ("s", "vcc")}
                if (is_dpp or is_perm) and (vw & reads):
                    req = max(req, 2)
                if is_rl and (vw & reads):
                    req = max(req, 1)
                if is_valu and (sw & reads):
                    req = max(req, 4 if is_rl else 2)
                if is_vmem and (sw & reads):
                    req = max(req, 5)
                if (not is_valu) and (not is_vmem) and (sw & reads):
                    req = max(req, 4)
                if h["trans"] and is_valu and (vw & reads):
                    req = max(req, 1)
            if h["wide_store"] and is_valu and (h["reads"] & writes):
                req = max(req, 2)
            need = max(need, req - h["after"])
        if need > 0:
            self._push("s_nop %d" % (need - 1), need, dict(valu=False, writes=set(), reads=set(), trans=False, wide_store=False))
        wide = is_vmem and "store" in mn and ("x4" in mn or "x3" in mn)
        self._push(text, 1, dict(valu=is_valu, writes=writes, reads=reads, trans=mn.startswith(TRANS), wide_store=wide))

    def _push(self, text, states, info):
        if text.startswith("s_nop"):
            states = int(text.split()[1]) + 1
        for h in self.hist:
            h["after"] += states
        info["after"] = 0
        self.hist.append(info)
        self.hist = [h for h in self.hist if h["after"] < 8]
        self.lines.append("    " + text)

    def text(self):
        return "\n".join(self.lines) + "\n"


def gen(BAR=8, GS=None, NS=14, STAMP=0, LIST=1, EXACT=1, LASTBAR=0, MAPD=0, FAKE=0, FROT=0, WSC=0, SPLIT8=0, CSTR=4096, GOFF=0, PLS=0, LATE=0, MBX=0, SPEC=0, MBR=0, PT=0, HLP=0):
    R = 16
    WPW = 4
    NWG = 256
    NSPLIT = 16
    LOG_WPW = 2
    LOG_NSPLIT = 4
    CSCALE = (128.0 ** -0.5) * 1.4426950408889634
    ntf = " nt"
    assert BAR == 8
    D0 = 16

    e = Emit()
    vLoff, vSoff, vLdsW, vLdsR = 0, 1, 2, 3
    vM = 4
    vT0, vT1, vT2 = 6, 7, 5
    vL = 8
    vZ = 10
    vVS = 12
    vP = 14
    vPP = 16
    vLane = 18
    vT3 = 19
    QS = 20
    O = 52
    A = 84
    RING = 100
    NV = RING + 4 * R
    vStamp = NV
    if STAMP >= 2:
        NV += 1
    vTk, vSL, vTab, vSoffD, vVSn, vVSn1, vFl = range(NV, NV + 7)
    NV += 7
    CB = 12 << 20
    MBXB = 32 * NSPLIT * 512 + 32 * NSPLIT * 8
    assert not MBX or (WSC and (len(GS) <= 60 or SPEC in (0, 8)))
    MBO = (CB + (256 << 10)) if MBR else 0
    assert not MBR or (MBX and 48 * CSTR <= (256 << 10))
    VG = max(NV, RING + 64)
    DT = (16 - NS) * 4
    assert DT >= 4
    assert sum(GS) == 8 * DT and all(x in (1, 2, 4) for x in GS) and all(GS[k] >= GS[k + 1] for k in range(len(GS) - 1))
    st = [0]
    for n_ in GS:
        st.append(st[-1] + n_)
    assert all(st[k] % GS[k] == 0 for k in range(len(GS)))
    NB = 0
    if len(GS) > 60:
        NB = sum(1 for x in GS if x == 4)
        st = st[NB:]
        assert len(st) <= 61
    POW2 = DT & (DT - 1) == 0
    if not POW2:
        DSH = 16
        DM = (1 << DSH) // DT + 1
        assert all((u * DM) >> DSH == u // DT for u in range(8 * DT + 1))
    TICKOFF = WPW * 512 + WPW * 1024 + WPW * 16
    SCB = TICKOFF + 16
    PR = DT * 128
    VZD = 8192 + (8 * PR if PLS else 0)
    if PLS:
        GOFF = 1
    CNTOFF = TICKOFF + 4
    RT = 64 * WPW
    GSTR = 8 * WPW
    GB = GSTR * 512
    NSL = 2

    def qs(sc):
        return "v[%d:%d]" % (QS + 2 * sc, QS + 2 * sc + 1)

    def o(sc):
        return "v[%d:%d]" % (O + 2 * sc, O + 2 * sc + 1)

    def a(i):
        return "v[%d:%d]" % (A + 2 * i, A + 2 * i + 1)

    def ring(slot):
        return RING + 4 * slot

    sK, sV, sVS, sVZ = 8, 12, 16, 20
    sQ, sKS, sKZ, sWS = 24, 28, 32, 36
    sX = 24
    sXoff, sGn, sXadd = 28, 29, 30
    sMaskE = 32
    sWoff = 34
    sFl = 35
    sPW = 31
    sKoff, sVoff, sSoff, sCnt = 40, 41, 42, 43
    sMask1, sMask0 = 44, 46
    sM0, sM1 = 48, 49
    sF = 50
    sC0, sC1 = 52, 53
    sWave, sGW, sKVH, sRB, sT0, sT1 = 54, 55, 56, 57, 58, 59
    sPtr = 60
    sL0, sZ0, sL1, sZ1 = 80, 81, 82, 83
    sSplit = 84
    sEx = 86
    sQi = 94
    sDBG = 4
    sCur, sTkt, sD0, sD1, sBar = 95, 85, 91, 92, 93

    def load(slot, srd, so, seg, extra=()):
        r = ring(slot)
        e.i("buffer_load_dwordx4 v[%d:%d], v%d, s[%d:%d], s%d offen offset:%d%s" % (r, r + 3, vLoff, srd, srd + 3, so, seg * 128, ntf))
        if seg == 3:
            for s_ in (so,) + tuple(extra):
                e.i("s_add_u32 s%d, s%d, %d" % (s_, s_, GB))

    def issue_own(G, j):
        if j < 4 * G:
            load(j % R, sK, sKoff, j % 4)
        else:
            load(j % R, sV, sVoff, j % 4)

    def issue_next(i):
        if i < 8:
            load(i % R, sK, sKoff, i % 4)
        else:
            load(i % R, sX, sXoff, i % 4, extra=(sKoff,))

    pq, pqk, pqv, pks, pkz, pvs, pvz, pout, pdbg, pws = [sPtr + 2 * k for k in range(10)]

    e.raw("%s_kernel:" % NAME)
    e.i("s_cmp_ge_u32 s2, %d" % NWG)
    e.i("s_cbranch_scc1 %s" % ("L_init" if WSC else "L_done1"))
    if STAMP:
        e.i("s_memrealtime s[88:89]")
    e.i("s_load_dwordx16 s[%d:%d], s[0:1], 0" % (sPtr, sPtr + 15))
    e.i("s_load_dwordx4 s[%d:%d], s[0:1], 64" % (sPtr + 16, sPtr + 19))
    e.i("v_lshrrev_b32 v%d, 6, v0" % vT0)
    e.i("v_and_b32 v%d, 63, v0" % vLane)
    e.i("v_readfirstlane_b32 s%d, v%d" % (sWave, vT0))
    e.i("v_lshrrev_b32 v%d, 3, v%d" % (vT0, vLane))
    e.i("v_and_b32 v%d, 7, v%d" % (vT1, vLane))
    e.i("v_lshlrev_b32 v%d, 9, v%d" % (vLoff, vT0))
    e.i("v_lshl_add_u32 v%d, v%d, 4, v%d" % (vLoff, vT1, vLoff))
    e.i("s_lshr_b32 s%d, s2, 3" % sQi)
    e.i("s_lshl_b32 s%d, s%d, 24" % (sRB, sQi))
    e.i("s_and_b32 s%d, s2, 7" % sT0)
    e.i("s_lshl_b32 s%d, s%d, 12" % (sT0, sT0))
    e.i("s_lshl_b32 s%d, s%d, 3" % (sCur, sWave))
    e.i("s_add_u32 s%d, s%d, s%d" % (sCur, sCur, sT0))
    e.i("s_lshl_b32 s%d, s%d, 9" % (sKoff, sCur))
    e.i("s_lshl_b32 s%d, s%d, 9" % (sVoff, sCur))
    for srd in (sK, sV):
        e.i("s_mov_b32 s%d, %d" % (srd + 2, 32768 * 512))
        e.i("s_mov_b32 s%d, 0x00020000" % (srd + 3))
    e.i("v_lshrrev_b32 v%d, 2, v%d" % (vT2, vT1))
    e.i("v_and_b32 v%d, 2, v%d" % (vT3, vT1))
    e.i("v_add_u32 v%d, v%d, v%d" % (vT2, vT2, vT3))
    e.i("v_and_b32 v%d, 1, v%d" % (vT3, vT1))
    e.i("v_lshl_add_u32 v%d, v%d, 2, v%d" % (vT2, vT3, vT2))
    e.i("v_lshl_add_u32 v%d, v%d, %d, v%d" % (vSoff, vT2, GSTR.bit_length() - 1, vT0))
    e.i("v_lshlrev_b32 v%d, 1, v%d" % (vSoff, vSoff))
    e.i("s_lshl_b32 s%d, s%d, 9" % (sT0, sWave))
    e.i("v_lshlrev_b32 v%d, 6, v%d" % (vLdsR, vT0))
    e.i("v_add_u32 v%d, s%d, v%d" % (vLdsR, sT0, vLdsR))
    e.i("v_lshl_add_u32 v%d, v%d, 3, v%d" % (vLdsW, vT2, vLdsR))
    e.i("s_mov_b32 s%d, 0xcccccccc" % sMask1)
    e.i("s_mov_b32 s%d, 0xcccccccc" % (sMask1 + 1))
    e.i("s_mov_b32 s%d, 0xaaaaaaaa" % sMask0)
    e.i("s_mov_b32 s%d, 0xaaaaaaaa" % (sMask0 + 1))
    e.i("s_lshl_b32 s%d, s2, %d" % (sGW, LOG_WPW))
    e.i("s_add_u32 s%d, s%d, s%d" % (sGW, sGW, sWave))
    e.i("s_lshr_b32 s%d, s2, 4" % sKVH)
    e.i("s_and_b32 s%d, s2, %d" % (sSplit, NSPLIT - 1))
    e.i("s_cmp_eq_u32 s%d, 0" % sWave)
    e.i("s_cselect_b32 s%d, %d, 1000" % (sTkt, NS - 1 if FAKE != 1 else 1000))
    e.i("v_lshlrev_b32 v%d, 3, v%d" % (vT3, vT1))
    e.i("v_lshlrev_b32 v%d, 4, v%d" % (vT0, vLane))
    for srd, n in ((sVS, 65536), (sVZ, 65536), (sQ, 8192), (sKS, 8192), (sKZ, 8192), (sWS, 1 << 24), (sDBG, 256)):
        e.i("s_mov_b32 s%d, %d" % (srd + 2, n))
        e.i("s_mov_b32 s%d, 0x00020000" % (srd + 3))
    e.i("s_waitcnt lgkmcnt(0)")
    if STAMP >= 2:
        e.i("s_mov_b32 s98, 0")
        e.i("v_mov_b32 v%d, 0" % vStamp)
        e.i("s_memtime s[96:97]")
        e.i("s_waitcnt lgkmcnt(0)")
        e.i("v_writelane_b32 v%d, s96, 63" % vStamp)
        e.i("s_memrealtime s[96:97]")
        e.i("s_waitcnt lgkmcnt(0)")
        e.i("v_writelane_b32 v%d, s96, 61" % vStamp)
    for srd, p in ((sK, pqk), (sV, pqv)):
        e.i("s_add_u32 s%d, s%d, s%d" % (srd, p, sRB))
        e.i("s_addc_u32 s%d, s%d, 0" % (srd + 1, p + 1))
    e.i("s_lshl_b32 s%d, s%d, 16" % (sT0, sQi))
    for srd, p in ((sVS, pvs), (sVZ, pvz)):
        e.i("s_add_u32 s%d, s%d, s%d" % (srd, p, sT0))
        e.i("s_addc_u32 s%d, s%d, 0" % (srd + 1, p + 1))
    for srd, p in ((sQ, pq), (sKS, pks), (sKZ, pkz), (sWS, pws), (sDBG, pdbg)):
        e.i("s_mov_b32 s%d, s%d" % (srd, p))
        e.i("s_mov_b32 s%d, s%d" % (srd + 1, p + 1))
    e.i("s_lshl_b32 s%d, s%d, 9" % (sT0, sKVH))
    e.i("s_lshl_b32 s%d, s%d, 8" % (sT1, sQi))
    order = [("q", 0, 0), ("ks", 0, 0), ("kz", 0, 0)] + [("q", h, s_) for h in range(2) for s_ in range(4) if (h, s_) != (0, 0)] + [("ks", 0, s_) for s_ in range(1, 4)] + [("kz", 0, s_) for s_ in range(1, 4)]
    for kind, h, seg in order:
        if kind == "q":
            r = O + (h * 4 + seg) * 2
            e.i("buffer_load_dwordx2 v[%d:%d], v%d, s[%d:%d], s%d offen offset:%d" % (r, r + 1, vT3, sQ, sQ + 3, sT0, h * 256 + seg * 64))
        elif kind == "ks":
            r = O + 16 + seg * 2
            e.i("buffer_load_dwordx2 v[%d:%d], v%d, s[%d:%d], s%d offen offset:%d" % (r, r + 1, vT3, sKS, sKS + 3, sT1, seg * 64))
        else:
            r = O + 24 + seg * 2
            e.i("buffer_load_dwordx2 v[%d:%d], v%d, s[%d:%d], s%d offen offset:%d" % (r, r + 1, vT3, sKZ, sKZ + 3, sT1, seg * 64))
    e.i("s_and_b32 s%d, s2, 7" % sT0)
    e.i("s_lshl_b32 s%d, s%d, 13" % (sT0, sT0))
    e.i("s_mul_i32 s%d, s%d, %d" % (sT1, sWave, 1024 * NSL))
    e.i("s_add_u32 s%d, s%d, s%d" % (sT0, sT0, sT1))
    for k_ in range(NSL):
        e.i("buffer_load_dwordx4 v[%d:%d], v%d, s[%d:%d], s%d offen offset:%d" % (QS + 8 * k_, QS + 8 * k_ + 3, vT0, sVS, sVS + 3, sT0, 1024 * k_))
        e.i("buffer_load_dwordx4 v[%d:%d], v%d, s[%d:%d], s%d offen offset:%d" % (QS + 8 * k_ + 4, QS + 8 * k_ + 7, vT0, sVZ, sVZ + 3, sT0, 1024 * k_))
    e.i("v_add_u32 v%d, s%d, v%d" % (vT1, sT1, vT0))
    e.i("s_lshl_b32 s%d, s%d, 4" % (sT1, sWave))
    e.i("v_add_u32 v%d, s%d, v%d" % (vSL, sT1, vSoff))
    pool = []
    if PLS:
        assert NSL == 2
        PW = 4 if PR % 1024 == 0 else 2
        PB = 256 * PW
        free = list(range(QS + 16, QS + 32)) + list(range(A, A + 16))
        e.i("v_lshlrev_b32 v%d, %d, v%d" % (vVSn, PW.bit_length() + 1, vLane))
        e.i("s_mul_i32 s%d, s%d, %d" % (sT1, sWave, 2 * PR))
        e.i("v_add_u32 v%d, s%d, v%d" % (vVSn1, sT1, vVSn))
        e.i("s_lshl_b32 s%d, s%d, 14" % (sSoff, sWave))
        e.i("s_add_u32 s%d, s%d, %d" % (sSoff, sSoff, NS * 512))
        e.i("s_add_u32 s%d, s%d, 8192" % (sD0, sSoff))
        for rr in range(2):
            for k_ in range(PR // PB):
                for ai, srd in enumerate((sVS, sVZ)):
                    r0 = free[0]
                    assert free[:PW] == list(range(r0, r0 + PW))
                    del free[:PW]
                    e.i("buffer_load_dwordx%d v[%d:%d], v%d, s[%d:%d], s%d offen offset:%d" % (PW, r0, r0 + PW - 1, vVSn, srd, srd + 3, (sSoff, sD0)[rr], PB * k_))
                    pool.append((r0, SCB + 8192 + ai * VZD + rr * PR + PB * k_))
    for j in range(D0):
        issue_own(8, j)
    if WSC:
        e.i("s_mul_i32 s%d, s%d, %d" % (sQi, sQi, CSTR))
        e.i("s_add_u32 s%d, s%d, %d" % (sQi, sQi, CB))
    else:
        e.i("s_lshl_b32 s%d, s%d, 2" % (sQi, sQi))
    e.i("v_mov_b32 v%d, %d" % (vTab, st[-1]))
    for k_, v_ in enumerate(st[:-1]):
        if v_ <= 64:
            e.i("v_writelane_b32 v%d, %d, %d" % (vTab, v_, k_))
        else:
            e.i("s_mov_b32 s%d, %d" % (sT0, v_))
            e.i("v_writelane_b32 v%d, s%d, %d" % (vTab, sT0, k_))
    e.i("v_mov_b32 v%d, 0" % vT2)
    e.i("ds_write_b32 v%d, v%d offset:%d" % (vT2, vT2, CNTOFF))
    for r in (vL, vL + 1, vZ, vZ + 1):
        e.i("v_mov_b32 v%d, 0" % r)
    e.i("v_mov_b32 v%d, 0x%08x" % (vM, f2u(-3.0e38)))
    e.i("s_mov_b32 s%d, 0" % sCnt)
    e.i("s_mov_b32 s%d, 0x%08x" % (sT0, f2u(CSCALE)))
    e.i("s_waitcnt vmcnt(%d)" % D0)
    e.i("s_mov_b32 s%d, s%d" % (sX, sK))
    e.i("s_mov_b32 s%d, s%d" % (sX + 1, sK + 1))
    e.i("s_mov_b32 s%d, %d" % (sX + 2, 32768 * 512))
    e.i("s_mov_b32 s%d, 0x00020000" % (sX + 3))
    e.i("s_mov_b32 s%d, 4" % sGn)
    e.i("s_mov_b32 s%d, %d" % (sXadd, 2 * GB))
    e.i("s_mov_b32 s%d, 0xeeeeeeee" % sMaskE)
    e.i("s_mov_b32 s%d, 0xeeeeeeee" % (sMaskE + 1))
    e.i("s_sub_u32 s%d, s%d, %d" % (sFl, sTkt, 0 if LATE else 1))
    e.i("s_lshl_b32 s%d, s%d, 3" % (sWoff, sWave))
    e.i("s_add_u32 s%d, s%d, %d" % (sWoff, sWoff, NS * RT))
    for k_ in range(NSL):
        e.i("ds_write_b128 v%d, v[%d:%d] offset:%d" % (vT1, QS + 8 * k_, QS + 8 * k_ + 3, SCB + 1024 * k_))
        e.i("ds_write_b128 v%d, v[%d:%d] offset:%d" % (vT1, QS + 8 * k_ + 4, QS + 8 * k_ + 7, SCB + VZD + 1024 * k_))
    if PLS:
        e.i("s_lshl_b32 s%d, s%d, 4" % (sPW, sWave))
        e.i("s_add_u32 s%d, s%d, 8192" % (sPW, sPW))
        for r0, off in pool:
            e.i("ds_write_b%d v%d, v[%d:%d] offset:%d" % (32 * PW, vVSn1, r0, r0 + PW - 1, off))
        if any(r0 >= A for r0, _ in pool):
            e.i("s_waitcnt lgkmcnt(0)")
    for seg in range(4):
        for half in range(2):
            src = O + 16 + seg * 2 + half
            d0 = A + seg * 4 + half * 2
            e.i("v_lshlrev_b32 v%d, 16, v%d" % (d0, src))
            e.i("v_and_b32 v%d, 0xffff0000, v%d" % (d0 + 1, src))
    for k in range(16):
        e.i("v_mul_f32 v%d, s%d, v%d" % (A + k, sT0, A + k))
    e.i("s_waitcnt lgkmcnt(0)")
    for h in range(2):
        for seg in range(4):
            for half in range(2):
                src = O + (h * 4 + seg) * 2 + half
                sc0 = seg * 4 + half * 2
                e.i("v_lshlrev_b32 v%d, 16, v%d" % (QS + 2 * sc0 + h, src))
                e.i("v_and_b32 v%d, 0xffff0000, v%d" % (QS + 2 * (sc0 + 1) + h, src))
    for sc in range(16):
        for h in range(2):
            e.i("v_mul_f32 v%d, v%d, v%d" % (QS + 2 * sc + h, QS + 2 * sc + h, A + sc))
    for seg in range(4):
        for half in range(2):
            src = O + 24 + seg * 2 + half
            d0 = A + seg * 4 + half * 2
            e.i("v_lshlrev_b32 v%d, 16, v%d" % (d0, src))
            e.i("v_and_b32 v%d, 0xffff0000, v%d" % (d0 + 1, src))
    for h in range(2):
        t = vT0 + h
        e.i("v_mul_f32 v%d, v%d, v%d" % (t, QS + h, A))
        for sc in range(1, 16):
            e.i("v_fmac_f32 v%d, v%d, v%d" % (t, QS + 2 * sc + h, A + sc))
    for mod in ("quad_perm:[1,0,3,2]", "quad_perm:[2,3,0,1]", "row_half_mirror"):
        for h in range(2):
            t = vT0 + h
            e.i("v_add_f32_dpp v%d, v%d, v%d %s row_mask:0xf bank_mask:0xf" % (t, t, t, mod))
    e.i("v_readfirstlane_b32 s%d, v%d" % (sC0, vT0))
    e.i("v_readfirstlane_b32 s%d, v%d" % (sC1, vT1))
    for k in range(32):
        e.i("v_mov_b32 v%d, 0" % (O + k))
    FUSE = 1

    def stepA(x, y):
        for k in range(2):
            e.i("v_add_f32_dpp v%d, v%d, v%d row_half_mirror row_mask:0xf bank_mask:0x5" % (A + 2 * x + k, A + 2 * x + k, A + 2 * x + k))
        for k in range(2):
            e.i("v_add_f32_dpp v%d, v%d, v%d row_half_mirror row_mask:0xf bank_mask:0xa" % (A + 2 * x + k, A + 2 * y + k, A + 2 * y + k))

    def stepQ(x, y, mask, perm, out):
        for k in range(2):
            X, Y = A + 2 * x + k, A + 2 * y + k
            t = vT0 + k
            e.i("v_cndmask_b32 v%d, v%d, v%d, s[%d:%d]" % (t, Y, X, mask, mask + 1))
            e.i("v_cndmask_b32 v%d, v%d, v%d, s[%d:%d]" % (Y, X, Y, mask, mask + 1))
        for k in range(2):
            Y = A + 2 * y + k
            t = vT0 + k
            e.i("v_add_f32_dpp v%d, v%d, v%d %s row_mask:0xf bank_mask:0xf" % (out + k, t, Y, perm))

    def stepP(perm):
        for k in range(2):
            e.i("v_add_f32_dpp v%d, v%d, v%d %s row_mask:0xf bank_mask:0xf" % (A + k, A + k, A + k, perm))

    def softmax(G):
        S0, S1 = A, A + 1
        e.i("v_mov_b32 v%d, v%d" % (vT0, S0))
        e.i("v_mov_b32 v%d, v%d" % (vT1, S1))
        e.i("v_lshlrev_b32 v%d, 16, v%d" % (vVS, vVS))
        e.i("v_lshlrev_b32 v%d, 16, v%d" % (vVS + 1, vVS + 1))
        e.i("v_permlane32_swap_b32 v%d, v%d" % (vT0, vT1))
        e.i("v_max_f32 v%d, v%d, v%d" % (vT0, vT0, vT1))
        e.i("v_mov_b32 v%d, v%d" % (vT1, vT0))
        e.i("v_permlane16_swap_b32 v%d, v%d" % (vT0, vT1))
        e.i("v_max_f32 v%d, v%d, v%d" % (vT0, vT0, vT1))
        for rr in (8, 4, 2, 1):
            e.i("v_max_f32_dpp v%d, v%d, v%d row_ror:%d row_mask:0xf bank_mask:0xf" % (vT0, vT0, vT0, rr))
        e.i("v_max_f32 v%d, v%d, v%d" % (vT0, vT0, vM))
        e.i("v_sub_f32 v%d, v%d, v%d" % (vT1, vM, vT0))
        e.i("v_exp_f32 v%d, v%d" % (vT1, vT1))
        e.i("v_mov_b32 v%d, v%d" % (vM, vT0))
        e.i("v_readlane_b32 s%d, v%d, 0" % (sM0, vT0))
        e.i("v_readlane_b32 s%d, v%d, 32" % (sM1, vT0))
        e.i("v_readlane_b32 s%d, v%d, 0" % (sF, vT1))
        e.i("v_readlane_b32 s%d, v%d, 32" % (sF + 1, vT1))
        e.i("v_subrev_f32 v%d, s%d, v%d" % (vP, sM0, S0))
        e.i("v_subrev_f32 v%d, s%d, v%d" % (vP + 1, sM1, S1))
        e.i("v_exp_f32 v%d, v%d" % (vP, vP))
        e.i("v_exp_f32 v%d, v%d" % (vP + 1, vP + 1))
        if G < 8:
            mk = sMask0 if G == 4 else sMaskE
            for k in range(2):
                e.i("v_cndmask_b32 v%d, v%d, 0, s[%d:%d]" % (vP + k, vP + k, mk, mk + 1))
        P = "v[%d:%d]" % (vP, vP + 1)
        PP = "v[%d:%d]" % (vPP, vPP + 1)
        L = "v[%d:%d]" % (vL, vL + 1)
        Z = "v[%d:%d]" % (vZ, vZ + 1)
        VS = "v[%d:%d]" % (vVS, vVS + 1)
        F = "s[%d:%d]" % (sF, sF + 1)
        e.i("v_pk_mul_f32 %s, %s, %s" % (Z, Z, F))
        e.i("v_pk_mul_f32 %s, %s, %s op_sel:[0,0] op_sel_hi:[1,0]" % (PP, P, VS))
        e.i("v_pk_fma_f32 %s, %s, %s, %s" % (L, L, F, P))
        e.i("ds_write_b64 v%d, %s" % (vLdsW, PP))
        e.i("v_pk_fma_f32 %s, %s, %s, %s op_sel:[0,1,0] op_sel_hi:[1,1,1]" % (Z, PP, VS, Z))
        for k in range(G // 2):
            e.i("ds_read_b128 v[%d:%d], v%d offset:%d" % (A + 4 * k, A + 4 * k + 3, vLdsR, 16 * k))
        for sc in range(16):
            e.i("v_pk_mul_f32 %s, %s, %s" % (o(sc), o(sc), F))

    def publish(tag):
        e.i("s_cmp_lt_u32 s%d, s%d" % (sCnt, sTkt))
        e.i("s_cbranch_scc1 L_np%s" % tag)
        e.i("s_mov_b64 exec, 1")
        e.i("ds_write_b32 v%d, v%d offset:%d" % (vT2, vT3, TICKOFF))
        e.i("s_mov_b64 exec, -1")
        e.i("s_waitcnt lgkmcnt(0)")
        e.label("L_np%s" % tag)

    def request(G, tag):
        e.i("s_lshl_b32 s%d, s%d, 9" % (sKoff, sCur))
        e.i("s_lshl_b32 s%d, s%d, 9" % (sVoff, sCur))
        e.i("s_add_u32 s%d, s%d, s%d" % (sXoff, sKoff, sXadd))
        if WSC and G == 8 and not tag.endswith("d"):
            e.i("s_cmp_lg_u32 s%d, s%d" % (sCnt, sFl))
            e.i("s_cbranch_scc1 L_nf%s" % tag)
            e.i("s_mov_b64 exec, 1")
            e.i("buffer_load_dword v%d, v%d, s[%d:%d], 0 offen sc1" % (vFl, vT2, sDBG, sDBG + 3))
            e.i("s_mov_b64 exec, -1")
            e.label("L_nf%s" % tag)
        if LATE and G == 8:
            assert SPLIT8
            if not tag.endswith("d"):
                return
            e.i("s_cmp_eq_u32 s%d, 4" % sGn)
            e.i("s_cbranch_scc1 L_nt%s" % tag)
        ticket(tag, WSC and G == 8 and not tag.endswith("d"))

    def ticket(tag, check):
        e.i("s_cmp_lt_u32 s%d, s%d" % (sCnt, sTkt))
        e.i("s_cbranch_scc1 L_nt%s" % tag)
        e.i("v_mov_b32 v%d, 1" % vT3)
        e.i("s_mov_b64 exec, 1")
        if check:
            e.i("v_readfirstlane_b32 s%d, v%d" % (sT0, vFl))
            e.i("s_cmp_lg_u32 s%d, 0" % sT0)
            e.i("s_cbranch_scc1 L_fo%s" % tag)
            e.i("v_mov_b32 v%d, 1" % vFl)
            e.i("buffer_atomic_add v%d, v%d, s[%d:%d], 0 offen offset:4 sc0" % (vFl, vT2, sDBG, sDBG + 3))
            e.i("s_waitcnt vmcnt(0)")
            e.i("v_readfirstlane_b32 s%d, v%d" % (sT0, vFl))
            e.i("s_cmp_lg_u32 s%d, 0" % sT0)
            e.i("s_cbranch_scc1 L_fs%s" % tag)
            e.i("s_mov_b64 exec, -1")
            e.i("v_mul_u32_u24 v%d, %d, v%d" % (vT0, CSTR, vLane))
            e.i("s_mov_b32 s%d, %d" % (sT0, CB))
            e.i("buffer_store_dword v%d, v%d, s[%d:%d], s%d offen sc1" % (vT2, vT0, sWS, sWS + 3, sT0))
            if MBX:
                e.i("s_waitcnt vmcnt(0)")
                e.i("v_lshlrev_b32 v%d, 2, v%d" % (vT0, vLane))
                e.i("s_mov_b32 s%d, %d" % (sT0, MBO))
                e.label("L_fz%s" % tag)
                e.i("buffer_store_dword v%d, v%d, s[%d:%d], s%d offen sc1" % (vT2, vT0, sWS, sWS + 3, sT0))
                e.i("s_add_u32 s%d, s%d, 256" % (sT0, sT0))
                e.i("s_cmp_lt_u32 s%d, %d" % (sT0, MBO + MBXB))
                e.i("s_cbranch_scc1 L_fz%s" % tag)
            e.i("s_waitcnt vmcnt(0)")
            e.i("s_mov_b64 exec, 1")
            e.i("buffer_store_dword v%d, v%d, s[%d:%d], 0 offen sc1" % (vT3, vT2, sDBG, sDBG + 3))
            e.i("s_waitcnt vmcnt(0)")
            e.i("v_mov_b32 v%d, 1" % vFl)
            e.i("s_branch L_fo%s" % tag)
            e.label("L_fs%s" % tag)
            e.i("buffer_load_dword v%d, v%d, s[%d:%d], 0 offen sc1" % (vFl, vT2, sDBG, sDBG + 3))
            e.i("s_waitcnt vmcnt(0)")
            e.i("v_readfirstlane_b32 s%d, v%d" % (sT0, vFl))
            e.i("s_cmp_eq_u32 s%d, 0" % sT0)
            e.i("s_cbranch_scc1 L_fs%s" % tag)
            e.label("L_fo%s" % tag)
        if FAKE in (3, 4):
            if FAKE == 3:
                e.i("s_lshl_b32 s%d, s2, 12" % sT0)
            else:
                e.i("s_lshl_b32 s%d, s%d, 10" % (sT0, sQi))
            e.i("s_add_u32 s%d, s%d, %d" % (sT0, sT0, 12 << 20))
            e.i("buffer_atomic_add v%d, v%d, s[%d:%d], s%d offen sc0" % (vT3, vT2, sWS, sWS + 3, sT0))
        elif FAKE == 5:
            e.i("buffer_load_dword v%d, v%d, s[%d:%d], s%d offen sc1" % (vT3, vT2, sDBG, sDBG + 3, sQi))
        elif FAKE == 6:
            e.i("buffer_atomic_add v%d, v%d, s[%d:%d], s%d offen" % (vT3, vT2, sDBG, sDBG + 3, sQi))
        elif WSC:
            e.i("buffer_atomic_add v%d, v%d, s[%d:%d], s%d offen sc0" % (vT3, vT2, sWS, sWS + 3, sQi))
        else:
            e.i("buffer_atomic_add v%d, v%d, s[%d:%d], s%d offen sc0" % (vT3, vT2, sDBG, sDBG + 3, sQi))
        e.i("s_mov_b64 exec, -1")
        e.label("L_nt%s" % tag)

    def decode(G, q):
        tag = "%d" % G
        if G == 8:
            e.i("s_add_u32 s%d, s%d, 1" % (sCnt, sCnt))
            e.i("s_add_u32 s%d, s%d, %d" % (sCur, sCur, RT))
            e.i("v_add_u32 v%d, %d, v%d" % (vSL, 2 * RT, vSL))
            e.i("s_cmp_lt_u32 s%d, %d" % (sCnt, NS))
            e.i("s_cbranch_scc1 L_noc%s" % tag)
        e.i("v_readfirstlane_b32 s%d, v%d" % (sT0, vTk))
        if FAKE:
            e.i("s_mul_i32 s%d, s%d, %d" % (sT1, sCnt, FROT))
            e.i("s_add_u32 s%d, s%d, s2" % (sT1, sT1))
            e.i("s_and_b32 s%d, s%d, 7" % (sT1, sT1))
            e.i("s_sub_u32 s%d, s%d, %d" % (sT0, sCnt, NS))
            e.i("s_lshl_b32 s%d, s%d, 3" % (sT0, sT0))
            e.i("s_add_u32 s%d, s%d, s%d" % (sT0, sT0, sT1))
        if NB and G == 8:
            e.i("s_lshl_b32 s%d, s%d, 2" % (sSoff, sT0))
        if NB:
            e.i("s_sub_i32 s%d, s%d, %d" % (sT0, sT0, NB))
            e.i("s_max_i32 s%d, s%d, 0" % (sT0, sT0))
        e.i("s_min_u32 s%d, s%d, 62" % (sT0, sT0))
        e.i("s_add_u32 s%d, s%d, 1" % (sT1, sT0))
        e.i("s_nop 3")
        e.i("v_readlane_b32 s%d, v%d, s%d" % (sD0, vTab, sT0))
        e.i("v_readlane_b32 s%d, v%d, s%d" % (sD1, vTab, sT1))
        e.i("s_sub_u32 s%d, s%d, s%d" % (sGn, sD1, sD0))
        if NB and G == 8:
            e.i("s_cmp_lt_u32 s%d, %d" % (sSoff, 4 * NB))
            e.i("s_cselect_b32 s%d, s%d, s%d" % (sD0, sSoff, sD0))
            e.i("s_cselect_b32 s%d, 4, s%d" % (sGn, sGn))
        e.i("s_cmp_eq_u32 s%d, 0" % sGn)
        e.i("s_cbranch_scc1 L_last%s" % tag)
        if MAPD:
            e.i("s_lshr_b32 s%d, s%d, 2" % (sT0, sD0))
            e.i("s_and_b32 s%d, s%d, 7" % (sT0, sT0))
            e.i("s_lshr_b32 s%d, s%d, 5" % (sT1, sD0))
            e.i("s_lshl_b32 s%d, s%d, 2" % (sT1, sT1))
            e.i("s_and_b32 s%d, s%d, 3" % (sD1, sD0))
            e.i("s_add_u32 s%d, s%d, s%d" % (sT1, sT1, sD1))
        elif POW2:
            e.i("s_lshr_b32 s%d, s%d, %d" % (sT0, sD0, DT.bit_length() - 1))
            e.i("s_and_b32 s%d, s%d, %d" % (sT1, sD0, DT - 1))
        else:
            e.i("s_mul_i32 s%d, s%d, %d" % (sT0, sD0, DM))
            e.i("s_lshr_b32 s%d, s%d, %d" % (sT0, sT0, DSH))
            e.i("s_mul_i32 s%d, s%d, %d" % (sT1, sT0, DT))
            e.i("s_sub_u32 s%d, s%d, s%d" % (sT1, sD0, sT1))
        if PLS and MAPD:
            e.i("s_mul_i32 s%d, s%d, %d" % (sD0, sT0, DT))
            e.i("s_add_u32 s%d, s%d, s%d" % (sD0, sD0, sT1))
        e.i("s_lshl_b32 s%d, s%d, 12" % (sT0, sT0))
        e.i("s_lshl_b32 s%d, s%d, 6" % (sT1, sT1))
        e.i("s_add_u32 s%d, s%d, s%d" % (sCur, sT0, sT1))
        e.i("s_add_u32 s%d, s%d, s%d" % (sCur, sCur, sWoff))
        e.i("s_lshl_b32 s%d, s%d, 7" % (sT0, sGn))
        e.i("s_sub_u32 s%d, s%d, 1" % (sT0, sT0))
        e.i("v_and_b32 v%d, s%d, v%d" % (vSoffD, sT0, vSoff))
        if PLS:
            e.i("s_lshl_b32 s%d, s%d, 7" % (sSoff, sD0))
            e.i("s_add_u32 s%d, s%d, s%d" % (sSoff, sSoff, sPW))
            e.i("v_add_u32 v%d, s%d, v%d" % (vSL, sSoff, vSoffD))
        else:
            e.i("s_lshl_b32 s%d, s%d, 1" % (sSoff, sCur))
        e.i("s_cmp_eq_u32 s%d, 1" % sGn)
        e.i("s_cselect_b32 s%d, s%d, s%d" % (sX, sV, sK))
        e.i("s_cselect_b32 s%d, s%d, s%d" % (sX + 1, sV + 1, sK + 1))
        e.i("s_cselect_b32 s%d, 0, %d" % (sXadd, 2 * GB))
        if not GOFF:
            e.i("buffer_load_ushort v%d, v%d, s[%d:%d], s%d offen" % (vVSn, vSoffD, sVS, sVS + 3, sSoff))
            e.i("buffer_load_ushort v%d, v%d, s[%d:%d], s%d offen" % (vVSn1, vSoffD, sVZ, sVZ + 3, sSoff))
        if G == 8 and not SPLIT8:
            e.label("L_noc%s" % tag)
        elif EXACT and not GOFF:
            q.append(("G", 0))
            q.append(("G", 1))
        request(G, tag + ("d" if (G == 8 and SPLIT8) else ""))

    def wait_for(q, j):
        idx = q.index(("L", j))
        n_after = len(q) - idx - 1
        assert n_after <= 63
        e.i("s_waitcnt vmcnt(%d)" % n_after)
        del q[:idx + 1]

    def compute(G, j):
        r = ring(j % R)
        for c in range(4):
            e.i("v_cvt_f32_i32 v%d, v%d" % (r + c, r + c))
        isK = j < 4 * G
        jj = j if isK else j - 4 * G
        g, seg = jj // 4, jj % 4
        for c in range(4):
            pr = "v[%d:%d]" % (r + (c & 2), r + (c & 2) + 1)
            b = c & 1
            sc = seg * 4 + c
            if isK:
                if seg == 0 and c == 0:
                    e.i("v_pk_mul_f32 %s, %s, %s op_sel:[%d,0] op_sel_hi:[%d,1]" % (a(g), pr, qs(sc), b, b))
                else:
                    e.i("v_pk_fma_f32 %s, %s, %s, %s op_sel:[%d,0,0] op_sel_hi:[%d,1,1]" % (a(g), pr, qs(sc), a(g), b, b))
            else:
                e.i("v_pk_fma_f32 %s, %s, %s, %s op_sel:[%d,0,0] op_sel_hi:[%d,1,1]" % (o(sc), pr, a(g), o(sc), b, b))

    def issue(G, q, j, last):
        nj = j + 16
        if nj < 8 * G:
            issue_own(G, nj)
            q.append(("L", nj))
        elif not last:
            issue_next(nj - 8 * G)
            q.append(("N", nj - 8 * G))

    def reduce_k(G, j):
        if j < 4 * G and j % 4 == 3:
            g = j // 4
            if g % 2 == 1:
                stepA(g - 1, g)
            if g % 4 == 3:
                stepQ(g - 3, g - 1, sMask1, "quad_perm:[2,3,0,1]", A + 2 * (g - 3))
            if g == 7:
                stepQ(0, 4, sMask0, "quad_perm:[1,0,3,2]", A)
            if G == 4 and g == 3:
                stepP("quad_perm:[1,0,3,2]")
            if G == 2 and g == 1:
                stepP("quad_perm:[2,3,0,1]")
                stepP("quad_perm:[1,0,3,2]")

    def do_softmax(G):
        e.i("s_waitcnt lgkmcnt(0)")
        if STAMP == 2:
            e.i("s_memrealtime s[96:97]")
        softmax(G)
        e.i("s_waitcnt lgkmcnt(0)")
        if STAMP == 2:
            e.i("s_mov_b32 m0, s98")
            e.i("s_add_u32 s98, s98, 1")
            e.i("s_and_b32 s98, s98, 63")
            e.i("s_and_b32 s96, s96, 0xfffffffc")
            e.i("s_or_b32 s96, s96, %d" % {8: 0, 4: 1, 2: 2}[G])
            e.i("v_writelane_b32 v%d, s96, m0" % vStamp)

    def read_scales():
        e.i("ds_read_u16 v%d, v%d offset:%d" % (vVS, vSL, SCB))
        e.i("ds_read_u16 v%d, v%d offset:%d" % (vVS + 1, vSL, SCB + VZD))

    def step(G, q, j, last, skip_pre=False):
        if not skip_pre:
            if j % BAR == 0 and (not last or LASTBAR):
                e.i("s_barrier")
            if j == (LATE + 24 if (LATE and G == 8) else 8) and G >= 4:
                e.i("ds_read_b32 v%d, v%d offset:%d" % (vTk, vT2, TICKOFF))
            if PLS:
                if (G == 8 and j == 20) or (G == 4 and j == 8):
                    read_scales()
            elif G == 8 and j == 20:
                e.i("s_cmp_ge_u32 s%d, %d" % (sCnt, NS))
                e.i("s_cbranch_scc1 L_nsr")
                read_scales()
                e.label("L_nsr")
        if j == 4 * G:
            do_softmax(G)
        wait_for(q, j)
        if j == 0:
            if not PLS:
                e.i("v_mov_b32 v%d, v%d" % (vVS, vVSn))
                e.i("v_mov_b32 v%d, v%d" % (vVS + 1, vVSn1))
        if j == (LATE + 16 if (LATE and G == 8) else 0):
            publish("%d" % G)
        if LATE and G == 8 and j == LATE:
            ticket("8l", WSC)
        compute(G, j)
        issue(G, q, j, last)
        reduce_k(G, j)

    def dispatch(G):
        if G == 8:
            e.i("s_cmp_eq_u32 s%d, 4" % sGn)
            e.i("s_cbranch_scc1 L_body8")
        if G >= 4:
            e.i("s_cmp_eq_u32 s%d, 2" % sGn)
            e.i("s_cbranch_scc1 L_body4")
        e.i("s_branch L_body2")

    def pretouch(q):
        if not PT:
            return
        assert PLS
        e.i("s_mov_b32 s%d, s%d" % (sK, pout))
        e.i("s_mov_b32 s%d, s%d" % (sK + 1, pout + 1))
        e.i("s_mov_b32 s%d, 8192" % (sK + 2))
        e.i("s_mov_b32 s%d, 0x00020000" % (sK + 3))
        e.i("s_lshl_b32 s%d, s%d, 9" % (sT1, sKVH))
        e.i("buffer_load_dword v%d, v%d, s[%d:%d], s%d offen" % (vVSn, vT2, sK, sK + 3, sT1))
        q.append(("G", 0))
        if PT >= 2:
            e.i("s_mov_b32 s%d, %d" % (sT1, MBO))
            e.i("buffer_load_dword v%d, v%d, s[%d:%d], s%d offen sc1" % (vVSn1, vT2, sWS, sWS + 3, sT1))
            q.append(("G", 1))

    assert NS >= 3 and LATE in (0, 8, 16)
    lasts = []
    for G in (8, 4):
        e.label("L_body%d" % G)
        q = [("L", j) for j in range(16)]
        JD = 8 * G - 16
        for j in range(JD):
            step(G, q, j, False)
        e.i("s_barrier")
        e.i("s_waitcnt lgkmcnt(0)")
        ql = list(q)
        decode(G, q)
        for j in range(JD, 8 * G):
            step(G, q, j, False, skip_pre=(j == JD))
        dispatch(G)
        if G == 8 and SPLIT8:
            e.label("L_noc8")
            qs_ = list(ql)
            request(G, "8")
            for j in range(JD, 8 * G):
                step(G, qs_, j, False, skip_pre=(j == JD))
            e.i("s_branch L_body8")
        lasts.append((G, ql, JD))
    G = 2
    e.label("L_body2")
    q = [("L", j) for j in range(16)]
    if PLS:
        read_scales()
    wait_for(q, 0)
    if not PLS:
        e.i("v_mov_b32 v%d, v%d" % (vVS, vVSn))
        e.i("v_mov_b32 v%d, v%d" % (vVS + 1, vVSn1))
    publish("2")
    e.i("s_barrier")
    e.i("ds_read_b32 v%d, v%d offset:%d" % (vTk, vT2, TICKOFF))
    compute(G, 0)
    e.i("s_waitcnt lgkmcnt(0)")
    ql = list(q)
    decode(G, q)
    issue(G, q, 0, False)
    for j in range(1, 16):
        step(G, q, j, False)
    dispatch(G)
    for (G_, ql_, JD) in lasts:
        e.label("L_last%d" % G_)
        if MBX:
            e.i("s_mov_b32 s%d, s%d" % (sXadd, sT0))
        pretouch(ql_)
        for j in range(JD, 8 * G_):
            step(G_, ql_, j, True, skip_pre=(j == JD))
        e.i("s_branch L_epi")
    e.label("L_last2")
    if MBX:
        e.i("s_mov_b32 s%d, s%d" % (sXadd, sT0))
    pretouch(ql)
    for j in range(1, 16):
        step(2, ql, j, True)
    e.label("L_epi")
    if STAMP:
        e.i("s_memrealtime s[90:91]")
        e.i("s_getreg_b32 s92, hwreg(HW_REG_XCC_ID)")
        e.i("s_getreg_b32 s93, hwreg(HW_REG_HW_ID)")
        e.i("s_waitcnt lgkmcnt(0)")
        e.i("v_mov_b32 v%d, s88" % (A + 8))
        e.i("v_mov_b32 v%d, s90" % (A + 9))
        e.i("v_mov_b32 v%d, s92" % (A + 10))
        e.i("v_mov_b32 v%d, s93" % (A + 11))
        e.i("s_lshl_b32 s%d, s%d, 4" % (sT0, sGW))
        e.i("s_add_u32 s%d, s%d, %d" % (sT0, sT0, 8 << 20))
        e.i("v_mov_b32 v%d, 0" % (A + 12))
        e.i("buffer_store_dwordx4 v[%d:%d], v%d, s[%d:%d], s%d offen" % (A + 8, A + 11, A + 12, sWS, sWS + 3, sT0))
        if STAMP >= 2:
            e.i("s_memtime s[96:97]")
            e.i("s_waitcnt lgkmcnt(0)")
            e.i("v_writelane_b32 v%d, s96, 62" % vStamp)
            e.i("s_lshl_b32 s%d, s%d, 8" % (sT0, sGW))
            e.i("s_add_u32 s%d, s%d, %d" % (sT0, sT0, 9 << 20))
            e.i("v_lshlrev_b32 v%d, 2, v%d" % (A + 13, vLane))
            e.i("buffer_store_dword v%d, v%d, s[%d:%d], s%d offen" % (vStamp, A + 13, sWS, sWS + 3, sT0))
    e.i("v_permlane32_swap_b32 v%d, v%d" % (vL, vL + 1))
    e.i("v_permlane32_swap_b32 v%d, v%d" % (vZ, vZ + 1))
    e.i("v_add_f32 v%d, v%d, v%d" % (vL, vL, vL + 1))
    e.i("v_add_f32 v%d, v%d, v%d" % (vZ, vZ, vZ + 1))
    e.i("v_permlane16_swap_b32 v%d, v%d" % (vL, vZ))
    e.i("v_add_f32 v%d, v%d, v%d" % (vL, vL, vZ))
    for rr in (8, 4, 2, 1):
        e.i("v_add_f32_dpp v%d, v%d, v%d row_ror:%d row_mask:0xf bank_mask:0xf" % (vL, vL, vL, rr))
    e.i("v_readlane_b32 s%d, v%d, 0" % (sL0, vL))
    e.i("v_readlane_b32 s%d, v%d, 16" % (sZ0, vL))
    e.i("v_readlane_b32 s%d, v%d, 32" % (sL1, vL))
    e.i("v_readlane_b32 s%d, v%d, 48" % (sZ1, vL))
    for sc in range(16):
        e.i("v_permlane32_swap_b32 v%d, v%d" % (O + 2 * sc, O + 2 * sc + 1))
    for sc in range(16):
        e.i("v_add_f32 v%d, v%d, v%d" % (O + 2 * sc, O + 2 * sc, O + 2 * sc + 1))
    for sc in range(8):
        e.i("v_permlane16_swap_b32 v%d, v%d" % (O + 2 * sc, O + 2 * (sc + 8)))
    for sc in range(8):
        e.i("v_add_f32 v%d, v%d, v%d" % (O + 2 * sc, O + 2 * sc, O + 2 * (sc + 8)))
    for sc in range(4):
        e.i("v_add_f32_dpp v%d, v%d, v%d row_ror:8 row_mask:0xf bank_mask:0x3" % (A + sc, O + 2 * sc, O + 2 * sc))
    for sc in range(4):
        e.i("v_add_f32_dpp v%d, v%d, v%d row_ror:8 row_mask:0xf bank_mask:0xc" % (A + sc, O + 2 * (sc + 4), O + 2 * (sc + 4)))
    e.i("s_mov_b32 s%d, 0" % sEx)
    e.i("s_mov_b32 s%d, -1" % (sEx + 1))
    e.i("v_mov_b32 v%d, s%d" % (vT0, sZ0))
    e.i("v_mov_b32 v%d, s%d" % (vT1, sZ1))
    e.i("v_cndmask_b32 v%d, v%d, v%d, s[%d:%d]" % (vT0, vT0, vT1, sEx, sEx + 1))
    for sc in range(4):
        e.i("v_sub_f32 v%d, v%d, v%d" % (A + sc, A + sc, vT0))
    e.i("v_mov_b32 v%d, s%d" % (vT0, sC0))
    e.i("v_mov_b32 v%d, s%d" % (vT1, sC1))
    e.i("v_cndmask_b32 v%d, v%d, v%d, s[%d:%d]" % (vT0, vT0, vT1, sEx, sEx + 1))
    e.i("v_sub_f32 v%d, v%d, v%d" % (vP, vM, vT0))
    e.i("v_mov_b32 v%d, s%d" % (vT0, sL0))
    e.i("v_mov_b32 v%d, s%d" % (vT1, sL1))
    e.i("v_cndmask_b32 v%d, v%d, v%d, s[%d:%d]" % (vP + 1, vT0, vT1, sEx, sEx + 1))
    OB = WPW * 512
    MB = OB + WPW * 1024
    LDS = MB + WPW * 16 + 16 + 2 * VZD
    e.i("s_lshl_b32 s%d, s%d, 10" % (sT0, sWave))
    e.i("v_lshlrev_b32 v%d, 4, v%d" % (vT2, vLane))
    e.i("v_add_u32 v%d, s%d, v%d" % (vT0, sT0, vT2))
    e.i("ds_write_b128 v%d, v[%d:%d] offset:%d" % (vT0, A, A + 3, OB))
    e.i("s_lshl_b32 s%d, s%d, 4" % (sT0, sWave))
    e.i("v_lshrrev_b32 v%d, 5, v%d" % (vT3, vLane))
    e.i("v_lshlrev_b32 v%d, 3, v%d" % (vT3, vT3))
    e.i("v_add_u32 v%d, s%d, v%d" % (vT1, sT0, vT3))
    e.i("ds_write_b64 v%d, v[%d:%d] offset:%d" % (vT1, vP, vP + 1, MB))
    if MBX:
        e.i("v_lshrrev_b32 v%d, 5, v%d" % (vPP, vLane))
        e.i("s_lshl_b32 s%d, s%d, 1" % (sT0, sKVH))
        e.i("v_add_u32 v%d, s%d, v%d" % (vPP, sT0, vPP))
        e.i("v_and_b32 v%d, 31, v%d" % (vPP + 1, vLane))
        e.i("v_lshlrev_b32 v%d, 4, v%d" % (vPP + 1, vPP + 1))
        e.i("v_lshl_add_u32 v%d, v%d, 13, v%d" % (vPP + 1, vPP, vPP + 1))
        e.i("v_and_b32 v%d, 15, v%d" % (vVS, vLane))
        e.i("v_lshlrev_b32 v%d, 3, v%d" % (vVS, vVS))
        e.i("v_lshl_add_u32 v%d, v%d, 7, v%d" % (vPP, vPP, vVS))
        e.i("v_lshlrev_b32 v%d, 3, v%d" % (vVS, vLane))
        e.i("s_mov_b32 s%d, s%d" % (sK, pout))
        e.i("s_mov_b32 s%d, s%d" % (sK + 1, pout + 1))
        e.i("s_mov_b32 s%d, 8192" % (sK + 2))
        e.i("s_mov_b32 s%d, 0x00020000" % (sK + 3))
        e.i("s_mov_b32 s%d, %d" % (sEx, MBO + 4096))
        e.i("s_mov_b32 s%d, %d" % (sL0, MBO))
        e.i("s_lshl_b32 s%d, s%d, 9" % (sEx + 1, sKVH))
    e.i("s_waitcnt lgkmcnt(0)")
    if MBX:
        e.i("v_mov_b32 v%d, v%d" % (vP + 1, vPP + 1))
        e.i("v_mov_b32 v%d, 1" % vP)
        e.i("v_mov_b32 v%d, 0" % vM)
    if True:
        e.i("v_mov_b32 v%d, 0" % vT0)
        e.i("v_mov_b32 v%d, 1" % vT1)
        e.i("s_mov_b64 exec, 1")
        e.i("ds_add_rtn_u32 v%d, v%d, v%d offset:%d" % (vT1, vT0, vT1, CNTOFF))
        e.i("s_mov_b64 exec, -1")
        e.i("s_waitcnt lgkmcnt(0)")
        e.i("v_readfirstlane_b32 s%d, v%d" % (sT0, vT1))
        e.i("s_cmp_lg_u32 s%d, %d" % (sT0, WPW - 1))
        e.i("s_cbranch_scc1 L_done1")
    assert WPW <= 16
    for w in range(WPW):
        e.i("ds_read_b64 v[%d:%d], v%d offset:%d" % (QS + 2 * w, QS + 2 * w + 1, vT3, MB + 16 * w))
    OT = O
    assert O + 4 * WPW <= NV
    for w in range(WPW):
        e.i("ds_read_b128 v[%d:%d], v%d offset:%d" % (OT + 4 * w, OT + 4 * w + 3, vT2, OB + 1024 * w))
    e.i("s_waitcnt lgkmcnt(0)")
    e.i("v_mov_b32 v%d, v%d" % (vT0, QS))
    for w in range(1, WPW):
        e.i("v_max_f32 v%d, v%d, v%d" % (vT0, vT0, QS + 2 * w))
    for w in range(WPW):
        e.i("v_sub_f32 v%d, v%d, v%d" % (QS + 2 * w, QS + 2 * w, vT0))
    for w in range(WPW):
        e.i("v_exp_f32 v%d, v%d" % (QS + 2 * w, QS + 2 * w))
    e.i("v_mul_f32 v%d, v%d, v%d" % (vT1, QS, QS + 1))
    for w in range(1, WPW):
        e.i("v_fmac_f32 v%d, v%d, v%d" % (vT1, QS + 2 * w, QS + 2 * w + 1))
    for c in range(4):
        e.i("v_mul_f32 v%d, v%d, v%d" % (OT + c, OT + c, QS))
    for w in range(1, WPW):
        for c in range(4):
            e.i("v_fmac_f32 v%d, v%d, v%d" % (OT + c, OT + 4 * w + c, QS + 2 * w))
    MLB = 32 * NSPLIT * 512
    e.i("s_lshl_b32 s%d, s%d, %d" % (sT0, sKVH, LOG_NSPLIT + 1))
    e.i("s_add_u32 s%d, s%d, s%d" % (sT0, sT0, sSplit))
    e.i("v_lshrrev_b32 v%d, 5, v%d" % (vT3, vLane))
    e.i("v_lshlrev_b32 v%d, %d, v%d" % (vT3, LOG_NSPLIT, vT3))
    e.i("v_add_u32 v%d, s%d, v%d" % (vT3, sT0, vT3))
    e.i("v_and_b32 v%d, 31, v%d" % (vT2, vLane))
    e.i("v_lshlrev_b32 v%d, 4, v%d" % (vT2, vT2))
    e.i("v_lshl_add_u32 v%d, v%d, 9, v%d" % (vT2, vT3, vT2))
    scf = " sc1" if FUSE else ""
    if MBX:
        for r_ in (OT, OT + 1, OT + 2, OT + 3, vT0, vT1):
            e.i("v_max_u32 v%d, 1, v%d" % (r_, r_))
    if STAMP and FUSE:
        e.i("s_memrealtime s[12:13]")
    e.i("buffer_store_dwordx4 v[%d:%d], v%d, s[%d:%d], %s offen%s" % (OT, OT + 3, vT2, sWS, sWS + 3, ("s%d" % sL0) if MBX else "0", scf))
    e.i("v_lshlrev_b32 v%d, 3, v%d" % (vT3, vT3))
    e.i("s_mov_b32 s%d, %d" % (sT1, MLB + (MBO if MBX else 0)))
    e.i("buffer_store_dwordx2 v[%d:%d], v%d, s[%d:%d], s%d offen%s" % (vT0, vT1, vT3, sWS, sWS + 3, sT1, scf))
    if MBX:
        vA, vB, vC = vP, vP + 1, vPP
        vW, vS, vZm = vL, vL + 1, vZ
        e.i("s_mul_i32 s%d, s%d, %d" % (sT0, sKVH, CSTR))
        e.i("s_add_u32 s%d, s%d, %d" % (sT0, sT0, CB + 32 * CSTR))
        e.i("s_mov_b64 exec, 1")
        e.i("buffer_atomic_add v%d, v%d, s[%d:%d], s%d offen sc0" % (vA, vM, sWS, sWS + 3, sT0))
        e.i("s_mov_b64 exec, -1")

        def poll():
            e.i("buffer_load_dwordx2 v[%d:%d], v%d, s[%d:%d], s%d offen sc1" % (QS, QS + 1, vC, sWS, sWS + 3, sT1))
            for t in range(NSPLIT):
                e.i("buffer_load_dwordx4 v[%d:%d], v%d, s[%d:%d], %s offen offset:%d sc1" % (RING + 4 * t, RING + 4 * t + 3, vB, sWS, sWS + 3, "s%d" % (sL0 if t < 8 else sEx), (t % 8) * 512))

        def stamp_a():
            if STAMP:
                e.i("s_memrealtime s[16:17]")
                e.i("s_waitcnt lgkmcnt(0)")
                e.i("v_mov_b32 v%d, s12" % (A + 8))
                e.i("v_mov_b32 v%d, s12" % (A + 9))
                e.i("v_mov_b32 v%d, s16" % (A + 10))
                e.i("v_mov_b32 v%d, 0" % (A + 11))
                e.i("s_lshl_b32 s18, s2, 4")
                e.i("s_add_u32 s18, s18, %d" % (10 << 20))
                e.i("v_mov_b32 v%d, 0" % (A + 12))
                e.i("s_mov_b32 s19, 0")

        def stamp_b():
            if STAMP:
                e.i("buffer_store_dwordx4 v[%d:%d], v%d, s[%d:%d], s18 offen" % (A + 8, A + 11, A + 12, sWS, sWS + 3))

        if SPEC < 8:
            if SPEC > 0:
                e.i("s_cmp_lt_u32 s%d, %d" % (sXadd, len(GS) + SPEC))
                e.i("s_cbranch_scc1 L_nospec")
            poll()
            e.i("s_waitcnt vmcnt(%d)" % (NSPLIT + 1))
            stamp_a()
            e.i("v_readfirstlane_b32 s%d, v%d" % (sT0, vA))
            e.i("s_cmp_eq_u32 s%d, %d" % (sT0, NSPLIT - 1))
            e.i("s_cbranch_scc1 L_check")
            stamp_b()
            e.i("s_endpgm")
        if SPEC > 0:
            e.label("L_nospec")
            e.i("s_waitcnt vmcnt(0)")
            stamp_a()
            e.i("v_readfirstlane_b32 s%d, v%d" % (sT0, vA))
            e.i("s_cmp_eq_u32 s%d, %d" % (sT0, NSPLIT - 1))
            e.i("s_cbranch_scc1 L_poll")
            stamp_b()
            e.i("s_endpgm")
        e.label("L_poll")
        if STAMP:
            e.i("s_add_u32 s19, s19, 1")
        poll()
        e.label("L_check")
        e.i("s_waitcnt vmcnt(%d)" % NSPLIT)
        e.i("v_max_f32_dpp v%d, v%d, v%d row_ror:8 row_mask:0xf bank_mask:0xf" % (vS, QS, QS))
        e.i("v_min_u32 v%d, v%d, v%d" % (vZm, QS, QS + 1))
        for rr in (4, 2, 1):
            e.i("v_max_f32_dpp v%d, v%d, v%d row_ror:%d row_mask:0xf bank_mask:0xf" % (vS, vS, vS, rr))
        e.i("v_sub_f32 v%d, v%d, v%d" % (vW, QS, vS))
        e.i("v_exp_f32 v%d, v%d" % (vW, vW))
        e.i("v_mul_f32 v%d, v%d, v%d" % (vS, vW, QS + 1))
        for rr in (8, 4, 2, 1):
            e.i("v_add_f32_dpp v%d, v%d, v%d row_ror:%d row_mask:0xf bank_mask:0xf" % (vS, vS, vS, rr))
        e.i("v_rcp_f32 v%d, v%d" % (vS, vS))
        e.i("v_mul_f32 v%d, v%d, v%d" % (vW, vW, vS))
        for t in range(NSPLIT):
            if t % 4 == 0:
                e.i("s_waitcnt vmcnt(%d)" % (NSPLIT - 4 - t))
            r = RING + 4 * t
            e.i("v_min3_u32 v%d, v%d, v%d, v%d" % (vZm, vZm, r, r + 1))
            e.i("v_min3_u32 v%d, v%d, v%d, v%d" % (vZm, vZm, r + 2, r + 3))
            for c in range(4):
                e.i("v_%s_f32_dpp v%d, v%d, v%d row_newbcast:%d row_mask:0xf bank_mask:0xf" % ("mul" if t == 0 else "fmac", OT + c, vW, r + c, t))
        e.i("v_cmp_eq_u32 vcc, 0, v%d" % vZm)
        e.i("v_cvt_pk_bf16_f32 v%d, v%d, v%d" % (OT, OT, OT + 1))
        e.i("v_cvt_pk_bf16_f32 v%d, v%d, v%d" % (OT + 1, OT + 2, OT + 3))
        e.i("s_nop 2")
        e.i("s_cbranch_vccnz L_poll")
        e.i("buffer_store_dwordx2 v[%d:%d], v%d, s[%d:%d], s%d offen" % (OT, OT + 1, vVS, sK, sK + 3, sEx + 1))
        if STAMP:
            e.i("s_memrealtime s[16:17]")
            e.i("s_waitcnt lgkmcnt(0)")
            e.i("v_mov_b32 v%d, s16" % (A + 11))
            e.i("s_mul_i32 s19, s19, 100")
            e.i("v_add_u32 v%d, s19, v%d" % (A + 9, A + 9))
            stamp_b()
    elif FUSE:
        pass
        vA, vB, vC = vP, vP + 1, vPP
        e.i("s_lshl_b32 s%d, s%d, 9" % (sT0, sSplit))
        e.i("v_subrev_u32 v%d, s%d, v%d" % (vB, sT0, vT2))
        e.i("s_lshl_b32 s%d, s%d, 3" % (sT0, sSplit))
        e.i("v_subrev_u32 v%d, s%d, v%d" % (vC, sT0, vT3))
        if WSC:
            e.i("s_mul_i32 s%d, s%d, %d" % (sT0, sKVH, CSTR))
            e.i("s_add_u32 s%d, s%d, %d" % (sT0, sT0, CB + 32 * CSTR))
        else:
            e.i("s_lshl_b32 s%d, s%d, 2" % (sT0, sKVH))
            e.i("s_add_u32 s%d, s%d, 128" % (sT0, sT0))
        e.i("v_mov_b32 v%d, 1" % vA)
        e.i("v_mov_b32 v%d, 0" % vM)
        e.i("s_waitcnt vmcnt(0)")
        if STAMP:
            e.i("s_memrealtime s[14:15]")
        e.i("s_mov_b64 exec, 1")
        sCT = sWS if WSC else sDBG
        e.i("buffer_atomic_add v%d, v%d, s[%d:%d], s%d offen sc0" % (vA, vM, sCT, sCT + 3, sT0))
        e.i("s_mov_b64 exec, -1")
        e.i("s_waitcnt vmcnt(0)")
        if STAMP:
            e.i("s_memrealtime s[16:17]")
            e.i("s_waitcnt lgkmcnt(0)")
            e.i("v_mov_b32 v%d, s12" % (A + 8))
            e.i("v_mov_b32 v%d, s14" % (A + 9))
            e.i("v_mov_b32 v%d, s16" % (A + 10))
            e.i("v_mov_b32 v%d, 0" % (A + 11))
            e.i("s_lshl_b32 s18, s2, 4")
            e.i("s_add_u32 s18, s18, %d" % (10 << 20))
            e.i("v_mov_b32 v%d, 0" % (A + 12))
            e.i("buffer_store_dwordx4 v[%d:%d], v%d, s[%d:%d], s18 offen" % (A + 8, A + 11, A + 12, sWS, sWS + 3))
        e.i("v_readfirstlane_b32 s%d, v%d" % (sT0, vA))
        e.i("s_cmp_lg_u32 s%d, %d" % (sT0, NSPLIT - 1))
        e.i("s_cbranch_scc1 L_done1")
        for t in range(NSPLIT):
            e.i("buffer_load_dwordx2 v[%d:%d], v%d, s[%d:%d], s%d offen offset:%d sc1" % (QS + 2 * t, QS + 2 * t + 1, vC, sWS, sWS + 3, sT1, 8 * t))
        e.i("s_mov_b32 s%d, 4096" % sT0)
        for t in range(NSPLIT):
            e.i("buffer_load_dwordx4 v[%d:%d], v%d, s[%d:%d], %s offen offset:%d sc1" % (RING + 4 * t, RING + 4 * t + 3, vB, sWS, sWS + 3, "0" if t < 8 else "s%d" % sT0, (t % 8) * 512))
        e.i("s_mov_b32 s%d, s%d" % (sK, pout))
        e.i("s_mov_b32 s%d, s%d" % (sK + 1, pout + 1))
        e.i("s_mov_b32 s%d, 8192" % (sK + 2))
        e.i("s_mov_b32 s%d, 0x00020000" % (sK + 3))
        e.i("s_lshl_b32 s%d, s%d, 9" % (sT0, sKVH))
        e.i("v_lshlrev_b32 v%d, 3, v%d" % (vT2, vLane))
        e.i("s_waitcnt vmcnt(%d)" % NSPLIT)
        e.i("v_mov_b32 v%d, v%d" % (vT0, QS))
        for w in range(1, NSPLIT):
            e.i("v_max_f32 v%d, v%d, v%d" % (vT0, vT0, QS + 2 * w))
        for w in range(NSPLIT):
            e.i("v_sub_f32 v%d, v%d, v%d" % (QS + 2 * w, QS + 2 * w, vT0))
        for w in range(NSPLIT):
            e.i("v_exp_f32 v%d, v%d" % (QS + 2 * w, QS + 2 * w))
        e.i("v_mul_f32 v%d, v%d, v%d" % (vT1, QS, QS + 1))
        for w in range(1, NSPLIT):
            e.i("v_fmac_f32 v%d, v%d, v%d" % (vT1, QS + 2 * w, QS + 2 * w + 1))
        e.i("v_rcp_f32 v%d, v%d" % (vT1, vT1))
        e.i("s_waitcnt vmcnt(0)")
        for c in range(4):
            e.i("v_mul_f32 v%d, v%d, v%d" % (RING + c, RING + c, QS))
        for w in range(1, NSPLIT):
            for c in range(4):
                e.i("v_fmac_f32 v%d, v%d, v%d" % (RING + c, RING + 4 * w + c, QS + 2 * w))
        for c in range(4):
            e.i("v_mul_f32 v%d, v%d, v%d" % (RING + c, RING + c, vT1))
        e.i("v_cvt_pk_bf16_f32 v%d, v%d, v%d" % (RING, RING, RING + 1))
        e.i("v_cvt_pk_bf16_f32 v%d, v%d, v%d" % (RING + 1, RING + 2, RING + 3))
        e.i("buffer_store_dwordx2 v[%d:%d], v%d, s[%d:%d], s%d offen" % (RING, RING + 1, vT2, sK, sK + 3, sT0))
        if STAMP:
            e.i("s_memrealtime s[16:17]")
            e.i("s_waitcnt lgkmcnt(0)")
            e.i("v_mov_b32 v%d, s16" % (A + 8))
            e.i("v_mov_b32 v%d, 0" % (A + 12))
            e.i("buffer_store_dword v%d, v%d, s[%d:%d], s18 offen offset:12" % (A + 8, A + 12, sWS, sWS + 3))
    e.raw("L_done1:")
    e.i("s_endpgm")
    if WSC:
        e.label("L_init")
        e.i("s_cmp_lg_u32 s2, %d" % (NWG if WSC == 1 else 100000))
        e.i("s_cbranch_scc1 L_done1")
        e.i("v_readfirstlane_b32 s%d, v0" % sT0)
        e.i("s_cmp_lg_u32 s%d, 0" % sT0)
        e.i("s_cbranch_scc1 L_done1")
        e.i("s_load_dwordx4 s[%d:%d], s[0:1], 64" % (sPtr + 16, sPtr + 19))
        e.i("v_mul_u32_u24 v2, %d, v0" % CSTR)
        e.i("v_mov_b32 v3, 0")
        e.i("v_mov_b32 v4, 1")
        e.i("s_mov_b32 s%d, %d" % (sT1, CB))
        for srd, n in ((sWS, 1 << 24), (sDBG, 256)):
            e.i("s_mov_b32 s%d, %d" % (srd + 2, n))
            e.i("s_mov_b32 s%d, 0x00020000" % (srd + 3))
        e.i("s_waitcnt lgkmcnt(0)")
        for srd, p_ in ((sWS, pws), (sDBG, pdbg)):
            e.i("s_mov_b32 s%d, s%d" % (srd, p_))
            e.i("s_mov_b32 s%d, s%d" % (srd + 1, p_ + 1))
        e.i("v_mov_b32 v5, 1")
        e.i("s_mov_b64 exec, 1")
        e.i("buffer_atomic_add v5, v3, s[%d:%d], 0 offen offset:4 sc0" % (sDBG, sDBG + 3))
        e.i("s_mov_b64 exec, -1")
        e.i("s_waitcnt vmcnt(0)")
        e.i("v_readfirstlane_b32 s%d, v5" % sT0)
        e.i("s_cmp_lg_u32 s%d, 0" % sT0)
        e.i("s_cbranch_scc1 L_done1")
        e.i("buffer_store_dword v3, v2, s[%d:%d], s%d offen sc1" % (sWS, sWS + 3, sT1))
        if MBX:
            e.i("v_lshlrev_b32 v6, 4, v0")
            for r_ in range(8, 12):
                e.i("v_mov_b32 v%d, 0" % r_)
            e.i("s_mov_b32 s%d, %d" % (sT0, MBO))
            e.label("L_iz")
            e.i("buffer_store_dwordx4 v[8:11], v6, s[%d:%d], s%d offen sc1" % (sWS, sWS + 3, sT0))
            e.i("s_add_u32 s%d, s%d, 1024" % (sT0, sT0))
            e.i("s_cmp_lt_u32 s%d, %d" % (sT0, MBO + MBXB))
            e.i("s_cbranch_scc1 L_iz")
        e.i("s_waitcnt vmcnt(0)")
        e.i("s_mov_b64 exec, 1")
        e.i("buffer_store_dword v4, v3, s[%d:%d], 0 offen sc1" % (sDBG, sDBG + 3))
        e.i("s_endpgm")
    k1 = e.text()


    hdr = open("cdna_kernels/%s.s.ref" % NAME).read().split("; Override launch geometry")[0]
    out = hdr
    if not LIST:
        out += "; @launch grid=(%d,1,1) block=(%d,1,1) lds=%d\n" % (NWG + (1 if WSC else 0), WPW * 64, LDS)
    else:
        out += "; @launch kernel=%s_kernel grid=(%d,1,1) block=(%d,1,1) lds=%d\n" % (NAME, NWG + (1 if WSC else 0), WPW * 64, LDS)
    out += '.amdgcn_target "amdgcn-amd-amdhsa--gfx950"\n.text\n'
    out += ".globl %s_kernel\n.p2align 8\n.type %s_kernel,@function\n" % (NAME, NAME)
    out += k1
    out += '.section .rodata,"a"\n'
    out += (".p2align 6\n.amdhsa_kernel %s\n  .amdhsa_next_free_vgpr %d\n  .amdhsa_next_free_sgpr %d\n"
            "  .amdhsa_accum_offset %d\n  .amdhsa_group_segment_fixed_size 0\n  .amdhsa_kernarg_size 80\n"
            "  .amdhsa_user_sgpr_count 2\n  .amdhsa_user_sgpr_kernarg_segment_ptr 1\n"
            "  .amdhsa_system_sgpr_workgroup_id_x 1\n.end_amdhsa_kernel\n") % (NAME + "_kernel", VG, 100, (VG + 3) // 4 * 4)
    mv = max([int(x) for x in re.findall(r"\bv(\d+)\b", k1)] + [int(x) for x in re.findall(r"v\[\d+:(\d+)\]", k1)])
    ms = max([int(x) for x in re.findall(r"\bs(\d+)\b", k1)] + [int(x) for x in re.findall(r"s\[\d+:(\d+)\]", k1)])
    assert mv < VG <= 256 and ms < 100, (mv, VG, ms)
    return out


def parse_gs(s):
    out = []
    for part in s.split(","):
        if "x" in part:
            v, n = part.split("x")
            out += [int(v)] * int(n)
        else:
            out.append(int(part))
    return out


if __name__ == "__main__":
    ap = argparse.ArgumentParser()
    ap.add_argument("--gs", default="4x8,2x8,1x16")
    ap.add_argument("--ns", type=int, default=14)
    ap.add_argument("--stamp", type=int, default=0)
    ap.add_argument("--list", type=int, default=1)
    ap.add_argument("--exact", type=int, default=1)
    ap.add_argument("--lastbar", type=int, default=0)
    ap.add_argument("--mapd", type=int, default=0)
    ap.add_argument("--fake", type=int, default=0)
    ap.add_argument("--frot", type=int, default=0)
    ap.add_argument("--wsc", type=int, default=0)
    ap.add_argument("--split8", type=int, default=0)
    ap.add_argument("--cstr", type=int, default=4096)
    ap.add_argument("--goff", type=int, default=0)
    ap.add_argument("--pls", type=int, default=0)
    ap.add_argument("--late", type=int, default=0)
    ap.add_argument("--mbx", type=int, default=0)
    ap.add_argument("--spec", type=int, default=0)
    ap.add_argument("--mbr", type=int, default=0)
    ap.add_argument("--pt", type=int, default=0)
    ap.add_argument("--hlp", type=int, default=0)
    ap.add_argument("-o", required=True)
    a_ = ap.parse_args()
    s = gen(GS=parse_gs(a_.gs), NS=a_.ns, STAMP=a_.stamp, LIST=a_.list, EXACT=a_.exact, LASTBAR=a_.lastbar, MAPD=a_.mapd, FAKE=a_.fake, FROT=a_.frot, WSC=a_.wsc, SPLIT8=a_.split8, CSTR=a_.cstr, GOFF=a_.goff, PLS=a_.pls, LATE=a_.late, MBX=a_.mbx, SPEC=a_.spec, MBR=a_.mbr, PT=a_.pt, HLP=a_.hlp)
    open(a_.o, "w").write(s)
    print("wrote", a_.o, len(s), "bytes")
```

```python
import re
import sys
import struct
import argparse

NAME = "standalone__kv_cache_quant_int4_int2_kv_with_per_channel_or_per_token_scales__decode"


def f2u(x):
    return struct.unpack("<I", struct.pack("<f", x))[0]


REG_RE = re.compile(r"\b([vs])(\d+)\b|\b([vs])\[(\d+):(\d+)\]|\b(vcc)\b")


def regs_of(op):
    out = set()
    for m in REG_RE.finditer(op):
        if m.group(1):
            out.add((m.group(1), int(m.group(2))))
        elif m.group(3):
            for r in range(int(m.group(4)), int(m.group(5)) + 1):
                out.add((m.group(3), r))
        else:
            out.add(("vcc", 0))
    return out


TRANS = ("v_exp_f32", "v_log_f32", "v_rcp_f32", "v_rsq_f32", "v_sqrt_f32")


class Emit:
    def __init__(self):
        self.lines = []
        self.hist = []

    def raw(self, s):
        self.lines.append(s)

    def label(self, s):
        self.i("s_nop 4")
        self.lines.append(s + ":")
        self.hist = []

    def comment(self, s):
        self.lines.append("    ; " + s)

    def i(self, text):
        text = text.strip()
        mn = text.split()[0]
        rest = text[len(mn):].strip()
        ops = [o.strip() for o in rest.split(",")] if rest else []
        clean = []
        for o in ops:
            clean.append(o.split()[0] if o.split() else o)
        ops = clean
        is_valu = mn.startswith("v_")
        is_vmem = mn.startswith("buffer_") or mn.startswith("global_")
        is_dpp = "_dpp" in mn
        is_perm = mn.startswith("v_permlane")
        is_rl = mn.startswith("v_readlane") or mn.startswith("v_readfirstlane")
        writes, reads = set(), set()
        if is_valu:
            if is_perm:
                writes = regs_of(ops[0]) | regs_of(ops[1])
                reads = set(writes)
            else:
                writes = regs_of(ops[0])
                for o in ops[1:]:
                    reads |= regs_of(o)
                if "fmac" in mn or is_dpp:
                    reads |= regs_of(ops[0])
                if mn.startswith("v_cndmask") and len(ops) == 3:
                    reads.add(("vcc", 0))
        elif is_vmem:
            for o in ops:
                reads |= regs_of(o)
        elif mn.startswith("ds_"):
            for o in ops:
                reads |= regs_of(o)
        else:
            for o in ops:
                reads |= regs_of(o)
        need = 0
        for dist, h in enumerate(reversed(self.hist)):
            req = 0
            if h["valu"]:
                vw = {r for r in h["writes"] if r[0] == "v"}
                sw = {r for r in h["writes"] if r[0] in ("s", "vcc")}
                if (is_dpp or is_perm) and (vw & reads):
                    req = max(req, 2)
                if is_rl and (vw & reads):
                    req = max(req, 1)
                if is_valu and (sw & reads):
                    req = max(req, 4 if is_rl else 2)
                if is_vmem and (sw & reads):
                    req = max(req, 5)
                if (not is_valu) and (not is_vmem) and (sw & reads):
                    req = max(req, 4)
                if h["trans"] and is_valu and (vw & reads):
                    req = max(req, 1)
            if h["wide_store"] and is_valu and (h["reads"] & writes):
                req = max(req, 2)
            need = max(need, req - h["after"])
        if need > 0:
            self._push("s_nop %d" % (need - 1), need, dict(valu=False, writes=set(), reads=set(), trans=False, wide_store=False))
        wide = is_vmem and "store" in mn and ("x4" in mn or "x3" in mn)
        self._push(text, 1, dict(valu=is_valu, writes=writes, reads=reads, trans=mn.startswith(TRANS), wide_store=wide))

    def _push(self, text, states, info):
        if text.startswith("s_nop"):
            states = int(text.split()[1]) + 1
        for h in self.hist:
            h["after"] += states
        info["after"] = 0
        self.hist.append(info)
        self.hist = [h for h in self.hist if h["after"] < 8]
        self.lines.append("    " + text)

    def text(self):
        return "\n".join(self.lines) + "\n"


def gen(BAR=8, GS=None, NS=3, STAMP=0, LIST=1, WSC=1, CSTR=4096, LATE=16, NTF=' nt', BAR8=8, THR=1400, INV=0, NUMA=1, SKIP=16, NP=10, CLIP=3000, FORCE=-1, FLJ=-1):
    EXACT = 1; LASTBAR = 1; MAPD = 1; FAKE = 0; FROT = 0; SPLIT8 = 1; GOFF = 0; PLS = 0; MBX = 0; SPEC = 0; MBR = 0; PT = 0; HLP = 0
    R = 16
    WPW = 4
    NWG = 256
    NSPLIT = 16
    LOG_WPW = 2
    LOG_NSPLIT = 4
    CSCALE = (128.0 ** -0.5) * 1.4426950408889634
    ntf = NTF
    assert BAR == 8 and (BAR8 in (2, 4, 8) or (BAR8 == 16 and LATE == 8))
    D0 = 16

    e = Emit()
    vLoff, vSoff, vLdsW, vLdsR = 0, 1, 2, 3
    vM = 4
    vT0, vT1, vT2 = 6, 7, 5
    vL = 8
    vZ = 10
    vVS = 12
    vP = 14
    vPP = 16
    vLane = 18
    vT3 = 19
    QS = 20
    O = 52
    A = 84
    RING = 100
    NV = RING + 4 * R
    vStamp = NV
    if STAMP >= 2:
        NV += 1
    vTk, vSL, vTab, vSoffD, vVSn, vVSn1, vFl = range(NV, NV + 7)
    NV += 7
    CB = 12 << 20
    MBXB = 32 * NSPLIT * 512 + 32 * NSPLIT * 8
    assert not MBX or (WSC and (len(GS) <= 60 or SPEC in (0, 8)))
    MBO = (CB + (256 << 10)) if MBR else 0
    assert not MBR or (MBX and 48 * CSTR <= (256 << 10))
    VG = max(NV, RING + 64)
    DT = 32
    assert LATE and WSC and NS >= 2
    assert sum(GS) == 8 * DT and all(x in (1, 2, 4) for x in GS) and all(GS[k] >= GS[k + 1] for k in range(len(GS) - 1))
    st = [0]
    for n_ in GS:
        st.append(st[-1] + n_)
    assert all(st[k] % GS[k] == 0 for k in range(len(GS)))
    NB = sum(1 for x in GS if x == 4)
    st = st[NB:]
    assert len(st) <= 61 and NB >= 4 * NS
    POW2 = DT & (DT - 1) == 0
    if not POW2:
        DSH = 16
        DM = (1 << DSH) // DT + 1
        assert all((u * DM) >> DSH == u // DT for u in range(8 * DT + 1))
    TICKOFF = WPW * 512 + WPW * 1024 + WPW * 16
    SCB = TICKOFF + 16
    PR = DT * 128
    VZD = 0
    if PLS:
        GOFF = 1
    CNTOFF = TICKOFF + 4
    RT = 64 * WPW
    GSTR = 16 * WPW
    GB = GSTR * 512
    NSL = 2

    def qs(sc):
        return "v[%d:%d]" % (QS + 2 * sc, QS + 2 * sc + 1)

    def o(sc):
        return "v[%d:%d]" % (O + 2 * sc, O + 2 * sc + 1)

    def a(i):
        return "v[%d:%d]" % (A + 2 * i, A + 2 * i + 1)

    def ring(slot):
        return RING + 4 * slot

    sK, sV, sVS, sVZ = 8, 12, 16, 20
    sQ, sKS, sKZ, sWS = 24, 28, 32, 36
    sX = 24
    sXoff, sGn, sXadd = 28, 29, 30
    sMaskE = 32
    sWoff = 34
    sFl = 35
    sPW = 31
    sKoff, sVoff, sSoff, sCnt = 40, 41, 42, 43
    sMask1, sMask0 = 44, 46
    sM0, sM1 = 48, 49
    sF = 50
    sC0, sC1 = 52, 53
    sWave, sGW, sKVH, sRB, sT0, sT1 = 54, 55, 56, 57, 58, 59
    sPtr = 60
    sL0, sZ0, sL1, sZ1 = 80, 81, 82, 83
    sSplit = 84
    sEx = 86
    sQi = 94
    sDBG = 4
    sCur, sTkt, sD0, sD1, sBar = 95, 85, 91, 92, 93
    sTm, sPref, sSw, sHold, sTprev, sCls, sReqC = 60, 62, 63, 64, 65, 66, 67
    sHB, sCid, sSub = 31, 93, 3
    sW8, sMix2, sLow, sGB = 72, 73, 68, 69
    vTok2 = vSL
    sFix = sCid

    def load(slot, srd, so, seg, extra=()):
        r = ring(slot)
        e.i("buffer_load_dwordx4 v[%d:%d], v%d, s[%d:%d], s%d offen offset:%d%s" % (r, r + 3, vLoff, srd, srd + 3, so, seg * 128, ntf))
        if seg == 3:
            for s_ in (so,) + tuple(extra):
                e.i("s_add_u32 s%d, s%d, s%d" % (s_, s_, sGB))

    def issue_own(G, j):
        if j < 4 * G:
            load(j % R, sK, sKoff, j % 4)
        else:
            load(j % R, sV, sVoff, j % 4)

    def issue_next(i):
        if i < 8:
            load(i % R, sK, sKoff, i % 4)
        else:
            load(i % R, sX, sXoff, i % 4, extra=(sKoff,))

    pq, pqk, pqv, pks, pkz, pvs, pvz, pout, pdbg, pws = [sPtr + 2 * k for k in range(10)]

    e.raw("%s_kernel:" % NAME)
    e.i("s_cmp_ge_u32 s2, %d" % NWG)
    e.i("s_cbranch_scc1 %s" % ("L_init" if WSC else "L_done1"))
    if STAMP:
        e.i("s_memrealtime s[88:89]")
    e.i("s_load_dwordx16 s[%d:%d], s[0:1], 0" % (sPtr, sPtr + 15))
    e.i("s_load_dwordx4 s[%d:%d], s[0:1], 64" % (sPtr + 16, sPtr + 19))
    e.i("v_lshrrev_b32 v%d, 6, v0" % vT0)
    e.i("v_and_b32 v%d, 63, v0" % vLane)
    e.i("v_readfirstlane_b32 s%d, v%d" % (sWave, vT0))
    e.i("v_lshrrev_b32 v%d, 3, v%d" % (vT0, vLane))
    e.i("v_and_b32 v%d, 7, v%d" % (vT1, vLane))
    e.i("v_lshlrev_b32 v%d, 9, v%d" % (vLoff, vT0))
    e.i("v_lshl_add_u32 v%d, v%d, 4, v%d" % (vLoff, vT1, vLoff))
    e.i("s_lshr_b32 s%d, s2, 3" % sQi)
    e.i("s_lshl_b32 s%d, s%d, 24" % (sRB, sQi))
    e.i("s_and_b32 s%d, s2, 3" % sSub)
    e.i("s_bfe_u32 s%d, s2, 0x10002" % sCid)
    e.i("s_lshr_b32 s%d, s2, 7" % sT1)
    if INV:
        e.i("s_xor_b32 s%d, s%d, 1" % (sT1, sT1))
    e.i("s_lshl_b32 s%d, s%d, 8" % (sTkt, sCid))
    e.i("s_lshl_b32 s%d, s%d, 3" % (sT0, sWave))
    e.i("s_add_u32 s%d, s%d, s%d" % (sTkt, sTkt, sT0))
    e.i("s_add_u32 s%d, s%d, 2" % (sFix, sCid))
    e.i("s_lshl_b32 s%d, s%d, 12" % (sCur, sSub))
    e.i("s_lshr_b32 s%d, s%d, 1" % (sT0, sWave))
    e.i("s_lshl_b32 s%d, s%d, 5" % (sT0, sT0))
    e.i("s_and_b32 s%d, s%d, 1" % (sD1, sWave))
    e.i("s_lshl_b32 s%d, s%d, 3" % (sD1, sD1))
    e.i("s_add_u32 s%d, s%d, s%d" % (sD1, sD1, sT0))
    e.i("s_mov_b32 s%d, s%d" % (sD0, sT1))
    e.i("s_add_u32 s%d, s%d, s%d" % (sCur, sCur, sTkt))
    e.i("s_lshl_b32 s%d, s%d, 9" % (sKoff, sCur))
    e.i("s_lshl_b32 s%d, s%d, 9" % (sVoff, sCur))
    for srd in (sK, sV):
        e.i("s_mov_b32 s%d, %d" % (srd + 2, 32768 * 512))
        e.i("s_mov_b32 s%d, 0x00020000" % (srd + 3))
    e.i("v_lshrrev_b32 v%d, 2, v%d" % (vT2, vT1))
    e.i("v_and_b32 v%d, 2, v%d" % (vT3, vT1))
    e.i("v_add_u32 v%d, v%d, v%d" % (vT2, vT2, vT3))
    e.i("v_and_b32 v%d, 1, v%d" % (vT3, vT1))
    e.i("v_lshl_add_u32 v%d, v%d, 2, v%d" % (vT2, vT3, vT2))
    e.i("v_mov_b32 v%d, v%d" % (vSoff, vT2))
    e.i("v_lshlrev_b32 v%d, 1, v%d" % (vTok2, vT0))
    e.i("v_lshl_add_u32 v%d, v%d, 6, v%d" % (vSoffD, vT2, vTok2))
    e.i("s_lshl_b32 s%d, s%d, 9" % (sT0, sWave))
    e.i("v_lshlrev_b32 v%d, 6, v%d" % (vLdsR, vT0))
    e.i("v_add_u32 v%d, s%d, v%d" % (vLdsR, sT0, vLdsR))
    e.i("v_lshl_add_u32 v%d, v%d, 3, v%d" % (vLdsW, vT2, vLdsR))
    e.i("s_mov_b32 s%d, 0xcccccccc" % sMask1)
    e.i("s_mov_b32 s%d, 0xcccccccc" % (sMask1 + 1))
    e.i("s_mov_b32 s%d, 0xaaaaaaaa" % sMask0)
    e.i("s_mov_b32 s%d, 0xaaaaaaaa" % (sMask0 + 1))
    e.i("s_lshl_b32 s%d, s2, %d" % (sGW, LOG_WPW))
    e.i("s_add_u32 s%d, s%d, s%d" % (sGW, sGW, sWave))
    e.i("s_lshr_b32 s%d, s2, 4" % sKVH)
    e.i("s_and_b32 s%d, s2, %d" % (sSplit, NSPLIT - 1))
    e.i("s_cmp_eq_u32 s%d, 0" % sWave)
    e.i("s_cselect_b32 s%d, %d, 1000" % (sTkt, NS - 1 if FAKE != 1 else 1000))
    e.i("v_lshlrev_b32 v%d, 3, v%d" % (vT3, vT1))
    e.i("v_lshlrev_b32 v%d, 4, v%d" % (vT0, vLane))
    for srd, n in ((sVS, 65536), (sVZ, 65536), (sQ, 8192), (sKS, 8192), (sKZ, 8192), (sWS, 1 << 24), (sDBG, 256)):
        e.i("s_mov_b32 s%d, %d" % (srd + 2, n))
        e.i("s_mov_b32 s%d, 0x00020000" % (srd + 3))
    e.i("s_waitcnt lgkmcnt(0)")
    if STAMP >= 2:
        e.i("s_mov_b32 s98, 0")
        e.i("v_mov_b32 v%d, 0" % vStamp)
        e.i("s_memtime s[96:97]")
        e.i("s_waitcnt lgkmcnt(0)")
        e.i("v_writelane_b32 v%d, s96, 63" % vStamp)
        e.i("s_memrealtime s[96:97]")
        e.i("s_waitcnt lgkmcnt(0)")
        e.i("v_writelane_b32 v%d, s96, 61" % vStamp)
    for srd, p in ((sK, pqk), (sV, pqv)):
        e.i("s_add_u32 s%d, s%d, s%d" % (srd, p, sRB))
        e.i("s_addc_u32 s%d, s%d, 0" % (srd + 1, p + 1))
    e.i("s_lshl_b32 s%d, s%d, 16" % (sT0, sQi))
    for srd, p in ((sVS, pvs), (sVZ, pvz)):
        e.i("s_add_u32 s%d, s%d, s%d" % (srd, p, sT0))
        e.i("s_addc_u32 s%d, s%d, 0" % (srd + 1, p + 1))
    for srd, p in ((sQ, pq), (sKS, pks), (sKZ, pkz), (sWS, pws), (sDBG, pdbg)):
        e.i("s_mov_b32 s%d, s%d" % (srd, p))
        e.i("s_mov_b32 s%d, s%d" % (srd + 1, p + 1))
    e.i("s_lshl_b32 s%d, s%d, 9" % (sT0, sKVH))
    e.i("s_lshl_b32 s%d, s%d, 8" % (sT1, sQi))
    order = [("q", 0, 0), ("ks", 0, 0), ("kz", 0, 0)] + [("q", h, s_) for h in range(2) for s_ in range(4) if (h, s_) != (0, 0)] + [("ks", 0, s_) for s_ in range(1, 4)] + [("kz", 0, s_) for s_ in range(1, 4)]
    for kind, h, seg in order:
        if kind == "q":
            r = O + (h * 4 + seg) * 2
            e.i("buffer_load_dwordx2 v[%d:%d], v%d, s[%d:%d], s%d offen offset:%d" % (r, r + 1, vT3, sQ, sQ + 3, sT0, h * 256 + seg * 64))
        elif kind == "ks":
            r = O + 16 + seg * 2
            e.i("buffer_load_dwordx2 v[%d:%d], v%d, s[%d:%d], s%d offen offset:%d" % (r, r + 1, vT3, sKS, sKS + 3, sT1, seg * 64))
        else:
            r = O + 24 + seg * 2
            e.i("buffer_load_dwordx2 v[%d:%d], v%d, s[%d:%d], s%d offen offset:%d" % (r, r + 1, vT3, sKZ, sKZ + 3, sT1, seg * 64))
    e.i("s_and_b32 s%d, s2, 7" % sT0)
    e.i("s_lshl_b32 s%d, s%d, 13" % (sT0, sT0))
    e.i("s_mul_i32 s%d, s%d, %d" % (sT1, sWave, 1024 * NSL))
    e.i("s_add_u32 s%d, s%d, s%d" % (sT0, sT0, sT1))
    for k_ in range(NSL):
        e.i("buffer_load_dwordx4 v[%d:%d], v%d, s[%d:%d], s%d offen offset:%d" % (QS + 8 * k_, QS + 8 * k_ + 3, vT0, sVS, sVS + 3, sT0, 1024 * k_))
        e.i("buffer_load_dwordx4 v[%d:%d], v%d, s[%d:%d], s%d offen offset:%d" % (QS + 8 * k_ + 4, QS + 8 * k_ + 7, vT0, sVZ, sVZ + 3, sT0, 1024 * k_))
    e.i("s_lshl_b32 s%d, s%d, 1" % (sSoff, sCur))
    e.i("buffer_load_ushort v%d, v%d, s[%d:%d], s%d offen" % (vVSn, vSoffD, sVS, sVS + 3, sSoff))
    e.i("buffer_load_ushort v%d, v%d, s[%d:%d], s%d offen" % (vVSn1, vSoffD, sVZ, sVZ + 3, sSoff))
    e.i("s_mov_b32 s%d, %d" % (sGB, GB // 2))
    pool = []
    if PLS:
        assert NSL == 2
        PW = 4 if PR % 1024 == 0 else 2
        PB = 256 * PW
        free = list(range(QS + 16, QS + 32)) + list(range(A, A + 16))
        e.i("v_lshlrev_b32 v%d, %d, v%d" % (vVSn, PW.bit_length() + 1, vLane))
        e.i("s_mul_i32 s%d, s%d, %d" % (sT1, sWave, 2 * PR))
        e.i("v_add_u32 v%d, s%d, v%d" % (vVSn1, sT1, vVSn))
        e.i("s_lshl_b32 s%d, s%d, 14" % (sSoff, sWave))
        e.i("s_add_u32 s%d, s%d, %d" % (sSoff, sSoff, NS * 512))
        e.i("s_add_u32 s%d, s%d, 8192" % (sD0, sSoff))
        for rr in range(2):
            for k_ in range(PR // PB):
                for ai, srd in enumerate((sVS, sVZ)):
                    r0 = free[0]
                    assert free[:PW] == list(range(r0, r0 + PW))
                    del free[:PW]
                    e.i("buffer_load_dwordx%d v[%d:%d], v%d, s[%d:%d], s%d offen offset:%d" % (PW, r0, r0 + PW - 1, vVSn, srd, srd + 3, (sSoff, sD0)[rr], PB * k_))
                    pool.append((r0, SCB + 8192 + ai * VZD + rr * PR + PB * k_))
    for j in range(D0):
        issue_own(8, j)
    if WSC:
        e.i("s_mul_i32 s%d, s%d, %d" % (sQi, sQi, 2 * CSTR))
        e.i("s_add_u32 s%d, s%d, %d" % (sQi, sQi, CB))
    else:
        e.i("s_lshl_b32 s%d, s%d, 2" % (sQi, sQi))
    e.i("v_mov_b32 v%d, %d" % (vTab, st[-1]))
    for k_, v_ in enumerate(st[:-1]):
        if v_ <= 64:
            e.i("v_writelane_b32 v%d, %d, %d" % (vTab, v_, k_))
        else:
            e.i("s_mov_b32 s%d, %d" % (sT0, v_))
            e.i("v_writelane_b32 v%d, s%d, %d" % (vTab, sT0, k_))
    e.i("v_mov_b32 v%d, 0" % vT2)
    e.i("ds_write_b32 v%d, v%d offset:%d" % (vT2, vT2, CNTOFF))
    for r in (vL, vL + 1, vZ, vZ + 1):
        e.i("v_mov_b32 v%d, 0" % r)
    e.i("v_mov_b32 v%d, 0x%08x" % (vM, f2u(-3.0e38)))
    e.i("s_mov_b32 s%d, 0" % sCnt)
    e.i("s_mov_b32 s%d, 0x%08x" % (sT0, f2u(CSCALE)))
    e.i("s_waitcnt vmcnt(%d)" % D0)
    e.i("s_mov_b32 s%d, s%d" % (sX, sK))
    e.i("s_mov_b32 s%d, s%d" % (sX + 1, sK + 1))
    e.i("s_mov_b32 s%d, %d" % (sX + 2, 32768 * 512))
    e.i("s_mov_b32 s%d, 0x00020000" % (sX + 3))
    e.i("s_mov_b32 s%d, 4" % sGn)
    e.i("s_mov_b32 s%d, %d" % (sXadd, GB))
    e.i("s_mov_b32 s%d, 0xeeeeeeee" % sMaskE)
    e.i("s_mov_b32 s%d, 0xeeeeeeee" % (sMaskE + 1))
    e.i("s_sub_u32 s%d, s%d, %d" % (sFl, sTkt, 0 if LATE else 1))
    e.i("s_mov_b32 s%d, s%d" % (sWoff, sD1))
    e.i("s_mov_b32 s%d, s%d" % (sHB, sD0))
    e.i("s_mov_b32 s%d, 0" % sPref)
    e.i("s_mov_b32 s%d, 2" % sMix2)
    e.i("s_lshl_b32 s%d, s%d, 3" % (sW8, sWave))
    e.i("s_mov_b32 s%d, 0" % sSw)
    e.i("s_mov_b32 s%d, 1" % sHold)
    e.i("s_mov_b32 s%d, 0" % sTprev)
    e.i("s_mov_b32 s%d, 0" % sReqC)
    if PLS:
        e.i("s_lshl_b32 s%d, s%d, 4" % (sPW, sWave))
        e.i("s_add_u32 s%d, s%d, 8192" % (sPW, sPW))
        for r0, off in pool:
            e.i("ds_write_b%d v%d, v[%d:%d] offset:%d" % (32 * PW, vVSn1, r0, r0 + PW - 1, off))
        if any(r0 >= A for r0, _ in pool):
            e.i("s_waitcnt lgkmcnt(0)")
    for seg in range(4):
        for half in range(2):
            src = O + 16 + seg * 2 + half
            d0 = A + seg * 4 + half * 2
            e.i("v_lshlrev_b32 v%d, 16, v%d" % (d0, src))
            e.i("v_and_b32 v%d, 0xffff0000, v%d" % (d0 + 1, src))
    for k in range(16):
        e.i("v_mul_f32 v%d, s%d, v%d" % (A + k, sT0, A + k))
    e.i("s_waitcnt lgkmcnt(0)")
    for h in range(2):
        for seg in range(4):
            for half in range(2):
                src = O + (h * 4 + seg) * 2 + half
                sc0 = seg * 4 + half * 2
                e.i("v_lshlrev_b32 v%d, 16, v%d" % (QS + 2 * sc0 + h, src))
                e.i("v_and_b32 v%d, 0xffff0000, v%d" % (QS + 2 * (sc0 + 1) + h, src))
    for sc in range(16):
        for h in range(2):
            e.i("v_mul_f32 v%d, v%d, v%d" % (QS + 2 * sc + h, QS + 2 * sc + h, A + sc))
    for seg in range(4):
        for half in range(2):
            src = O + 24 + seg * 2 + half
            d0 = A + seg * 4 + half * 2
            e.i("v_lshlrev_b32 v%d, 16, v%d" % (d0, src))
            e.i("v_and_b32 v%d, 0xffff0000, v%d" % (d0 + 1, src))
    for h in range(2):
        t = vT0 + h
        e.i("v_mul_f32 v%d, v%d, v%d" % (t, QS + h, A))
        for sc in range(1, 16):
            e.i("v_fmac_f32 v%d, v%d, v%d" % (t, QS + 2 * sc + h, A + sc))
    for mod in ("quad_perm:[1,0,3,2]", "quad_perm:[2,3,0,1]", "row_half_mirror"):
        for h in range(2):
            t = vT0 + h
            e.i("v_add_f32_dpp v%d, v%d, v%d %s row_mask:0xf bank_mask:0xf" % (t, t, t, mod))
    e.i("v_readfirstlane_b32 s%d, v%d" % (sC0, vT0))
    e.i("v_readfirstlane_b32 s%d, v%d" % (sC1, vT1))
    for k in range(32):
        e.i("v_mov_b32 v%d, 0" % (O + k))
    FUSE = 1

    def stepA(x, y):
        for k in range(2):
            e.i("v_add_f32_dpp v%d, v%d, v%d row_half_mirror row_mask:0xf bank_mask:0x5" % (A + 2 * x + k, A + 2 * x + k, A + 2 * x + k))
        for k in range(2):
            e.i("v_add_f32_dpp v%d, v%d, v%d row_half_mirror row_mask:0xf bank_mask:0xa" % (A + 2 * x + k, A + 2 * y + k, A + 2 * y + k))

    def stepQ(x, y, mask, perm, out):
        for k in range(2):
            X, Y = A + 2 * x + k, A + 2 * y + k
            t = vT0 + k
            e.i("v_cndmask_b32 v%d, v%d, v%d, s[%d:%d]" % (t, Y, X, mask, mask + 1))
            e.i("v_cndmask_b32 v%d, v%d, v%d, s[%d:%d]" % (Y, X, Y, mask, mask + 1))
        for k in range(2):
            Y = A + 2 * y + k
            t = vT0 + k
            e.i("v_add_f32_dpp v%d, v%d, v%d %s row_mask:0xf bank_mask:0xf" % (out + k, t, Y, perm))

    def stepP(perm):
        for k in range(2):
            e.i("v_add_f32_dpp v%d, v%d, v%d %s row_mask:0xf bank_mask:0xf" % (A + k, A + k, A + k, perm))

    def softmax(G):
        S0, S1 = A, A + 1
        e.i("v_mov_b32 v%d, v%d" % (vT0, S0))
        e.i("v_mov_b32 v%d, v%d" % (vT1, S1))
        e.i("v_lshlrev_b32 v%d, 16, v%d" % (vVS, vVS))
        e.i("v_lshlrev_b32 v%d, 16, v%d" % (vVS + 1, vVS + 1))
        e.i("v_permlane32_swap_b32 v%d, v%d" % (vT0, vT1))
        e.i("v_max_f32 v%d, v%d, v%d" % (vT0, vT0, vT1))
        e.i("v_mov_b32 v%d, v%d" % (vT1, vT0))
        e.i("v_permlane16_swap_b32 v%d, v%d" % (vT0, vT1))
        e.i("v_max_f32 v%d, v%d, v%d" % (vT0, vT0, vT1))
        for rr in (8, 4, 2, 1):
            e.i("v_max_f32_dpp v%d, v%d, v%d row_ror:%d row_mask:0xf bank_mask:0xf" % (vT0, vT0, vT0, rr))
        e.i("v_max_f32 v%d, v%d, v%d" % (vT0, vT0, vM))
        e.i("v_sub_f32 v%d, v%d, v%d" % (vT1, vM, vT0))
        e.i("v_exp_f32 v%d, v%d" % (vT1, vT1))
        e.i("v_mov_b32 v%d, v%d" % (vM, vT0))
        e.i("v_readlane_b32 s%d, v%d, 0" % (sM0, vT0))
        e.i("v_readlane_b32 s%d, v%d, 32" % (sM1, vT0))
        e.i("v_readlane_b32 s%d, v%d, 0" % (sF, vT1))
        e.i("v_readlane_b32 s%d, v%d, 32" % (sF + 1, vT1))
        e.i("v_subrev_f32 v%d, s%d, v%d" % (vP, sM0, S0))
        e.i("v_subrev_f32 v%d, s%d, v%d" % (vP + 1, sM1, S1))
        e.i("v_exp_f32 v%d, v%d" % (vP, vP))
        e.i("v_exp_f32 v%d, v%d" % (vP + 1, vP + 1))
        if G < 8:
            mk = sMask0 if G == 4 else sMaskE
            for k in range(2):
                e.i("v_cndmask_b32 v%d, v%d, 0, s[%d:%d]" % (vP + k, vP + k, mk, mk + 1))
        P = "v[%d:%d]" % (vP, vP + 1)
        PP = "v[%d:%d]" % (vPP, vPP + 1)
        L = "v[%d:%d]" % (vL, vL + 1)
        Z = "v[%d:%d]" % (vZ, vZ + 1)
        VS = "v[%d:%d]" % (vVS, vVS + 1)
        F = "s[%d:%d]" % (sF, sF + 1)
        e.i("v_pk_mul_f32 %s, %s, %s" % (Z, Z, F))
        e.i("v_pk_mul_f32 %s, %s, %s op_sel:[0,0] op_sel_hi:[1,0]" % (PP, P, VS))
        e.i("v_pk_fma_f32 %s, %s, %s, %s" % (L, L, F, P))
        e.i("ds_write_b64 v%d, %s" % (vLdsW, PP))
        e.i("v_pk_fma_f32 %s, %s, %s, %s op_sel:[0,1,0] op_sel_hi:[1,1,1]" % (Z, PP, VS, Z))
        for k in range(G // 2):
            e.i("ds_read_b128 v[%d:%d], v%d offset:%d" % (A + 4 * k, A + 4 * k + 3, vLdsR, 16 * k))
        for sc in range(16):
            e.i("v_pk_mul_f32 %s, %s, %s" % (o(sc), o(sc), F))

    def publish(tag):
        e.i("s_cmp_lt_u32 s%d, s%d" % (sCnt, sTkt))
        e.i("s_cbranch_scc1 L_np%s" % tag)
        e.i("s_mov_b64 exec, 1")
        e.i("v_lshl_add_u32 v%d, v%d, 2, s%d" % (vT3, vT3, sReqC))
        e.i("ds_write_b32 v%d, v%d offset:%d" % (vT2, vT3, TICKOFF))
        e.i("s_mov_b64 exec, -1")
        e.i("s_waitcnt lgkmcnt(0)")
        e.label("L_np%s" % tag)

    def flagload(tag):
        e.i("s_cmp_lg_u32 s%d, s%d" % (sCnt, sFl))
        e.i("s_cbranch_scc1 L_nf%s" % tag)
        e.i("s_mov_b64 exec, 1")
        e.i("buffer_load_dword v%d, v%d, s[%d:%d], 0 offen sc1" % (vFl, vT2, sDBG, sDBG + 3))
        e.i("s_mov_b64 exec, -1")
        e.label("L_nf%s" % tag)

    def request(G, tag):
        e.i("s_lshl_b32 s%d, s%d, 9" % (sKoff, sCur))
        e.i("s_lshl_b32 s%d, s%d, 9" % (sVoff, sCur))
        e.i("s_add_u32 s%d, s%d, s%d" % (sXoff, sKoff, sXadd))
        if G == 8 and FLJ < 0:
            flagload(tag)
        e.i("s_cmp_eq_u32 s%d, 4" % sGn)
        e.i("s_cbranch_scc1 L_nt%s" % tag)
        ticket(tag, False)

    def ticket(tag, check):
        e.i("s_cmp_lt_u32 s%d, s%d" % (sCnt, sTkt))
        e.i("s_cbranch_scc1 L_nt%s" % tag)
        e.i("v_mov_b32 v%d, 1" % vT3)
        e.i("s_mov_b64 exec, 1")
        if check:
            e.i("v_readfirstlane_b32 s%d, v%d" % (sT0, vFl))
            e.i("s_cmp_lg_u32 s%d, 0" % sT0)
            e.i("s_cbranch_scc1 L_fo%s" % tag)
            e.i("v_mov_b32 v%d, 1" % vFl)
            e.i("buffer_atomic_add v%d, v%d, s[%d:%d], 0 offen offset:4 sc0" % (vFl, vT2, sDBG, sDBG + 3))
            e.i("s_waitcnt vmcnt(0)")
            e.i("v_readfirstlane_b32 s%d, v%d" % (sT0, vFl))
            e.i("s_cmp_lg_u32 s%d, 0" % sT0)
            e.i("s_cbranch_scc1 L_fs%s" % tag)
            e.i("s_mov_b64 exec, -1")
            e.i("v_mul_u32_u24 v%d, %d, v%d" % (vT0, CSTR, vLane))
            e.i("s_mov_b32 s%d, %d" % (sT0, CB))
            e.i("buffer_store_dword v%d, v%d, s[%d:%d], s%d offen sc1" % (vT2, vT0, sWS, sWS + 3, sT0))
            e.i("s_mov_b32 s%d, %d" % (sT0, CB + 64 * CSTR))
            e.i("buffer_store_dword v%d, v%d, s[%d:%d], s%d offen sc1" % (vT2, vT0, sWS, sWS + 3, sT0))
            if MBX:
                e.i("s_waitcnt vmcnt(0)")
                e.i("v_lshlrev_b32 v%d, 2, v%d" % (vT0, vLane))
                e.i("s_mov_b32 s%d, %d" % (sT0, MBO))
                e.label("L_fz%s" % tag)
                e.i("buffer_store_dword v%d, v%d, s[%d:%d], s%d offen sc1" % (vT2, vT0, sWS, sWS + 3, sT0))
                e.i("s_add_u32 s%d, s%d, 256" % (sT0, sT0))
                e.i("s_cmp_lt_u32 s%d, %d" % (sT0, MBO + MBXB))
                e.i("s_cbranch_scc1 L_fz%s" % tag)
            e.i("s_waitcnt vmcnt(0)")
            e.i("s_mov_b64 exec, 1")
            e.i("v_mov_b32 v%d, 3" % vFl)
            e.i("buffer_store_dword v%d, v%d, s[%d:%d], 0 offen sc1" % (vFl, vT2, sDBG, sDBG + 3))
            e.i("s_waitcnt vmcnt(0)")
            e.i("s_branch L_fo%s" % tag)
            e.label("L_fs%s" % tag)
            e.i("buffer_load_dword v%d, v%d, s[%d:%d], 0 offen sc1" % (vFl, vT2, sDBG, sDBG + 3))
            e.i("s_waitcnt vmcnt(0)")
            e.i("v_readfirstlane_b32 s%d, v%d" % (sT0, vFl))
            e.i("s_cmp_eq_u32 s%d, 0" % sT0)
            e.i("s_cbranch_scc1 L_fs%s" % tag)
            e.label("L_fo%s" % tag)
            e.i("s_cmp_lg_u32 s%d, %d" % (sCnt, NS - 1))
            e.i("s_cbranch_scc1 L_nd%s" % tag)
            e.i("v_readfirstlane_b32 s%d, v%d" % (sT0, vFl))
            e.i("s_getreg_b32 s%d, hwreg(HW_REG_XCC_ID, 2, 1)" % sT1)
            e.i("s_sub_u32 s%d, s%d, 1" % (sT0, sT0))
            e.i("s_xor_b32 s%d, s%d, s%d" % (sPref, sT0, sT1))
            e.i("s_and_b32 s%d, s%d, 1" % (sPref, sPref))
            e.i("s_and_b32 s%d, s%d, 2" % (sMix2, sT0))
            e.label("L_nd%s" % tag)
        if FAKE in (3, 4):
            if FAKE == 3:
                e.i("s_lshl_b32 s%d, s2, 12" % sT0)
            else:
                e.i("s_lshl_b32 s%d, s%d, 10" % (sT0, sQi))
            e.i("s_add_u32 s%d, s%d, %d" % (sT0, sT0, 12 << 20))
            e.i("buffer_atomic_add v%d, v%d, s[%d:%d], s%d offen sc0" % (vT3, vT2, sWS, sWS + 3, sT0))
        elif FAKE == 5:
            e.i("buffer_load_dword v%d, v%d, s[%d:%d], s%d offen sc1" % (vT3, vT2, sDBG, sDBG + 3, sQi))
        elif FAKE == 6:
            e.i("buffer_atomic_add v%d, v%d, s[%d:%d], s%d offen" % (vT3, vT2, sDBG, sDBG + 3, sQi))
        elif WSC:
            e.i("s_add_u32 s%d, s%d, s%d" % (sReqC, sPref, sMix2))
            e.i("s_mul_i32 s%d, s%d, %d" % (sT0, sPref, CSTR))
            e.i("s_add_u32 s%d, s%d, s%d" % (sT0, sT0, sQi))
            e.i("buffer_atomic_add v%d, v%d, s[%d:%d], s%d offen sc0" % (vT3, vT2, sWS, sWS + 3, sT0))
        else:
            e.i("buffer_atomic_add v%d, v%d, s[%d:%d], s%d offen sc0" % (vT3, vT2, sDBG, sDBG + 3, sQi))
        e.i("s_mov_b64 exec, -1")
        e.label("L_nt%s" % tag)

    def decode(G, q, tag=None, fail=None):
        tag = tag or "%d" % G
        fail = fail or "L_last%s" % tag
        e.i("v_readfirstlane_b32 s%d, v%d" % (sT0, vTk))
        if G == 8:
            e.i("s_add_u32 s%d, s%d, 1" % (sCnt, sCnt))
        e.i("s_and_b32 s%d, s%d, 3" % (sLow, sT0))
        e.i("s_lshr_b32 s%d, s%d, 2" % (sT0, sT0))
        e.i("s_add_u32 s%d, s%d, %d" % (sT0, sT0, 4 * NS))
        if G == 8:
            e.i("s_lshl_b32 s%d, s%d, 2" % (sT1, sCnt))
            e.i("s_add_u32 s%d, s%d, s%d" % (sT1, sT1, sSub))
            e.i("s_cmp_lt_u32 s%d, %d" % (sCnt, NS))
            e.i("s_cselect_b32 s%d, s%d, s%d" % (sT0, sT1, sT0))
            e.i("s_cselect_b32 s%d, s%d, s%d" % (sLow, sFix, sLow))
        e.i("s_and_b32 s%d, s%d, 1" % (sCls, sLow))
        e.i("s_lshl_b32 s%d, s%d, 2" % (sSoff, sT0))
        e.i("s_sub_i32 s%d, s%d, %d" % (sT0, sT0, NB))
        e.i("s_max_i32 s%d, s%d, 0" % (sT0, sT0))
        e.i("s_min_u32 s%d, s%d, 62" % (sT0, sT0))
        e.i("s_add_u32 s%d, s%d, 1" % (sT1, sT0))
        e.i("s_nop 3")
        e.i("v_readlane_b32 s%d, v%d, s%d" % (sD0, vTab, sT0))
        e.i("v_readlane_b32 s%d, v%d, s%d" % (sD1, vTab, sT1))
        e.i("s_sub_u32 s%d, s%d, s%d" % (sGn, sD1, sD0))
        e.i("s_cmp_lt_u32 s%d, %d" % (sSoff, 4 * NB))
        e.i("s_cselect_b32 s%d, s%d, s%d" % (sD0, sSoff, sD0))
        e.i("s_cselect_b32 s%d, 4, s%d" % (sGn, sGn))
        e.i("s_cmp_eq_u32 s%d, 0" % sGn)
        e.i("s_cbranch_scc1 %s" % fail)
        e.i("s_bfe_u32 s%d, s%d, 0x30002" % (sT0, sD0))
        e.i("s_xor_b32 s%d, s%d, s%d" % (sD1, sCls, sHB))
        e.i("s_xor_b32 s%d, s%d, s%d" % (sD1, sD1, sT0))
        e.i("s_and_b32 s%d, s%d, 1" % (sD1, sD1))
        e.i("s_lshl_b32 s%d, s%d, 4" % (sD1, sD1))
        e.i("s_add_u32 s%d, s%d, s%d" % (sD1, sD1, sWoff))
        e.i("s_lshl_b32 s%d, s%d, 8" % (sT1, sCls))
        e.i("s_add_u32 s%d, s%d, s%d" % (sT1, sT1, sW8))
        e.i("s_cmp_ge_u32 s%d, 2" % sLow)
        e.i("s_cselect_b32 s%d, s%d, s%d" % (sD1, sT1, sD1))
        e.i("s_cselect_b32 s%d, 14, 15" % sLow)
        e.i("s_lshl_b32 s%d, 1, s%d" % (sGB, sLow))
        e.i("s_lshl_b32 s%d, s%d, 12" % (sCur, sT0))
        e.i("s_add_u32 s%d, s%d, s%d" % (sCur, sCur, sD1))
        e.i("s_lshr_b32 s%d, s%d, 5" % (sT1, sD0))
        e.i("s_lshl_b32 s%d, s%d, 9" % (sT1, sT1))
        e.i("s_add_u32 s%d, s%d, s%d" % (sCur, sCur, sT1))
        e.i("s_lshr_b32 s%d, s%d, 8" % (sD1, sGB))
        e.i("s_and_b32 s%d, s%d, 3" % (sT1, sD0))
        e.i("s_mul_i32 s%d, s%d, s%d" % (sT1, sT1, sD1))
        e.i("s_add_u32 s%d, s%d, s%d" % (sCur, sCur, sT1))
        e.i("s_lshl_b32 s%d, s%d, 1" % (sT0, sGn))
        e.i("s_sub_u32 s%d, s%d, 1" % (sT0, sT0))
        e.i("v_and_b32 v%d, s%d, v%d" % (vSoffD, sT0, vSoff))
        e.i("v_mad_u32_u24 v%d, v%d, s%d, v%d" % (vSoffD, vSoffD, sD1, vTok2))
        e.i("s_lshl_b32 s%d, s%d, 1" % (sT1, sGB))
        e.i("s_lshl_b32 s%d, s%d, 1" % (sSoff, sCur))
        e.i("s_cmp_eq_u32 s%d, 1" % sGn)
        e.i("s_cselect_b32 s%d, s%d, s%d" % (sX, sV, sK))
        e.i("s_cselect_b32 s%d, s%d, s%d" % (sX + 1, sV + 1, sK + 1))
        e.i("s_cselect_b32 s%d, 0, s%d" % (sXadd, sT1))
        e.i("buffer_load_ushort v%d, v%d, s[%d:%d], s%d offen" % (vVSn, vSoffD, sVS, sVS + 3, sSoff))
        e.i("buffer_load_ushort v%d, v%d, s[%d:%d], s%d offen" % (vVSn1, vSoffD, sVZ, sVZ + 3, sSoff))
        q.append(("G", 0))
        q.append(("G", 1))
        request(G, tag)

    def wait_for(q, j):
        idx = q.index(("L", j))
        n_after = len(q) - idx - 1
        assert n_after <= 63
        e.i("s_waitcnt vmcnt(%d)" % n_after)
        del q[:idx + 1]

    def compute(G, j):
        r = ring(j % R)
        for c in range(4):
            e.i("v_cvt_f32_i32 v%d, v%d" % (r + c, r + c))
        isK = j < 4 * G
        jj = j if isK else j - 4 * G
        g, seg = jj // 4, jj % 4
        for c in range(4):
            pr = "v[%d:%d]" % (r + (c & 2), r + (c & 2) + 1)
            b = c & 1
            sc = seg * 4 + c
            if isK:
                if seg == 0 and c == 0:
                    e.i("v_pk_mul_f32 %s, %s, %s op_sel:[%d,0] op_sel_hi:[%d,1]" % (a(g), pr, qs(sc), b, b))
                else:
                    e.i("v_pk_fma_f32 %s, %s, %s, %s op_sel:[%d,0,0] op_sel_hi:[%d,1,1]" % (a(g), pr, qs(sc), a(g), b, b))
            else:
                e.i("v_pk_fma_f32 %s, %s, %s, %s op_sel:[%d,0,0] op_sel_hi:[%d,1,1]" % (o(sc), pr, a(g), o(sc), b, b))

    def issue(G, q, j, last):
        nj = j + 16
        if nj < 8 * G:
            issue_own(G, nj)
            q.append(("L", nj))
        elif not last:
            issue_next(nj - 8 * G)
            q.append(("N", nj - 8 * G))

    def reduce_k(G, j):
        if j < 4 * G and j % 4 == 3:
            g = j // 4
            if g % 2 == 1:
                stepA(g - 1, g)
            if g % 4 == 3:
                stepQ(g - 3, g - 1, sMask1, "quad_perm:[2,3,0,1]", A + 2 * (g - 3))
            if g == 7:
                stepQ(0, 4, sMask0, "quad_perm:[1,0,3,2]", A)
            if G == 4 and g == 3:
                stepP("quad_perm:[1,0,3,2]")
            if G == 2 and g == 1:
                stepP("quad_perm:[2,3,0,1]")
                stepP("quad_perm:[1,0,3,2]")

    def do_softmax(G):
        e.i("s_waitcnt lgkmcnt(0)")
        if STAMP == 2:
            e.i("s_memrealtime s[96:97]")
        softmax(G)
        e.i("s_waitcnt lgkmcnt(0)")
        if STAMP == 2:
            e.i("s_mov_b32 m0, s98")
            e.i("s_add_u32 s98, s98, 1")
            e.i("s_and_b32 s98, s98, 63")
            e.i("s_and_b32 s96, s96, 0xfffffffc")
            e.i("s_or_b32 s96, s96, %d" % {8: 0, 4: 1, 2: 2}[G])
            e.i("v_writelane_b32 v%d, s96, m0" % vStamp)

    def read_scales():
        e.i("ds_read_u16 v%d, v%d offset:%d" % (vVS, vSL, SCB))
        e.i("ds_read_u16 v%d, v%d offset:%d" % (vVS + 1, vSL, SCB + VZD))

    def barrier(G, j, last):
        e.i("s_barrier")

    def step(G, q, j, last, skip_pre=False):
        if not skip_pre:
            if j % (BAR8 if G == 8 else BAR) == 0 and (not last or LASTBAR):
                barrier(G, j, last)
            if j == (LATE + 24 if (LATE and G == 8) else 8) and G >= 4:
                e.i("ds_read_b32 v%d, v%d offset:%d" % (vTk, vT2, TICKOFF))
            if PLS:
                if (G == 8 and j == 20) or (G == 4 and j == 8):
                    read_scales()
        if j == 4 * G:
            do_softmax(G)
        wait_for(q, j)
        if j == 0:
            if not PLS:
                e.i("v_mov_b32 v%d, v%d" % (vVS, vVSn))
                e.i("v_mov_b32 v%d, v%d" % (vVS + 1, vVSn1))
        if j == (LATE + 16 if (LATE and G == 8) else 0):
            publish("%d" % G)
        if LATE and G == 8 and j == LATE:
            ticket("8l", WSC)
        compute(G, j)
        if G == 8 and j == FLJ:
            assert FLJ + 16 <= LATE
            flagload("8")
        issue(G, q, j, last)
        reduce_k(G, j)

    def dispatch(G):
        order = {8: (4, 2), 4: (2, 4), 2: (2, 4)}[G]
        if G == 2:
            e.i("s_cmp_eq_u32 s%d, 1" % sGn)
            e.i("s_cbranch_scc1 L_body2")
        for gn in order:
            e.i("s_cmp_eq_u32 s%d, %d" % (sGn, gn))
            e.i("s_cbranch_scc1 L_body%d" % (2 * gn))
        e.i("s_branch L_body2")

    def second(tag):
        e.i("s_cmp_lg_u32 s%d, 0" % sSw)
        e.i("s_cbranch_scc1 L_nt%s" % tag)
        e.i("s_xor_b32 s%d, s%d, 1" % (sPref, sCls))
        ticket(tag, False)

    def pretouch(q):
        if not PT:
            return
        assert PLS
        e.i("s_mov_b32 s%d, s%d" % (sK, pout))
        e.i("s_mov_b32 s%d, s%d" % (sK + 1, pout + 1))
        e.i("s_mov_b32 s%d, 8192" % (sK + 2))
        e.i("s_mov_b32 s%d, 0x00020000" % (sK + 3))
        e.i("s_lshl_b32 s%d, s%d, 9" % (sT1, sKVH))
        e.i("buffer_load_dword v%d, v%d, s[%d:%d], s%d offen" % (vVSn, vT2, sK, sK + 3, sT1))
        q.append(("G", 0))
        if PT >= 2:
            e.i("s_mov_b32 s%d, %d" % (sT1, MBO))
            e.i("buffer_load_dword v%d, v%d, s[%d:%d], s%d offen sc1" % (vVSn1, vT2, sWS, sWS + 3, sT1))
            q.append(("G", 1))

    assert LATE in (8, 16)
    lasts = []
    for G in (8, 4):
        e.label("L_body%d" % G)
        q = [("L", j) for j in range(16)]
        JD = 8 * G - 16
        for j in range(JD):
            step(G, q, j, False)
        barrier(G, JD, False)
        e.i("s_waitcnt lgkmcnt(0)")
        ql = list(q)
        decode(G, q)
        for j in range(JD, 8 * G):
            step(G, q, j, False, skip_pre=(j == JD))
        dispatch(G)
        lasts.append((G, ql, JD))
    G = 2
    e.label("L_body2")
    q = [("L", j) for j in range(16)]
    wait_for(q, 0)
    e.i("v_mov_b32 v%d, v%d" % (vVS, vVSn))
    e.i("v_mov_b32 v%d, v%d" % (vVS + 1, vVSn1))
    publish("2")
    e.i("s_barrier")
    e.i("ds_read_b32 v%d, v%d offset:%d" % (vTk, vT2, TICKOFF))
    compute(G, 0)
    e.i("s_waitcnt lgkmcnt(0)")
    ql = list(q)
    decode(G, q)
    issue(G, q, 0, False)
    for j in range(1, 16):
        step(G, q, j, False)
    dispatch(G)
    for (G_, ql_, JD) in lasts:
        e.label("L_last%d" % G_)
        second("s%d" % G_)
        for j in range(JD, 8 * G_):
            step(G_, ql_, j, True, skip_pre=(j == JD))
        e.i("s_branch L_sw")
    e.label("L_last2")
    second("s2")
    for j in range(1, 16):
        step(2, ql, j, True)
    e.label("L_sw")
    e.i("s_cmp_lg_u32 s%d, 0" % sSw)
    e.i("s_cbranch_scc1 L_epi")
    e.i("s_mov_b32 s%d, 1" % sSw)
    e.i("s_waitcnt vmcnt(0)")
    publish("w")
    e.i("s_barrier")
    e.i("ds_read_b32 v%d, v%d offset:%d" % (vTk, vT2, TICKOFF))
    e.i("s_waitcnt lgkmcnt(0)")
    decode(4, [], tag="w", fail="L_epi")
    for i in range(16):
        issue_next(i)
    dispatch(2)
    e.label("L_epi")
    if STAMP:
        e.i("s_memrealtime s[90:91]")
        e.i("s_getreg_b32 s92, hwreg(HW_REG_XCC_ID)")
        e.i("s_getreg_b32 s93, hwreg(HW_REG_HW_ID)")
        e.i("s_waitcnt lgkmcnt(0)")
        e.i("v_mov_b32 v%d, s88" % (A + 8))
        e.i("v_mov_b32 v%d, s90" % (A + 9))
        e.i("v_mov_b32 v%d, s92" % (A + 10))
        e.i("v_mov_b32 v%d, s93" % (A + 11))
        e.i("s_lshl_b32 s%d, s%d, 4" % (sT0, sGW))
        e.i("s_add_u32 s%d, s%d, %d" % (sT0, sT0, 8 << 20))
        e.i("v_mov_b32 v%d, 0" % (A + 12))
        e.i("buffer_store_dwordx4 v[%d:%d], v%d, s[%d:%d], s%d offen" % (A + 8, A + 11, A + 12, sWS, sWS + 3, sT0))
        if STAMP >= 2:
            e.i("s_memtime s[96:97]")
            e.i("s_waitcnt lgkmcnt(0)")
            e.i("v_writelane_b32 v%d, s96, 62" % vStamp)
            e.i("s_lshl_b32 s%d, s%d, 8" % (sT0, sGW))
            e.i("s_add_u32 s%d, s%d, %d" % (sT0, sT0, 9 << 20))
            e.i("v_lshlrev_b32 v%d, 2, v%d" % (A + 13, vLane))
            e.i("buffer_store_dword v%d, v%d, s[%d:%d], s%d offen" % (vStamp, A + 13, sWS, sWS + 3, sT0))
    e.i("v_permlane32_swap_b32 v%d, v%d" % (vL, vL + 1))
    e.i("v_permlane32_swap_b32 v%d, v%d" % (vZ, vZ + 1))
    e.i("v_add_f32 v%d, v%d, v%d" % (vL, vL, vL + 1))
    e.i("v_add_f32 v%d, v%d, v%d" % (vZ, vZ, vZ + 1))
    e.i("v_permlane16_swap_b32 v%d, v%d" % (vL, vZ))
    e.i("v_add_f32 v%d, v%d, v%d" % (vL, vL, vZ))
    for rr in (8, 4, 2, 1):
        e.i("v_add_f32_dpp v%d, v%d, v%d row_ror:%d row_mask:0xf bank_mask:0xf" % (vL, vL, vL, rr))
    e.i("v_readlane_b32 s%d, v%d, 0" % (sL0, vL))
    e.i("v_readlane_b32 s%d, v%d, 16" % (sZ0, vL))
    e.i("v_readlane_b32 s%d, v%d, 32" % (sL1, vL))
    e.i("v_readlane_b32 s%d, v%d, 48" % (sZ1, vL))
    for sc in range(16):
        e.i("v_permlane32_swap_b32 v%d, v%d" % (O + 2 * sc, O + 2 * sc + 1))
    for sc in range(16):
        e.i("v_add_f32 v%d, v%d, v%d" % (O + 2 * sc, O + 2 * sc, O + 2 * sc + 1))
    for sc in range(8):
        e.i("v_permlane16_swap_b32 v%d, v%d" % (O + 2 * sc, O + 2 * (sc + 8)))
    for sc in range(8):
        e.i("v_add_f32 v%d, v%d, v%d" % (O + 2 * sc, O + 2 * sc, O + 2 * (sc + 8)))
    for sc in range(4):
        e.i("v_add_f32_dpp v%d, v%d, v%d row_ror:8 row_mask:0xf bank_mask:0x3" % (A + sc, O + 2 * sc, O + 2 * sc))
    for sc in range(4):
        e.i("v_add_f32_dpp v%d, v%d, v%d row_ror:8 row_mask:0xf bank_mask:0xc" % (A + sc, O + 2 * (sc + 4), O + 2 * (sc + 4)))
    e.i("s_mov_b32 s%d, 0" % sEx)
    e.i("s_mov_b32 s%d, -1" % (sEx + 1))
    e.i("v_mov_b32 v%d, s%d" % (vT0, sZ0))
    e.i("v_mov_b32 v%d, s%d" % (vT1, sZ1))
    e.i("v_cndmask_b32 v%d, v%d, v%d, s[%d:%d]" % (vT0, vT0, vT1, sEx, sEx + 1))
    for sc in range(4):
        e.i("v_sub_f32 v%d, v%d, v%d" % (A + sc, A + sc, vT0))
    e.i("v_mov_b32 v%d, s%d" % (vT0, sC0))
    e.i("v_mov_b32 v%d, s%d" % (vT1, sC1))
    e.i("v_cndmask_b32 v%d, v%d, v%d, s[%d:%d]" % (vT0, vT0, vT1, sEx, sEx + 1))
    e.i("v_sub_f32 v%d, v%d, v%d" % (vP, vM, vT0))
    e.i("v_mov_b32 v%d, s%d" % (vT0, sL0))
    e.i("v_mov_b32 v%d, s%d" % (vT1, sL1))
    e.i("v_cndmask_b32 v%d, v%d, v%d, s[%d:%d]" % (vP + 1, vT0, vT1, sEx, sEx + 1))
    OB = WPW * 512
    MB = OB + WPW * 1024
    LDS = MB + WPW * 16 + 32 + 2 * VZD
    e.i("s_lshl_b32 s%d, s%d, 10" % (sT0, sWave))
    e.i("v_lshlrev_b32 v%d, 4, v%d" % (vT2, vLane))
    e.i("v_add_u32 v%d, s%d, v%d" % (vT0, sT0, vT2))
    e.i("ds_write_b128 v%d, v[%d:%d] offset:%d" % (vT0, A, A + 3, OB))
    e.i("s_lshl_b32 s%d, s%d, 4" % (sT0, sWave))
    e.i("v_lshrrev_b32 v%d, 5, v%d" % (vT3, vLane))
    e.i("v_lshlrev_b32 v%d, 3, v%d" % (vT3, vT3))
    e.i("v_add_u32 v%d, s%d, v%d" % (vT1, sT0, vT3))
    e.i("ds_write_b64 v%d, v[%d:%d] offset:%d" % (vT1, vP, vP + 1, MB))
    if MBX:
        e.i("v_lshrrev_b32 v%d, 5, v%d" % (vPP, vLane))
        e.i("s_lshl_b32 s%d, s%d, 1" % (sT0, sKVH))
        e.i("v_add_u32 v%d, s%d, v%d" % (vPP, sT0, vPP))
        e.i("v_and_b32 v%d, 31, v%d" % (vPP + 1, vLane))
        e.i("v_lshlrev_b32 v%d, 4, v%d" % (vPP + 1, vPP + 1))
        e.i("v_lshl_add_u32 v%d, v%d, 13, v%d" % (vPP + 1, vPP, vPP + 1))
        e.i("v_and_b32 v%d, 15, v%d" % (vVS, vLane))
        e.i("v_lshlrev_b32 v%d, 3, v%d" % (vVS, vVS))
        e.i("v_lshl_add_u32 v%d, v%d, 7, v%d" % (vPP, vPP, vVS))
        e.i("v_lshlrev_b32 v%d, 3, v%d" % (vVS, vLane))
        e.i("s_mov_b32 s%d, s%d" % (sK, pout))
        e.i("s_mov_b32 s%d, s%d" % (sK + 1, pout + 1))
        e.i("s_mov_b32 s%d, 8192" % (sK + 2))
        e.i("s_mov_b32 s%d, 0x00020000" % (sK + 3))
        e.i("s_mov_b32 s%d, %d" % (sEx, MBO + 4096))
        e.i("s_mov_b32 s%d, %d" % (sL0, MBO))
        e.i("s_lshl_b32 s%d, s%d, 9" % (sEx + 1, sKVH))
    e.i("s_waitcnt lgkmcnt(0)")
    if MBX:
        e.i("v_mov_b32 v%d, v%d" % (vP + 1, vPP + 1))
        e.i("v_mov_b32 v%d, 1" % vP)
        e.i("v_mov_b32 v%d, 0" % vM)
    if True:
        e.i("v_mov_b32 v%d, 0" % vT0)
        e.i("v_mov_b32 v%d, 1" % vT1)
        e.i("s_mov_b64 exec, 1")
        e.i("ds_add_rtn_u32 v%d, v%d, v%d offset:%d" % (vT1, vT0, vT1, CNTOFF))
        e.i("s_mov_b64 exec, -1")
        e.i("s_waitcnt lgkmcnt(0)")
        e.i("v_readfirstlane_b32 s%d, v%d" % (sT0, vT1))
        e.i("s_cmp_lg_u32 s%d, %d" % (sT0, WPW - 1))
        e.i("s_cbranch_scc1 L_done1")
    assert WPW <= 16
    for w in range(WPW):
        e.i("ds_read_b64 v[%d:%d], v%d offset:%d" % (QS + 2 * w, QS + 2 * w + 1, vT3, MB + 16 * w))
    OT = O
    assert O + 4 * WPW <= NV
    for w in range(WPW):
        e.i("ds_read_b128 v[%d:%d], v%d offset:%d" % (OT + 4 * w, OT + 4 * w + 3, vT2, OB + 1024 * w))
    e.i("s_waitcnt lgkmcnt(0)")
    e.i("v_mov_b32 v%d, v%d" % (vT0, QS))
    for w in range(1, WPW):
        e.i("v_max_f32 v%d, v%d, v%d" % (vT0, vT0, QS + 2 * w))
    for w in range(WPW):
        e.i("v_sub_f32 v%d, v%d, v%d" % (QS + 2 * w, QS + 2 * w, vT0))
    for w in range(WPW):
        e.i("v_exp_f32 v%d, v%d" % (QS + 2 * w, QS + 2 * w))
    e.i("v_mul_f32 v%d, v%d, v%d" % (vT1, QS, QS + 1))
    for w in range(1, WPW):
        e.i("v_fmac_f32 v%d, v%d, v%d" % (vT1, QS + 2 * w, QS + 2 * w + 1))
    for c in range(4):
        e.i("v_mul_f32 v%d, v%d, v%d" % (OT + c, OT + c, QS))
    for w in range(1, WPW):
        for c in range(4):
            e.i("v_fmac_f32 v%d, v%d, v%d" % (OT + c, OT + 4 * w + c, QS + 2 * w))
    MLB = 32 * NSPLIT * 512
    e.i("s_lshl_b32 s%d, s%d, %d" % (sT0, sKVH, LOG_NSPLIT + 1))
    e.i("s_add_u32 s%d, s%d, s%d" % (sT0, sT0, sSplit))
    e.i("v_lshrrev_b32 v%d, 5, v%d" % (vT3, vLane))
    e.i("v_lshlrev_b32 v%d, %d, v%d" % (vT3, LOG_NSPLIT, vT3))
    e.i("v_add_u32 v%d, s%d, v%d" % (vT3, sT0, vT3))
    e.i("v_and_b32 v%d, 31, v%d" % (vT2, vLane))
    e.i("v_lshlrev_b32 v%d, 4, v%d" % (vT2, vT2))
    e.i("v_lshl_add_u32 v%d, v%d, 9, v%d" % (vT2, vT3, vT2))
    scf = " sc1" if FUSE else ""
    if MBX:
        for r_ in (OT, OT + 1, OT + 2, OT + 3, vT0, vT1):
            e.i("v_max_u32 v%d, 1, v%d" % (r_, r_))
    if STAMP and FUSE:
        e.i("s_memrealtime s[12:13]")
    e.i("buffer_store_dwordx4 v[%d:%d], v%d, s[%d:%d], %s offen%s" % (OT, OT + 3, vT2, sWS, sWS + 3, ("s%d" % sL0) if MBX else "0", scf))
    e.i("v_lshlrev_b32 v%d, 3, v%d" % (vT3, vT3))
    e.i("s_mov_b32 s%d, %d" % (sT1, MLB + (MBO if MBX else 0)))
    e.i("buffer_store_dwordx2 v[%d:%d], v%d, s[%d:%d], s%d offen%s" % (vT0, vT1, vT3, sWS, sWS + 3, sT1, scf))
    if MBX:
        vA, vB, vC = vP, vP + 1, vPP
        vW, vS, vZm = vL, vL + 1, vZ
        e.i("s_mul_i32 s%d, s%d, %d" % (sT0, sKVH, CSTR))
        e.i("s_add_u32 s%d, s%d, %d" % (sT0, sT0, CB + 64 * CSTR))
        e.i("s_mov_b64 exec, 1")
        e.i("buffer_atomic_add v%d, v%d, s[%d:%d], s%d offen sc0" % (vA, vM, sWS, sWS + 3, sT0))
        e.i("s_mov_b64 exec, -1")

        def poll():
            e.i("buffer_load_dwordx2 v[%d:%d], v%d, s[%d:%d], s%d offen sc1" % (QS, QS + 1, vC, sWS, sWS + 3, sT1))
            for t in range(NSPLIT):
                e.i("buffer_load_dwordx4 v[%d:%d], v%d, s[%d:%d], %s offen offset:%d sc1" % (RING + 4 * t, RING + 4 * t + 3, vB, sWS, sWS + 3, "s%d" % (sL0 if t < 8 else sEx), (t % 8) * 512))

        def stamp_a():
            if STAMP:
                e.i("s_memrealtime s[16:17]")
                e.i("s_waitcnt lgkmcnt(0)")
                e.i("v_mov_b32 v%d, s12" % (A + 8))
                e.i("v_mov_b32 v%d, s12" % (A + 9))
                e.i("v_mov_b32 v%d, s16" % (A + 10))
                e.i("v_mov_b32 v%d, 0" % (A + 11))
                e.i("s_lshl_b32 s18, s2, 4")
                e.i("s_add_u32 s18, s18, %d" % (10 << 20))
                e.i("v_mov_b32 v%d, 0" % (A + 12))
                e.i("s_mov_b32 s19, 0")

        def stamp_b():
            if STAMP:
                e.i("buffer_store_dwordx4 v[%d:%d], v%d, s[%d:%d], s18 offen" % (A + 8, A + 11, A + 12, sWS, sWS + 3))

        if SPEC < 8:
            if SPEC > 0:
                e.i("s_cmp_lt_u32 s%d, %d" % (sXadd, len(GS) + SPEC))
                e.i("s_cbranch_scc1 L_nospec")
            poll()
            e.i("s_waitcnt vmcnt(%d)" % (NSPLIT + 1))
            stamp_a()
            e.i("v_readfirstlane_b32 s%d, v%d" % (sT0, vA))
            e.i("s_cmp_eq_u32 s%d, %d" % (sT0, NSPLIT - 1))
            e.i("s_cbranch_scc1 L_check")
            stamp_b()
            e.i("s_endpgm")
        if SPEC > 0:
            e.label("L_nospec")
            e.i("s_waitcnt vmcnt(0)")
            stamp_a()
            e.i("v_readfirstlane_b32 s%d, v%d" % (sT0, vA))
            e.i("s_cmp_eq_u32 s%d, %d" % (sT0, NSPLIT - 1))
            e.i("s_cbranch_scc1 L_poll")
            stamp_b()
            e.i("s_endpgm")
        e.label("L_poll")
        if STAMP:
            e.i("s_add_u32 s19, s19, 1")
        poll()
        e.label("L_check")
        e.i("s_waitcnt vmcnt(%d)" % NSPLIT)
        e.i("v_max_f32_dpp v%d, v%d, v%d row_ror:8 row_mask:0xf bank_mask:0xf" % (vS, QS, QS))
        e.i("v_min_u32 v%d, v%d, v%d" % (vZm, QS, QS + 1))
        for rr in (4, 2, 1):
            e.i("v_max_f32_dpp v%d, v%d, v%d row_ror:%d row_mask:0xf bank_mask:0xf" % (vS, vS, vS, rr))
        e.i("v_sub_f32 v%d, v%d, v%d" % (vW, QS, vS))
        e.i("v_exp_f32 v%d, v%d" % (vW, vW))
        e.i("v_mul_f32 v%d, v%d, v%d" % (vS, vW, QS + 1))
        for rr in (8, 4, 2, 1):
            e.i("v_add_f32_dpp v%d, v%d, v%d row_ror:%d row_mask:0xf bank_mask:0xf" % (vS, vS, vS, rr))
        e.i("v_rcp_f32 v%d, v%d" % (vS, vS))
        e.i("v_mul_f32 v%d, v%d, v%d" % (vW, vW, vS))
        for t in range(NSPLIT):
            if t % 4 == 0:
                e.i("s_waitcnt vmcnt(%d)" % (NSPLIT - 4 - t))
            r = RING + 4 * t
            e.i("v_min3_u32 v%d, v%d, v%d, v%d" % (vZm, vZm, r, r + 1))
            e.i("v_min3_u32 v%d, v%d, v%d, v%d" % (vZm, vZm, r + 2, r + 3))
            for c in range(4):
                e.i("v_%s_f32_dpp v%d, v%d, v%d row_newbcast:%d row_mask:0xf bank_mask:0xf" % ("mul" if t == 0 else "fmac", OT + c, vW, r + c, t))
        e.i("v_cmp_eq_u32 vcc, 0, v%d" % vZm)
        e.i("v_cvt_pk_bf16_f32 v%d, v%d, v%d" % (OT, OT, OT + 1))
        e.i("v_cvt_pk_bf16_f32 v%d, v%d, v%d" % (OT + 1, OT + 2, OT + 3))
        e.i("s_nop 2")
        e.i("s_cbranch_vccnz L_poll")
        e.i("buffer_store_dwordx2 v[%d:%d], v%d, s[%d:%d], s%d offen" % (OT, OT + 1, vVS, sK, sK + 3, sEx + 1))
        if STAMP:
            e.i("s_memrealtime s[16:17]")
            e.i("s_waitcnt lgkmcnt(0)")
            e.i("v_mov_b32 v%d, s16" % (A + 11))
            e.i("s_mul_i32 s19, s19, 100")
            e.i("v_add_u32 v%d, s19, v%d" % (A + 9, A + 9))
            stamp_b()
    elif FUSE:
        pass
        vA, vB, vC = vP, vP + 1, vPP
        e.i("s_lshl_b32 s%d, s%d, 9" % (sT0, sSplit))
        e.i("v_subrev_u32 v%d, s%d, v%d" % (vB, sT0, vT2))
        e.i("s_lshl_b32 s%d, s%d, 3" % (sT0, sSplit))
        e.i("v_subrev_u32 v%d, s%d, v%d" % (vC, sT0, vT3))
        if WSC:
            e.i("s_mul_i32 s%d, s%d, %d" % (sT0, sKVH, CSTR))
            e.i("s_add_u32 s%d, s%d, %d" % (sT0, sT0, CB + 64 * CSTR))
        else:
            e.i("s_lshl_b32 s%d, s%d, 2" % (sT0, sKVH))
            e.i("s_add_u32 s%d, s%d, 128" % (sT0, sT0))
        e.i("v_mov_b32 v%d, 1" % vA)
        e.i("v_mov_b32 v%d, 0" % vM)
        e.i("s_waitcnt vmcnt(0)")
        if STAMP:
            e.i("s_memrealtime s[14:15]")
        e.i("s_mov_b64 exec, 1")
        sCT = sWS if WSC else sDBG
        e.i("buffer_atomic_add v%d, v%d, s[%d:%d], s%d offen sc0" % (vA, vM, sCT, sCT + 3, sT0))
        e.i("s_mov_b64 exec, -1")
        e.i("s_waitcnt vmcnt(0)")
        if STAMP:
            e.i("s_memrealtime s[16:17]")
            e.i("s_waitcnt lgkmcnt(0)")
            e.i("v_mov_b32 v%d, s12" % (A + 8))
            e.i("v_mov_b32 v%d, s14" % (A + 9))
            e.i("v_mov_b32 v%d, s16" % (A + 10))
            e.i("v_mov_b32 v%d, 0" % (A + 11))
            e.i("s_lshl_b32 s18, s2, 4")
            e.i("s_add_u32 s18, s18, %d" % (10 << 20))
            e.i("v_mov_b32 v%d, 0" % (A + 12))
            e.i("buffer_store_dwordx4 v[%d:%d], v%d, s[%d:%d], s18 offen" % (A + 8, A + 11, A + 12, sWS, sWS + 3))
        e.i("v_readfirstlane_b32 s%d, v%d" % (sT0, vA))
        e.i("s_cmp_lg_u32 s%d, %d" % (sT0, NSPLIT - 1))
        e.i("s_cbranch_scc1 L_done1")
        for t in range(NSPLIT):
            e.i("buffer_load_dwordx2 v[%d:%d], v%d, s[%d:%d], s%d offen offset:%d sc1" % (QS + 2 * t, QS + 2 * t + 1, vC, sWS, sWS + 3, sT1, 8 * t))
        e.i("s_mov_b32 s%d, 4096" % sT0)
        for t in range(NSPLIT):
            e.i("buffer_load_dwordx4 v[%d:%d], v%d, s[%d:%d], %s offen offset:%d sc1" % (RING + 4 * t, RING + 4 * t + 3, vB, sWS, sWS + 3, "0" if t < 8 else "s%d" % sT0, (t % 8) * 512))
        e.i("s_mov_b32 s%d, s%d" % (sK, pout))
        e.i("s_mov_b32 s%d, s%d" % (sK + 1, pout + 1))
        e.i("s_mov_b32 s%d, 8192" % (sK + 2))
        e.i("s_mov_b32 s%d, 0x00020000" % (sK + 3))
        e.i("s_lshl_b32 s%d, s%d, 9" % (sT0, sKVH))
        e.i("v_lshlrev_b32 v%d, 3, v%d" % (vT2, vLane))
        e.i("s_waitcnt vmcnt(%d)" % NSPLIT)
        e.i("v_mov_b32 v%d, v%d" % (vT0, QS))
        for w in range(1, NSPLIT):
            e.i("v_max_f32 v%d, v%d, v%d" % (vT0, vT0, QS + 2 * w))
        for w in range(NSPLIT):
            e.i("v_sub_f32 v%d, v%d, v%d" % (QS + 2 * w, QS + 2 * w, vT0))
        for w in range(NSPLIT):
            e.i("v_exp_f32 v%d, v%d" % (QS + 2 * w, QS + 2 * w))
        e.i("v_mul_f32 v%d, v%d, v%d" % (vT1, QS, QS + 1))
        for w in range(1, NSPLIT):
            e.i("v_fmac_f32 v%d, v%d, v%d" % (vT1, QS + 2 * w, QS + 2 * w + 1))
        e.i("v_rcp_f32 v%d, v%d" % (vT1, vT1))
        e.i("s_waitcnt vmcnt(0)")
        for c in range(4):
            e.i("v_mul_f32 v%d, v%d, v%d" % (RING + c, RING + c, QS))
        for w in range(1, NSPLIT):
            for c in range(4):
                e.i("v_fmac_f32 v%d, v%d, v%d" % (RING + c, RING + 4 * w + c, QS + 2 * w))
        for c in range(4):
            e.i("v_mul_f32 v%d, v%d, v%d" % (RING + c, RING + c, vT1))
        e.i("v_cvt_pk_bf16_f32 v%d, v%d, v%d" % (RING, RING, RING + 1))
        e.i("v_cvt_pk_bf16_f32 v%d, v%d, v%d" % (RING + 1, RING + 2, RING + 3))
        e.i("buffer_store_dwordx2 v[%d:%d], v%d, s[%d:%d], s%d offen" % (RING, RING + 1, vT2, sK, sK + 3, sT0))
        if STAMP:
            e.i("s_memrealtime s[16:17]")
            e.i("s_waitcnt lgkmcnt(0)")
            e.i("v_mov_b32 v%d, s16" % (A + 8))
            e.i("v_mov_b32 v%d, 0" % (A + 12))
            e.i("buffer_store_dword v%d, v%d, s[%d:%d], s18 offen offset:12" % (A + 8, A + 12, sWS, sWS + 3))
    e.raw("L_done1:")
    e.i("s_endpgm")
    if WSC:
        e.label("L_init")
        e.i("s_cmp_lg_u32 s2, %d" % (NWG if WSC == 1 else 100000))
        e.i("s_cbranch_scc1 L_done1")
        e.i("s_load_dwordx4 s[60:63], s[0:1], 8")
        e.i("s_load_dwordx4 s[%d:%d], s[0:1], 64" % (sPtr + 16, sPtr + 19))
        e.i("v_lshrrev_b32 v6, 6, v0")
        e.i("v_mul_u32_u24 v2, %d, v0" % CSTR)
        e.i("v_readfirstlane_b32 s%d, v6" % sWave)
        e.i("v_lshlrev_b32 v6, 2, v6")
        e.i("v_mov_b32 v3, 0")
        e.i("v_mov_b32 v5, 1")
        for srd, n in ((sWS, 1 << 24), (sDBG, 256), (sK, 1 << 29)):
            e.i("s_mov_b32 s%d, %d" % (srd + 2, n))
            e.i("s_mov_b32 s%d, 0x00020000" % (srd + 3))
        e.i("s_mul_i32 s21, s%d, %d" % (sWave, 3 << 24))
        e.i("s_add_u32 s21, s21, %d" % ((2 << 24) + (2 << 21) + (7 << 18)))
        e.i("s_mov_b32 s20, 0")
        e.i("s_mov_b32 s22, 1")
        e.i("s_waitcnt lgkmcnt(0)")
        for srd, p_ in ((sWS, pws), (sDBG, pdbg)):
            e.i("s_mov_b32 s%d, s%d" % (srd, p_))
            e.i("s_mov_b32 s%d, s%d" % (srd + 1, p_ + 1))
        e.i("s_cmp_lt_u32 s%d, 2" % sWave)
        e.i("s_cselect_b32 s%d, s60, s62" % sK)
        e.i("s_cselect_b32 s%d, s61, s63" % (sK + 1))
        e.i("s_buffer_load_dword s40, s[%d:%d], s21 offset:%d" % (sK, sK + 3, 63 * 128))
        e.i("s_cmp_lg_u32 s%d, 0" % sWave)
        e.i("s_cbranch_scc1 L_pr")
        e.i("s_mov_b64 exec, 1")
        e.i("buffer_atomic_add v5, v3, s[%d:%d], 0 offen offset:4 sc0" % (sDBG, sDBG + 3))
        e.i("s_mov_b64 exec, -1")
        e.label("L_pr")
        for i in range(NP):
            if i == 2:
                e.i("s_cmp_lg_u32 s%d, 0" % sWave)
                e.i("s_cbranch_scc1 L_pr2")
                e.i("s_waitcnt vmcnt(0)")
                e.i("v_readfirstlane_b32 s22, v5")
                e.i("s_cmp_lg_u32 s22, 0")
                e.i("s_cbranch_scc1 L_pr2")
                e.i("s_mov_b32 s%d, %d" % (sT1, CB))
                e.i("buffer_store_dword v3, v2, s[%d:%d], s%d offen sc1" % (sWS, sWS + 3, sT1))
                e.i("s_mov_b32 s%d, %d" % (sT1, CB + 64 * CSTR))
                e.i("buffer_store_dword v3, v2, s[%d:%d], s%d offen sc1" % (sWS, sWS + 3, sT1))
                e.label("L_pr2")
            for cc in range(2):
                c = cc ^ (i & 1)
                p_ = i % 16
                l_ = ((i >> 4) * 4 + p_ * 37) % 64
                e.i("s_waitcnt lgkmcnt(0)")
                e.i("s_memtime s[26:27]")
                e.i("s_waitcnt lgkmcnt(0)")
                e.i("s_buffer_load_dword s40, s[%d:%d], s21 offset:%d" % (sK, sK + 3, (p_ << 14) + (c << 13) + l_ * 128))
                e.i("s_waitcnt lgkmcnt(0)")
                e.i("s_memtime s[28:29]")
                e.i("s_waitcnt lgkmcnt(0)")
                e.i("s_sub_u32 s30, s28, s26")
                e.i("s_min_u32 s30, s30, %d" % CLIP)
                e.i("%s s20, s20, s30" % ("s_sub_i32" if c else "s_add_i32"))
        e.i("v_mov_b32 v7, s20")
        e.i("ds_write_b32 v6, v7")
        e.i("s_waitcnt lgkmcnt(0)")
        e.i("s_barrier")
        e.i("s_cmp_lg_u32 s22, 0")
        e.i("s_cbranch_scc1 L_done1")
        e.i("ds_read_b128 v[8:11], v3")
        e.i("s_getreg_b32 s23, hwreg(HW_REG_XCC_ID, 2, 1)")
        e.i("s_waitcnt lgkmcnt(0)")
        e.i("v_add_u32 v8, v8, v9")
        e.i("v_add_u32 v10, v10, v11")
        e.i("v_readfirstlane_b32 s24, v8")
        e.i("v_readfirstlane_b32 s25, v10")
        e.i("s_cmp_gt_i32 s24, 0")
        e.i("s_cselect_b32 s24, 1, 0")
        e.i("s_cmp_gt_i32 s25, 0")
        e.i("s_cselect_b32 s25, 1, 0")
        e.i("s_xor_b32 s23, s23, s24")
        e.i("s_cmp_eq_u32 s24, s25")
        e.i("s_cselect_b32 s23, s23, 2")
        if FORCE >= 0:
            e.i("s_mov_b32 s23, %d" % FORCE)
        e.i("s_add_u32 s23, s23, 1")
        e.i("v_mov_b32 v4, s23")
        e.i("s_waitcnt vmcnt(0)")
        e.i("s_mov_b64 exec, 1")
        e.i("buffer_store_dword v4, v3, s[%d:%d], 0 offen sc1" % (sDBG, sDBG + 3))
        e.i("s_endpgm")
    k1 = e.text()


    hdr = open("cdna_kernels/%s.s.ref" % NAME).read().split("; Override launch geometry")[0]
    out = hdr
    if not LIST:
        out += "; @launch grid=(%d,1,1) block=(%d,1,1) lds=%d\n" % (NWG + (1 if WSC else 0), WPW * 64, LDS)
    else:
        out += "; @launch kernel=%s_kernel grid=(%d,1,1) block=(%d,1,1) lds=%d\n" % (NAME, NWG + (1 if WSC else 0), WPW * 64, LDS)
    out += '.amdgcn_target "amdgcn-amd-amdhsa--gfx950"\n.text\n'
    out += ".globl %s_kernel\n.p2align 8\n.type %s_kernel,@function\n" % (NAME, NAME)
    out += k1
    out += '.section .rodata,"a"\n'
    out += (".p2align 6\n.amdhsa_kernel %s\n  .amdhsa_next_free_vgpr %d\n  .amdhsa_next_free_sgpr %d\n"
            "  .amdhsa_accum_offset %d\n  .amdhsa_group_segment_fixed_size 0\n  .amdhsa_kernarg_size 80\n"
            "  .amdhsa_user_sgpr_count 2\n  .amdhsa_user_sgpr_kernarg_segment_ptr 1\n"
            "  .amdhsa_system_sgpr_workgroup_id_x 1\n.end_amdhsa_kernel\n") % (NAME + "_kernel", VG, 100, (VG + 3) // 4 * 4)
    mv = max([int(x) for x in re.findall(r"\bv(\d+)\b", k1)] + [int(x) for x in re.findall(r"v\[\d+:(\d+)\]", k1)])
    ms = max([int(x) for x in re.findall(r"\bs(\d+)\b", k1)] + [int(x) for x in re.findall(r"s\[\d+:(\d+)\]", k1)])
    assert mv < VG <= 256 and ms < 100, (mv, VG, ms)
    return out


def parse_gs(s):
    out = []
    for part in s.split(","):
        if "x" in part:
            v, n = part.split("x")
            out += [int(v)] * int(n)
        else:
            out.append(int(part))
    return out


if __name__ == "__main__":
    ap = argparse.ArgumentParser()
    ap.add_argument("--gs", default="4x58,2x4,1x16")
    ap.add_argument("--ns", type=int, default=3)
    ap.add_argument("--stamp", type=int, default=0)
    ap.add_argument("--wsc", type=int, default=1)
    ap.add_argument("--late", type=int, default=16)
    ap.add_argument("--bar8", type=int, default=8)
    ap.add_argument("--thr", type=int, default=1400)
    ap.add_argument("--inv", type=int, default=0)
    ap.add_argument("--numa", type=int, default=1)
    ap.add_argument("--skip", type=int, default=16)
    ap.add_argument("--np", type=int, default=10)
    ap.add_argument("--clip", type=int, default=3000)
    ap.add_argument("--force", type=int, default=-1)
    ap.add_argument("--flj", type=int, default=0)
    ap.add_argument("-o", required=True)
    a_ = ap.parse_args()
    s = gen(GS=parse_gs(a_.gs), NS=a_.ns, STAMP=a_.stamp, WSC=a_.wsc, LATE=a_.late, BAR8=a_.bar8, THR=a_.thr, INV=a_.inv, NUMA=a_.numa, SKIP=a_.skip, NP=a_.np, CLIP=a_.clip, FORCE=a_.force, FLJ=a_.flj)
    open(a_.o, "w").write(s)
    print("wrote", a_.o, len(s), "bytes")
```

```python
import re
import sys
import struct
import argparse

NAME = "standalone__kv_cache_quant_int4_int2_kv_with_per_channel_or_per_token_scales__decode"


def f2u(x):
    return struct.unpack("<I", struct.pack("<f", x))[0]


REG_RE = re.compile(r"\b([vs])(\d+)\b|\b([vs])\[(\d+):(\d+)\]|\b(vcc)\b")


def regs_of(op):
    out = set()
    for m in REG_RE.finditer(op):
        if m.group(1):
            out.add((m.group(1), int(m.group(2))))
        elif m.group(3):
            for r in range(int(m.group(4)), int(m.group(5)) + 1):
                out.add((m.group(3), r))
        else:
            out.add(("vcc", 0))
    return out


TRANS = ("v_exp_f32", "v_log_f32", "v_rcp_f32", "v_rsq_f32", "v_sqrt_f32")


class Emit:
    def __init__(self):
        self.lines = []
        self.hist = []

    def raw(self, s):
        self.lines.append(s)

    def label(self, s):
        self.i("s_nop 4")
        self.lines.append(s + ":")
        self.hist = []

    def comment(self, s):
        self.lines.append("    ; " + s)

    def i(self, text):
        text = text.strip()
        mn = text.split()[0]
        rest = text[len(mn):].strip()
        ops = [o.strip() for o in rest.split(",")] if rest else []
        clean = []
        for o in ops:
            clean.append(o.split()[0] if o.split() else o)
        ops = clean
        is_valu = mn.startswith("v_")
        is_vmem = mn.startswith("buffer_") or mn.startswith("global_")
        is_dpp = "_dpp" in mn
        is_perm = mn.startswith("v_permlane")
        is_rl = mn.startswith("v_readlane") or mn.startswith("v_readfirstlane")
        writes, reads = set(), set()
        if is_valu:
            if is_perm:
                writes = regs_of(ops[0]) | regs_of(ops[1])
                reads = set(writes)
            else:
                writes = regs_of(ops[0])
                for o in ops[1:]:
                    reads |= regs_of(o)
                if "fmac" in mn or is_dpp:
                    reads |= regs_of(ops[0])
                if mn.startswith("v_cndmask") and len(ops) == 3:
                    reads.add(("vcc", 0))
        elif is_vmem:
            for o in ops:
                reads |= regs_of(o)
        elif mn.startswith("ds_"):
            for o in ops:
                reads |= regs_of(o)
        else:
            for o in ops:
                reads |= regs_of(o)
        need = 0
        for dist, h in enumerate(reversed(self.hist)):
            req = 0
            if h["valu"]:
                vw = {r for r in h["writes"] if r[0] == "v"}
                sw = {r for r in h["writes"] if r[0] in ("s", "vcc")}
                if (is_dpp or is_perm) and (vw & reads):
                    req = max(req, 2)
                if is_rl and (vw & reads):
                    req = max(req, 1)
                if is_valu and (sw & reads):
                    req = max(req, 4 if is_rl else 2)
                if is_vmem and (sw & reads):
                    req = max(req, 5)
                if (not is_valu) and (not is_vmem) and (sw & reads):
                    req = max(req, 4)
                if h["trans"] and is_valu and (vw & reads):
                    req = max(req, 1)
            if h["wide_store"] and is_valu and (h["reads"] & writes):
                req = max(req, 2)
            need = max(need, req - h["after"])
        if need > 0:
            self._push("s_nop %d" % (need - 1), need, dict(valu=False, writes=set(), reads=set(), trans=False, wide_store=False))
        wide = is_vmem and "store" in mn and ("x4" in mn or "x3" in mn)
        self._push(text, 1, dict(valu=is_valu, writes=writes, reads=reads, trans=mn.startswith(TRANS), wide_store=wide))

    def _push(self, text, states, info):
        if text.startswith("s_nop"):
            states = int(text.split()[1]) + 1
        for h in self.hist:
            h["after"] += states
        info["after"] = 0
        self.hist.append(info)
        self.hist = [h for h in self.hist if h["after"] < 8]
        self.lines.append("    " + text)

    def text(self):
        return "\n".join(self.lines) + "\n"


def gen(BAR=8, GS=None, NS=3, STAMP=0, LIST=1, WSC=1, CSTR=4096, LATE=16, NTF=' nt', BAR8=8, THR=1400, INV=0, NUMA=1, SKIP=16, NP=10, CLIP=3000, FORCE=-1, FLJ=-1, FIXR=0):
    EXACT = 1; LASTBAR = 1; MAPD = 1; FAKE = 0; FROT = 0; SPLIT8 = 1; GOFF = 0; PLS = 0; MBX = 0; SPEC = 0; MBR = 0; PT = 0; HLP = 0
    R = 16
    WPW = 4
    NWG = 256
    NSPLIT = 16
    LOG_WPW = 2
    LOG_NSPLIT = 4
    CSCALE = (128.0 ** -0.5) * 1.4426950408889634
    ntf = NTF
    assert BAR == 8 and (BAR8 in (2, 4, 8) or (BAR8 == 16 and LATE == 8))
    D0 = 16

    e = Emit()
    vLoff, vSoff, vLdsW, vLdsR = 0, 1, 2, 3
    vM = 4
    vT0, vT1, vT2 = 6, 7, 5
    vL = 8
    vZ = 10
    vVS = 12
    vP = 14
    vPP = 16
    vLane = 18
    vT3 = 19
    QS = 20
    O = 52
    A = 84
    RING = 100
    NV = RING + 4 * R
    vStamp = NV
    if STAMP >= 2:
        NV += 1
    vTk, vSL, vTab, vSoffD, vVSn, vVSn1, vFl = range(NV, NV + 7)
    NV += 7
    CB = 12 << 20
    MBXB = 32 * NSPLIT * 512 + 32 * NSPLIT * 8
    assert not MBX or (WSC and (len(GS) <= 60 or SPEC in (0, 8)))
    MBO = (CB + (256 << 10)) if MBR else 0
    assert not MBR or (MBX and 48 * CSTR <= (256 << 10))
    VG = max(NV, RING + 64)
    DT = 32
    assert LATE and WSC and NS >= 2
    assert sum(GS) == 8 * DT and all(x in (1, 2, 4) for x in GS) and all(GS[k] >= GS[k + 1] for k in range(len(GS) - 1))
    st = [0]
    for n_ in GS:
        st.append(st[-1] + n_)
    assert all(st[k] % GS[k] == 0 for k in range(len(GS)))
    NB = sum(1 for x in GS if x == 4)
    st = st[NB:]
    assert len(st) <= 61 and NB >= 4 * NS
    POW2 = DT & (DT - 1) == 0
    if not POW2:
        DSH = 16
        DM = (1 << DSH) // DT + 1
        assert all((u * DM) >> DSH == u // DT for u in range(8 * DT + 1))
    TICKOFF = WPW * 512 + WPW * 1024 + WPW * 16
    SCB = TICKOFF + 16
    PR = DT * 128
    VZD = 0
    if PLS:
        GOFF = 1
    CNTOFF = TICKOFF + 4
    RT = 64 * WPW
    GSTR = 16 * WPW
    GB = GSTR * 512
    NSL = 2

    def qs(sc):
        return "v[%d:%d]" % (QS + 2 * sc, QS + 2 * sc + 1)

    def o(sc):
        return "v[%d:%d]" % (O + 2 * sc, O + 2 * sc + 1)

    def a(i):
        return "v[%d:%d]" % (A + 2 * i, A + 2 * i + 1)

    def ring(slot):
        return RING + 4 * slot

    sK, sV, sVS, sVZ = 8, 12, 16, 20
    sQ, sKS, sKZ, sWS = 24, 28, 32, 36
    sX = 24
    sXoff, sGn, sXadd = 28, 29, 30
    sMaskE = 32
    sWoff = 34
    sFl = 35
    sPW = 31
    sKoff, sVoff, sSoff, sCnt = 40, 41, 42, 43
    sMask1, sMask0 = 44, 46
    sM0, sM1 = 48, 49
    sF = 50
    sC0, sC1 = 52, 53
    sWave, sGW, sKVH, sRB, sT0, sT1 = 54, 55, 56, 57, 58, 59
    sPtr = 60
    sL0, sZ0, sL1, sZ1 = 80, 81, 82, 83
    sSplit = 84
    sEx = 86
    sQi = 94
    sDBG = 4
    sCur, sTkt, sD0, sD1, sBar = 95, 85, 91, 92, 93
    sTm, sPref, sSw, sHold, sTprev, sCls, sReqC = 60, 62, 63, 64, 65, 66, 67
    sHB, sCid, sSub = 31, 93, 3
    sW8, sMix2, sLow, sGB = 72, 73, 68, 69
    vTok2 = vSL
    sFix = sCid

    def load(slot, srd, so, seg, extra=()):
        r = ring(slot)
        e.i("buffer_load_dwordx4 v[%d:%d], v%d, s[%d:%d], s%d offen offset:%d%s" % (r, r + 3, vLoff, srd, srd + 3, so, seg * 128, ntf))
        if seg == 3:
            for s_ in (so,) + tuple(extra):
                e.i("s_add_u32 s%d, s%d, s%d" % (s_, s_, sGB))

    def issue_own(G, j):
        if j < 4 * G:
            load(j % R, sK, sKoff, j % 4)
        else:
            load(j % R, sV, sVoff, j % 4)

    def issue_next(i):
        if i < 8:
            load(i % R, sK, sKoff, i % 4)
        else:
            load(i % R, sX, sXoff, i % 4, extra=(sKoff,))

    pq, pqk, pqv, pks, pkz, pvs, pvz, pout, pdbg, pws = [sPtr + 2 * k for k in range(10)]

    e.raw("%s_kernel:" % NAME)
    e.i("s_cmp_ge_u32 s2, %d" % NWG)
    e.i("s_cbranch_scc1 %s" % ("L_init" if WSC else "L_done1"))
    if STAMP:
        e.i("s_memrealtime s[88:89]")
    e.i("s_load_dwordx16 s[%d:%d], s[0:1], 0" % (sPtr, sPtr + 15))
    e.i("s_load_dwordx4 s[%d:%d], s[0:1], 64" % (sPtr + 16, sPtr + 19))
    e.i("v_lshrrev_b32 v%d, 6, v0" % vT0)
    e.i("v_and_b32 v%d, 63, v0" % vLane)
    e.i("v_readfirstlane_b32 s%d, v%d" % (sWave, vT0))
    e.i("v_lshrrev_b32 v%d, 3, v%d" % (vT0, vLane))
    e.i("v_and_b32 v%d, 7, v%d" % (vT1, vLane))
    e.i("v_lshlrev_b32 v%d, 9, v%d" % (vLoff, vT0))
    e.i("v_lshl_add_u32 v%d, v%d, 4, v%d" % (vLoff, vT1, vLoff))
    e.i("s_lshr_b32 s%d, s2, 3" % sQi)
    e.i("s_lshl_b32 s%d, s%d, 24" % (sRB, sQi))
    e.i("s_and_b32 s%d, s2, 3" % sSub)
    e.i("s_bfe_u32 s%d, s2, 0x10002" % sCid)
    e.i("s_lshr_b32 s%d, s2, 7" % sT1)
    if INV:
        e.i("s_xor_b32 s%d, s%d, 1" % (sT1, sT1))
    e.i("s_lshl_b32 s%d, s%d, 8" % (sTkt, sCid))
    e.i("s_lshl_b32 s%d, s%d, 3" % (sT0, sWave))
    e.i("s_add_u32 s%d, s%d, s%d" % (sTkt, sTkt, sT0))
    e.i("s_add_u32 s%d, s%d, 2" % (sFix, sCid))
    if FIXR:
        assert NS in (4, 8)
        e.i("s_lshl_b32 s%d, s%d, 1" % (sSub, sSub))
    e.i("s_lshl_b32 s%d, s%d, 12" % (sCur, sSub))
    e.i("s_lshr_b32 s%d, s%d, 1" % (sT0, sWave))
    e.i("s_lshl_b32 s%d, s%d, 5" % (sT0, sT0))
    e.i("s_and_b32 s%d, s%d, 1" % (sD1, sWave))
    e.i("s_lshl_b32 s%d, s%d, 3" % (sD1, sD1))
    e.i("s_add_u32 s%d, s%d, s%d" % (sD1, sD1, sT0))
    e.i("s_mov_b32 s%d, s%d" % (sD0, sT1))
    e.i("s_add_u32 s%d, s%d, s%d" % (sCur, sCur, sTkt))
    e.i("s_lshl_b32 s%d, s%d, 9" % (sKoff, sCur))
    e.i("s_lshl_b32 s%d, s%d, 9" % (sVoff, sCur))
    for srd in (sK, sV):
        e.i("s_mov_b32 s%d, %d" % (srd + 2, 32768 * 512))
        e.i("s_mov_b32 s%d, 0x00020000" % (srd + 3))
    e.i("v_lshrrev_b32 v%d, 2, v%d" % (vT2, vT1))
    e.i("v_and_b32 v%d, 2, v%d" % (vT3, vT1))
    e.i("v_add_u32 v%d, v%d, v%d" % (vT2, vT2, vT3))
    e.i("v_and_b32 v%d, 1, v%d" % (vT3, vT1))
    e.i("v_lshl_add_u32 v%d, v%d, 2, v%d" % (vT2, vT3, vT2))
    e.i("v_mov_b32 v%d, v%d" % (vSoff, vT2))
    e.i("v_lshlrev_b32 v%d, 1, v%d" % (vTok2, vT0))
    e.i("v_lshl_add_u32 v%d, v%d, 6, v%d" % (vSoffD, vT2, vTok2))
    e.i("s_lshl_b32 s%d, s%d, 9" % (sT0, sWave))
    e.i("v_lshlrev_b32 v%d, 6, v%d" % (vLdsR, vT0))
    e.i("v_add_u32 v%d, s%d, v%d" % (vLdsR, sT0, vLdsR))
    e.i("v_lshl_add_u32 v%d, v%d, 3, v%d" % (vLdsW, vT2, vLdsR))
    e.i("s_mov_b32 s%d, 0xcccccccc" % sMask1)
    e.i("s_mov_b32 s%d, 0xcccccccc" % (sMask1 + 1))
    e.i("s_mov_b32 s%d, 0xaaaaaaaa" % sMask0)
    e.i("s_mov_b32 s%d, 0xaaaaaaaa" % (sMask0 + 1))
    e.i("s_lshl_b32 s%d, s2, %d" % (sGW, LOG_WPW))
    e.i("s_add_u32 s%d, s%d, s%d" % (sGW, sGW, sWave))
    e.i("s_lshr_b32 s%d, s2, 4" % sKVH)
    e.i("s_and_b32 s%d, s2, %d" % (sSplit, NSPLIT - 1))
    e.i("s_cmp_eq_u32 s%d, 0" % sWave)
    e.i("s_cselect_b32 s%d, %d, 1000" % (sTkt, NS - 1 if FAKE != 1 else 1000))
    e.i("v_lshlrev_b32 v%d, 3, v%d" % (vT3, vT1))
    e.i("v_lshlrev_b32 v%d, 4, v%d" % (vT0, vLane))
    for srd, n in ((sVS, 65536), (sVZ, 65536), (sQ, 8192), (sKS, 8192), (sKZ, 8192), (sWS, 1 << 24), (sDBG, 256)):
        e.i("s_mov_b32 s%d, %d" % (srd + 2, n))
        e.i("s_mov_b32 s%d, 0x00020000" % (srd + 3))
    e.i("s_waitcnt lgkmcnt(0)")
    if STAMP >= 2:
        e.i("s_mov_b32 s98, 0")
        e.i("v_mov_b32 v%d, 0" % vStamp)
        e.i("s_memtime s[96:97]")
        e.i("s_waitcnt lgkmcnt(0)")
        e.i("v_writelane_b32 v%d, s96, 63" % vStamp)
        e.i("s_memrealtime s[96:97]")
        e.i("s_waitcnt lgkmcnt(0)")
        e.i("v_writelane_b32 v%d, s96, 61" % vStamp)
    for srd, p in ((sK, pqk), (sV, pqv)):
        e.i("s_add_u32 s%d, s%d, s%d" % (srd, p, sRB))
        e.i("s_addc_u32 s%d, s%d, 0" % (srd + 1, p + 1))
    e.i("s_lshl_b32 s%d, s%d, 16" % (sT0, sQi))
    for srd, p in ((sVS, pvs), (sVZ, pvz)):
        e.i("s_add_u32 s%d, s%d, s%d" % (srd, p, sT0))
        e.i("s_addc_u32 s%d, s%d, 0" % (srd + 1, p + 1))
    for srd, p in ((sQ, pq), (sKS, pks), (sKZ, pkz), (sWS, pws), (sDBG, pdbg)):
        e.i("s_mov_b32 s%d, s%d" % (srd, p))
        e.i("s_mov_b32 s%d, s%d" % (srd + 1, p + 1))
    e.i("s_lshl_b32 s%d, s%d, 9" % (sT0, sKVH))
    e.i("s_lshl_b32 s%d, s%d, 8" % (sT1, sQi))
    order = [("q", 0, 0), ("ks", 0, 0), ("kz", 0, 0)] + [("q", h, s_) for h in range(2) for s_ in range(4) if (h, s_) != (0, 0)] + [("ks", 0, s_) for s_ in range(1, 4)] + [("kz", 0, s_) for s_ in range(1, 4)]
    for kind, h, seg in order:
        if kind == "q":
            r = O + (h * 4 + seg) * 2
            e.i("buffer_load_dwordx2 v[%d:%d], v%d, s[%d:%d], s%d offen offset:%d" % (r, r + 1, vT3, sQ, sQ + 3, sT0, h * 256 + seg * 64))
        elif kind == "ks":
            r = O + 16 + seg * 2
            e.i("buffer_load_dwordx2 v[%d:%d], v%d, s[%d:%d], s%d offen offset:%d" % (r, r + 1, vT3, sKS, sKS + 3, sT1, seg * 64))
        else:
            r = O + 24 + seg * 2
            e.i("buffer_load_dwordx2 v[%d:%d], v%d, s[%d:%d], s%d offen offset:%d" % (r, r + 1, vT3, sKZ, sKZ + 3, sT1, seg * 64))
    e.i("s_and_b32 s%d, s2, 7" % sT0)
    e.i("s_lshl_b32 s%d, s%d, 13" % (sT0, sT0))
    e.i("s_mul_i32 s%d, s%d, %d" % (sT1, sWave, 1024 * NSL))
    e.i("s_add_u32 s%d, s%d, s%d" % (sT0, sT0, sT1))
    for k_ in range(NSL):
        e.i("buffer_load_dwordx4 v[%d:%d], v%d, s[%d:%d], s%d offen offset:%d" % (QS + 8 * k_, QS + 8 * k_ + 3, vT0, sVS, sVS + 3, sT0, 1024 * k_))
        e.i("buffer_load_dwordx4 v[%d:%d], v%d, s[%d:%d], s%d offen offset:%d" % (QS + 8 * k_ + 4, QS + 8 * k_ + 7, vT0, sVZ, sVZ + 3, sT0, 1024 * k_))
    e.i("s_lshl_b32 s%d, s%d, 1" % (sSoff, sCur))
    e.i("buffer_load_ushort v%d, v%d, s[%d:%d], s%d offen" % (vVSn, vSoffD, sVS, sVS + 3, sSoff))
    e.i("buffer_load_ushort v%d, v%d, s[%d:%d], s%d offen" % (vVSn1, vSoffD, sVZ, sVZ + 3, sSoff))
    e.i("s_mov_b32 s%d, %d" % (sGB, GB // 2))
    pool = []
    if PLS:
        assert NSL == 2
        PW = 4 if PR % 1024 == 0 else 2
        PB = 256 * PW
        free = list(range(QS + 16, QS + 32)) + list(range(A, A + 16))
        e.i("v_lshlrev_b32 v%d, %d, v%d" % (vVSn, PW.bit_length() + 1, vLane))
        e.i("s_mul_i32 s%d, s%d, %d" % (sT1, sWave, 2 * PR))
        e.i("v_add_u32 v%d, s%d, v%d" % (vVSn1, sT1, vVSn))
        e.i("s_lshl_b32 s%d, s%d, 14" % (sSoff, sWave))
        e.i("s_add_u32 s%d, s%d, %d" % (sSoff, sSoff, NS * 512))
        e.i("s_add_u32 s%d, s%d, 8192" % (sD0, sSoff))
        for rr in range(2):
            for k_ in range(PR // PB):
                for ai, srd in enumerate((sVS, sVZ)):
                    r0 = free[0]
                    assert free[:PW] == list(range(r0, r0 + PW))
                    del free[:PW]
                    e.i("buffer_load_dwordx%d v[%d:%d], v%d, s[%d:%d], s%d offen offset:%d" % (PW, r0, r0 + PW - 1, vVSn, srd, srd + 3, (sSoff, sD0)[rr], PB * k_))
                    pool.append((r0, SCB + 8192 + ai * VZD + rr * PR + PB * k_))
    for j in range(D0):
        issue_own(8, j)
    if WSC:
        e.i("s_mul_i32 s%d, s%d, %d" % (sQi, sQi, 2 * CSTR))
        e.i("s_add_u32 s%d, s%d, %d" % (sQi, sQi, CB))
    else:
        e.i("s_lshl_b32 s%d, s%d, 2" % (sQi, sQi))
    e.i("v_mov_b32 v%d, %d" % (vTab, st[-1]))
    for k_, v_ in enumerate(st[:-1]):
        if v_ <= 64:
            e.i("v_writelane_b32 v%d, %d, %d" % (vTab, v_, k_))
        else:
            e.i("s_mov_b32 s%d, %d" % (sT0, v_))
            e.i("v_writelane_b32 v%d, s%d, %d" % (vTab, sT0, k_))
    e.i("v_mov_b32 v%d, 0" % vT2)
    e.i("ds_write_b32 v%d, v%d offset:%d" % (vT2, vT2, CNTOFF))
    for r in (vL, vL + 1, vZ, vZ + 1):
        e.i("v_mov_b32 v%d, 0" % r)
    e.i("v_mov_b32 v%d, 0x%08x" % (vM, f2u(-3.0e38)))
    e.i("s_mov_b32 s%d, 0" % sCnt)
    e.i("s_mov_b32 s%d, 0x%08x" % (sT0, f2u(CSCALE)))
    e.i("s_waitcnt vmcnt(%d)" % D0)
    e.i("s_mov_b32 s%d, s%d" % (sX, sK))
    e.i("s_mov_b32 s%d, s%d" % (sX + 1, sK + 1))
    e.i("s_mov_b32 s%d, %d" % (sX + 2, 32768 * 512))
    e.i("s_mov_b32 s%d, 0x00020000" % (sX + 3))
    e.i("s_mov_b32 s%d, 4" % sGn)
    e.i("s_mov_b32 s%d, %d" % (sXadd, GB))
    e.i("s_mov_b32 s%d, 0xeeeeeeee" % sMaskE)
    e.i("s_mov_b32 s%d, 0xeeeeeeee" % (sMaskE + 1))
    e.i("s_sub_u32 s%d, s%d, %d" % (sFl, sTkt, 0 if LATE else 1))
    e.i("s_mov_b32 s%d, s%d" % (sWoff, sD1))
    e.i("s_mov_b32 s%d, s%d" % (sHB, sD0))
    e.i("s_mov_b32 s%d, 0" % sPref)
    e.i("s_mov_b32 s%d, 2" % sMix2)
    e.i("s_lshl_b32 s%d, s%d, 3" % (sW8, sWave))
    e.i("s_mov_b32 s%d, 0" % sSw)
    e.i("s_mov_b32 s%d, 1" % sHold)
    e.i("s_mov_b32 s%d, 0" % sTprev)
    e.i("s_mov_b32 s%d, 0" % sReqC)
    if PLS:
        e.i("s_lshl_b32 s%d, s%d, 4" % (sPW, sWave))
        e.i("s_add_u32 s%d, s%d, 8192" % (sPW, sPW))
        for r0, off in pool:
            e.i("ds_write_b%d v%d, v[%d:%d] offset:%d" % (32 * PW, vVSn1, r0, r0 + PW - 1, off))
        if any(r0 >= A for r0, _ in pool):
            e.i("s_waitcnt lgkmcnt(0)")
    for seg in range(4):
        for half in range(2):
            src = O + 16 + seg * 2 + half
            d0 = A + seg * 4 + half * 2
            e.i("v_lshlrev_b32 v%d, 16, v%d" % (d0, src))
            e.i("v_and_b32 v%d, 0xffff0000, v%d" % (d0 + 1, src))
    for k in range(16):
        e.i("v_mul_f32 v%d, s%d, v%d" % (A + k, sT0, A + k))
    e.i("s_waitcnt lgkmcnt(0)")
    for h in range(2):
        for seg in range(4):
            for half in range(2):
                src = O + (h * 4 + seg) * 2 + half
                sc0 = seg * 4 + half * 2
                e.i("v_lshlrev_b32 v%d, 16, v%d" % (QS + 2 * sc0 + h, src))
                e.i("v_and_b32 v%d, 0xffff0000, v%d" % (QS + 2 * (sc0 + 1) + h, src))
    for sc in range(16):
        for h in range(2):
            e.i("v_mul_f32 v%d, v%d, v%d" % (QS + 2 * sc + h, QS + 2 * sc + h, A + sc))
    for seg in range(4):
        for half in range(2):
            src = O + 24 + seg * 2 + half
            d0 = A + seg * 4 + half * 2
            e.i("v_lshlrev_b32 v%d, 16, v%d" % (d0, src))
            e.i("v_and_b32 v%d, 0xffff0000, v%d" % (d0 + 1, src))
    for h in range(2):
        t = vT0 + h
        e.i("v_mul_f32 v%d, v%d, v%d" % (t, QS + h, A))
        for sc in range(1, 16):
            e.i("v_fmac_f32 v%d, v%d, v%d" % (t, QS + 2 * sc + h, A + sc))
    for mod in ("quad_perm:[1,0,3,2]", "quad_perm:[2,3,0,1]", "row_half_mirror"):
        for h in range(2):
            t = vT0 + h
            e.i("v_add_f32_dpp v%d, v%d, v%d %s row_mask:0xf bank_mask:0xf" % (t, t, t, mod))
    e.i("v_readfirstlane_b32 s%d, v%d" % (sC0, vT0))
    e.i("v_readfirstlane_b32 s%d, v%d" % (sC1, vT1))
    for k in range(32):
        e.i("v_mov_b32 v%d, 0" % (O + k))
    FUSE = 1

    def stepA(x, y):
        for k in range(2):
            e.i("v_add_f32_dpp v%d, v%d, v%d row_half_mirror row_mask:0xf bank_mask:0x5" % (A + 2 * x + k, A + 2 * x + k, A + 2 * x + k))
        for k in range(2):
            e.i("v_add_f32_dpp v%d, v%d, v%d row_half_mirror row_mask:0xf bank_mask:0xa" % (A + 2 * x + k, A + 2 * y + k, A + 2 * y + k))

    def stepQ(x, y, mask, perm, out):
        for k in range(2):
            X, Y = A + 2 * x + k, A + 2 * y + k
            t = vT0 + k
            e.i("v_cndmask_b32 v%d, v%d, v%d, s[%d:%d]" % (t, Y, X, mask, mask + 1))
            e.i("v_cndmask_b32 v%d, v%d, v%d, s[%d:%d]" % (Y, X, Y, mask, mask + 1))
        for k in range(2):
            Y = A + 2 * y + k
            t = vT0 + k
            e.i("v_add_f32_dpp v%d, v%d, v%d %s row_mask:0xf bank_mask:0xf" % (out + k, t, Y, perm))

    def stepP(perm):
        for k in range(2):
            e.i("v_add_f32_dpp v%d, v%d, v%d %s row_mask:0xf bank_mask:0xf" % (A + k, A + k, A + k, perm))

    def softmax(G):
        S0, S1 = A, A + 1
        e.i("v_mov_b32 v%d, v%d" % (vT0, S0))
        e.i("v_mov_b32 v%d, v%d" % (vT1, S1))
        e.i("v_lshlrev_b32 v%d, 16, v%d" % (vVS, vVS))
        e.i("v_lshlrev_b32 v%d, 16, v%d" % (vVS + 1, vVS + 1))
        e.i("v_permlane32_swap_b32 v%d, v%d" % (vT0, vT1))
        e.i("v_max_f32 v%d, v%d, v%d" % (vT0, vT0, vT1))
        e.i("v_mov_b32 v%d, v%d" % (vT1, vT0))
        e.i("v_permlane16_swap_b32 v%d, v%d" % (vT0, vT1))
        e.i("v_max_f32 v%d, v%d, v%d" % (vT0, vT0, vT1))
        for rr in (8, 4, 2, 1):
            e.i("v_max_f32_dpp v%d, v%d, v%d row_ror:%d row_mask:0xf bank_mask:0xf" % (vT0, vT0, vT0, rr))
        e.i("v_max_f32 v%d, v%d, v%d" % (vT0, vT0, vM))
        e.i("v_sub_f32 v%d, v%d, v%d" % (vT1, vM, vT0))
        e.i("v_exp_f32 v%d, v%d" % (vT1, vT1))
        e.i("v_mov_b32 v%d, v%d" % (vM, vT0))
        e.i("v_readlane_b32 s%d, v%d, 0" % (sM0, vT0))
        e.i("v_readlane_b32 s%d, v%d, 32" % (sM1, vT0))
        e.i("v_readlane_b32 s%d, v%d, 0" % (sF, vT1))
        e.i("v_readlane_b32 s%d, v%d, 32" % (sF + 1, vT1))
        e.i("v_subrev_f32 v%d, s%d, v%d" % (vP, sM0, S0))
        e.i("v_subrev_f32 v%d, s%d, v%d" % (vP + 1, sM1, S1))
        e.i("v_exp_f32 v%d, v%d" % (vP, vP))
        e.i("v_exp_f32 v%d, v%d" % (vP + 1, vP + 1))
        if G < 8:
            mk = sMask0 if G == 4 else sMaskE
            for k in range(2):
                e.i("v_cndmask_b32 v%d, v%d, 0, s[%d:%d]" % (vP + k, vP + k, mk, mk + 1))
        P = "v[%d:%d]" % (vP, vP + 1)
        PP = "v[%d:%d]" % (vPP, vPP + 1)
        L = "v[%d:%d]" % (vL, vL + 1)
        Z = "v[%d:%d]" % (vZ, vZ + 1)
        VS = "v[%d:%d]" % (vVS, vVS + 1)
        F = "s[%d:%d]" % (sF, sF + 1)
        e.i("v_pk_mul_f32 %s, %s, %s" % (Z, Z, F))
        e.i("v_pk_mul_f32 %s, %s, %s op_sel:[0,0] op_sel_hi:[1,0]" % (PP, P, VS))
        e.i("v_pk_fma_f32 %s, %s, %s, %s" % (L, L, F, P))
        e.i("ds_write_b64 v%d, %s" % (vLdsW, PP))
        e.i("v_pk_fma_f32 %s, %s, %s, %s op_sel:[0,1,0] op_sel_hi:[1,1,1]" % (Z, PP, VS, Z))
        for k in range(G // 2):
            e.i("ds_read_b128 v[%d:%d], v%d offset:%d" % (A + 4 * k, A + 4 * k + 3, vLdsR, 16 * k))
        for sc in range(16):
            e.i("v_pk_mul_f32 %s, %s, %s" % (o(sc), o(sc), F))

    def publish(tag):
        e.i("s_cmp_lt_u32 s%d, s%d" % (sCnt, sTkt))
        e.i("s_cbranch_scc1 L_np%s" % tag)
        e.i("s_mov_b64 exec, 1")
        e.i("v_lshl_add_u32 v%d, v%d, 2, s%d" % (vT3, vT3, sReqC))
        e.i("ds_write_b32 v%d, v%d offset:%d" % (vT2, vT3, TICKOFF))
        e.i("s_mov_b64 exec, -1")
        e.i("s_waitcnt lgkmcnt(0)")
        e.label("L_np%s" % tag)

    def flagload(tag):
        e.i("s_cmp_lg_u32 s%d, s%d" % (sCnt, sFl))
        e.i("s_cbranch_scc1 L_nf%s" % tag)
        e.i("s_mov_b64 exec, 1")
        e.i("buffer_load_dword v%d, v%d, s[%d:%d], 0 offen sc1" % (vFl, vT2, sDBG, sDBG + 3))
        e.i("s_mov_b64 exec, -1")
        e.label("L_nf%s" % tag)

    def request(G, tag):
        e.i("s_lshl_b32 s%d, s%d, 9" % (sKoff, sCur))
        e.i("s_lshl_b32 s%d, s%d, 9" % (sVoff, sCur))
        e.i("s_add_u32 s%d, s%d, s%d" % (sXoff, sKoff, sXadd))
        if G == 8 and FLJ < 0:
            flagload(tag)
        e.i("s_cmp_eq_u32 s%d, 4" % sGn)
        e.i("s_cbranch_scc1 L_nt%s" % tag)
        ticket(tag, False)

    def ticket(tag, check):
        e.i("s_cmp_lt_u32 s%d, s%d" % (sCnt, sTkt))
        e.i("s_cbranch_scc1 L_nt%s" % tag)
        e.i("v_mov_b32 v%d, 1" % vT3)
        e.i("s_mov_b64 exec, 1")
        if check:
            e.i("v_readfirstlane_b32 s%d, v%d" % (sT0, vFl))
            e.i("s_cmp_lg_u32 s%d, 0" % sT0)
            e.i("s_cbranch_scc1 L_fo%s" % tag)
            e.i("v_mov_b32 v%d, 1" % vFl)
            e.i("buffer_atomic_add v%d, v%d, s[%d:%d], 0 offen offset:4 sc0" % (vFl, vT2, sDBG, sDBG + 3))
            e.i("s_waitcnt vmcnt(0)")
            e.i("v_readfirstlane_b32 s%d, v%d" % (sT0, vFl))
            e.i("s_cmp_lg_u32 s%d, 0" % sT0)
            e.i("s_cbranch_scc1 L_fs%s" % tag)
            e.i("s_mov_b64 exec, -1")
            e.i("v_mul_u32_u24 v%d, %d, v%d" % (vT0, CSTR, vLane))
            e.i("s_mov_b32 s%d, %d" % (sT0, CB))
            e.i("buffer_store_dword v%d, v%d, s[%d:%d], s%d offen sc1" % (vT2, vT0, sWS, sWS + 3, sT0))
            e.i("s_mov_b32 s%d, %d" % (sT0, CB + 64 * CSTR))
            e.i("buffer_store_dword v%d, v%d, s[%d:%d], s%d offen sc1" % (vT2, vT0, sWS, sWS + 3, sT0))
            if MBX:
                e.i("s_waitcnt vmcnt(0)")
                e.i("v_lshlrev_b32 v%d, 2, v%d" % (vT0, vLane))
                e.i("s_mov_b32 s%d, %d" % (sT0, MBO))
                e.label("L_fz%s" % tag)
                e.i("buffer_store_dword v%d, v%d, s[%d:%d], s%d offen sc1" % (vT2, vT0, sWS, sWS + 3, sT0))
                e.i("s_add_u32 s%d, s%d, 256" % (sT0, sT0))
                e.i("s_cmp_lt_u32 s%d, %d" % (sT0, MBO + MBXB))
                e.i("s_cbranch_scc1 L_fz%s" % tag)
            e.i("s_waitcnt vmcnt(0)")
            e.i("s_mov_b64 exec, 1")
            e.i("v_mov_b32 v%d, 3" % vFl)
            e.i("buffer_store_dword v%d, v%d, s[%d:%d], 0 offen sc1" % (vFl, vT2, sDBG, sDBG + 3))
            e.i("s_waitcnt vmcnt(0)")
            e.i("s_branch L_fo%s" % tag)
            e.label("L_fs%s" % tag)
            e.i("buffer_load_dword v%d, v%d, s[%d:%d], 0 offen sc1" % (vFl, vT2, sDBG, sDBG + 3))
            e.i("s_waitcnt vmcnt(0)")
            e.i("v_readfirstlane_b32 s%d, v%d" % (sT0, vFl))
            e.i("s_cmp_eq_u32 s%d, 0" % sT0)
            e.i("s_cbranch_scc1 L_fs%s" % tag)
            e.label("L_fo%s" % tag)
            e.i("s_cmp_lg_u32 s%d, %d" % (sCnt, NS - 1))
            e.i("s_cbranch_scc1 L_nd%s" % tag)
            e.i("v_readfirstlane_b32 s%d, v%d" % (sT0, vFl))
            e.i("s_getreg_b32 s%d, hwreg(HW_REG_XCC_ID, 2, 1)" % sT1)
            e.i("s_sub_u32 s%d, s%d, 1" % (sT0, sT0))
            e.i("s_xor_b32 s%d, s%d, s%d" % (sPref, sT0, sT1))
            e.i("s_and_b32 s%d, s%d, 1" % (sPref, sPref))
            e.i("s_and_b32 s%d, s%d, 2" % (sMix2, sT0))
            e.label("L_nd%s" % tag)
        if FAKE in (3, 4):
            if FAKE == 3:
                e.i("s_lshl_b32 s%d, s2, 12" % sT0)
            else:
                e.i("s_lshl_b32 s%d, s%d, 10" % (sT0, sQi))
            e.i("s_add_u32 s%d, s%d, %d" % (sT0, sT0, 12 << 20))
            e.i("buffer_atomic_add v%d, v%d, s[%d:%d], s%d offen sc0" % (vT3, vT2, sWS, sWS + 3, sT0))
        elif FAKE == 5:
            e.i("buffer_load_dword v%d, v%d, s[%d:%d], s%d offen sc1" % (vT3, vT2, sDBG, sDBG + 3, sQi))
        elif FAKE == 6:
            e.i("buffer_atomic_add v%d, v%d, s[%d:%d], s%d offen" % (vT3, vT2, sDBG, sDBG + 3, sQi))
        elif WSC:
            e.i("s_add_u32 s%d, s%d, s%d" % (sReqC, sPref, sMix2))
            e.i("s_mul_i32 s%d, s%d, %d" % (sT0, sPref, CSTR))
            e.i("s_add_u32 s%d, s%d, s%d" % (sT0, sT0, sQi))
            e.i("buffer_atomic_add v%d, v%d, s[%d:%d], s%d offen sc0" % (vT3, vT2, sWS, sWS + 3, sT0))
        else:
            e.i("buffer_atomic_add v%d, v%d, s[%d:%d], s%d offen sc0" % (vT3, vT2, sDBG, sDBG + 3, sQi))
        e.i("s_mov_b64 exec, -1")
        e.label("L_nt%s" % tag)

    def decode(G, q, tag=None, fail=None):
        tag = tag or "%d" % G
        fail = fail or "L_last%s" % tag
        e.i("v_readfirstlane_b32 s%d, v%d" % (sT0, vTk))
        if G == 8:
            e.i("s_add_u32 s%d, s%d, 1" % (sCnt, sCnt))
        e.i("s_and_b32 s%d, s%d, 3" % (sLow, sT0))
        e.i("s_lshr_b32 s%d, s%d, 2" % (sT0, sT0))
        e.i("s_add_u32 s%d, s%d, %d" % (sT0, sT0, 4 * NS))
        if G == 8:
            if FIXR:
                e.i("s_and_b32 s%d, s%d, %d" % (sT1, sCnt, NS // 2 - 1))
                e.i("s_lshl_b32 s%d, s%d, 3" % (sT1, sT1))
                e.i("s_lshr_b32 s%d, s%d, %d" % (sD0, sCnt, (NS // 2).bit_length() - 1))
                e.i("s_add_u32 s%d, s%d, s%d" % (sT1, sT1, sD0))
            else:
                e.i("s_lshl_b32 s%d, s%d, 2" % (sT1, sCnt))
            e.i("s_add_u32 s%d, s%d, s%d" % (sT1, sT1, sSub))
            e.i("s_cmp_lt_u32 s%d, %d" % (sCnt, NS))
            e.i("s_cselect_b32 s%d, s%d, s%d" % (sT0, sT1, sT0))
            e.i("s_cselect_b32 s%d, s%d, s%d" % (sLow, sFix, sLow))
        e.i("s_and_b32 s%d, s%d, 1" % (sCls, sLow))
        e.i("s_lshl_b32 s%d, s%d, 2" % (sSoff, sT0))
        e.i("s_sub_i32 s%d, s%d, %d" % (sT0, sT0, NB))
        e.i("s_max_i32 s%d, s%d, 0" % (sT0, sT0))
        e.i("s_min_u32 s%d, s%d, 62" % (sT0, sT0))
        e.i("s_add_u32 s%d, s%d, 1" % (sT1, sT0))
        e.i("s_nop 3")
        e.i("v_readlane_b32 s%d, v%d, s%d" % (sD0, vTab, sT0))
        e.i("v_readlane_b32 s%d, v%d, s%d" % (sD1, vTab, sT1))
        e.i("s_sub_u32 s%d, s%d, s%d" % (sGn, sD1, sD0))
        e.i("s_cmp_lt_u32 s%d, %d" % (sSoff, 4 * NB))
        e.i("s_cselect_b32 s%d, s%d, s%d" % (sD0, sSoff, sD0))
        e.i("s_cselect_b32 s%d, 4, s%d" % (sGn, sGn))
        e.i("s_cmp_eq_u32 s%d, 0" % sGn)
        e.i("s_cbranch_scc1 %s" % fail)
        e.i("s_bfe_u32 s%d, s%d, 0x30002" % (sT0, sD0))
        e.i("s_xor_b32 s%d, s%d, s%d" % (sD1, sCls, sHB))
        e.i("s_xor_b32 s%d, s%d, s%d" % (sD1, sD1, sT0))
        e.i("s_and_b32 s%d, s%d, 1" % (sD1, sD1))
        e.i("s_lshl_b32 s%d, s%d, 4" % (sD1, sD1))
        e.i("s_add_u32 s%d, s%d, s%d" % (sD1, sD1, sWoff))
        e.i("s_lshl_b32 s%d, s%d, 8" % (sT1, sCls))
        e.i("s_add_u32 s%d, s%d, s%d" % (sT1, sT1, sW8))
        e.i("s_cmp_ge_u32 s%d, 2" % sLow)
        e.i("s_cselect_b32 s%d, s%d, s%d" % (sD1, sT1, sD1))
        e.i("s_cselect_b32 s%d, 14, 15" % sLow)
        e.i("s_lshl_b32 s%d, 1, s%d" % (sGB, sLow))
        e.i("s_lshl_b32 s%d, s%d, 12" % (sCur, sT0))
        e.i("s_add_u32 s%d, s%d, s%d" % (sCur, sCur, sD1))
        e.i("s_lshr_b32 s%d, s%d, 5" % (sT1, sD0))
        e.i("s_lshl_b32 s%d, s%d, 9" % (sT1, sT1))
        e.i("s_add_u32 s%d, s%d, s%d" % (sCur, sCur, sT1))
        e.i("s_lshr_b32 s%d, s%d, 8" % (sD1, sGB))
        e.i("s_and_b32 s%d, s%d, 3" % (sT1, sD0))
        e.i("s_mul_i32 s%d, s%d, s%d" % (sT1, sT1, sD1))
        e.i("s_add_u32 s%d, s%d, s%d" % (sCur, sCur, sT1))
        e.i("s_lshl_b32 s%d, s%d, 1" % (sT0, sGn))
        e.i("s_sub_u32 s%d, s%d, 1" % (sT0, sT0))
        e.i("v_and_b32 v%d, s%d, v%d" % (vSoffD, sT0, vSoff))
        e.i("v_mad_u32_u24 v%d, v%d, s%d, v%d" % (vSoffD, vSoffD, sD1, vTok2))
        e.i("s_lshl_b32 s%d, s%d, 1" % (sT1, sGB))
        e.i("s_lshl_b32 s%d, s%d, 1" % (sSoff, sCur))
        e.i("s_cmp_eq_u32 s%d, 1" % sGn)
        e.i("s_cselect_b32 s%d, s%d, s%d" % (sX, sV, sK))
        e.i("s_cselect_b32 s%d, s%d, s%d" % (sX + 1, sV + 1, sK + 1))
        e.i("s_cselect_b32 s%d, 0, s%d" % (sXadd, sT1))
        e.i("buffer_load_ushort v%d, v%d, s[%d:%d], s%d offen" % (vVSn, vSoffD, sVS, sVS + 3, sSoff))
        e.i("buffer_load_ushort v%d, v%d, s[%d:%d], s%d offen" % (vVSn1, vSoffD, sVZ, sVZ + 3, sSoff))
        q.append(("G", 0))
        q.append(("G", 1))
        request(G, tag)

    def wait_for(q, j):
        idx = q.index(("L", j))
        n_after = len(q) - idx - 1
        assert n_after <= 63
        e.i("s_waitcnt vmcnt(%d)" % n_after)
        del q[:idx + 1]

    def compute(G, j):
        r = ring(j % R)
        for c in range(4):
            e.i("v_cvt_f32_i32 v%d, v%d" % (r + c, r + c))
        isK = j < 4 * G
        jj = j if isK else j - 4 * G
        g, seg = jj // 4, jj % 4
        for c in range(4):
            pr = "v[%d:%d]" % (r + (c & 2), r + (c & 2) + 1)
            b = c & 1
            sc = seg * 4 + c
            if isK:
                if seg == 0 and c == 0:
                    e.i("v_pk_mul_f32 %s, %s, %s op_sel:[%d,0] op_sel_hi:[%d,1]" % (a(g), pr, qs(sc), b, b))
                else:
                    e.i("v_pk_fma_f32 %s, %s, %s, %s op_sel:[%d,0,0] op_sel_hi:[%d,1,1]" % (a(g), pr, qs(sc), a(g), b, b))
            else:
                e.i("v_pk_fma_f32 %s, %s, %s, %s op_sel:[%d,0,0] op_sel_hi:[%d,1,1]" % (o(sc), pr, a(g), o(sc), b, b))

    def issue(G, q, j, last):
        nj = j + 16
        if nj < 8 * G:
            issue_own(G, nj)
            q.append(("L", nj))
        elif not last:
            issue_next(nj - 8 * G)
            q.append(("N", nj - 8 * G))

    def reduce_k(G, j):
        if j < 4 * G and j % 4 == 3:
            g = j // 4
            if g % 2 == 1:
                stepA(g - 1, g)
            if g % 4 == 3:
                stepQ(g - 3, g - 1, sMask1, "quad_perm:[2,3,0,1]", A + 2 * (g - 3))
            if g == 7:
                stepQ(0, 4, sMask0, "quad_perm:[1,0,3,2]", A)
            if G == 4 and g == 3:
                stepP("quad_perm:[1,0,3,2]")
            if G == 2 and g == 1:
                stepP("quad_perm:[2,3,0,1]")
                stepP("quad_perm:[1,0,3,2]")

    def do_softmax(G):
        e.i("s_waitcnt lgkmcnt(0)")
        if STAMP == 2:
            e.i("s_memrealtime s[96:97]")
        softmax(G)
        e.i("s_waitcnt lgkmcnt(0)")
        if STAMP == 2:
            e.i("s_mov_b32 m0, s98")
            e.i("s_add_u32 s98, s98, 1")
            e.i("s_and_b32 s98, s98, 63")
            e.i("s_and_b32 s96, s96, 0xfffffffc")
            e.i("s_or_b32 s96, s96, %d" % {8: 0, 4: 1, 2: 2}[G])
            e.i("v_writelane_b32 v%d, s96, m0" % vStamp)

    def read_scales():
        e.i("ds_read_u16 v%d, v%d offset:%d" % (vVS, vSL, SCB))
        e.i("ds_read_u16 v%d, v%d offset:%d" % (vVS + 1, vSL, SCB + VZD))

    def barrier(G, j, last):
        e.i("s_barrier")

    def step(G, q, j, last, skip_pre=False):
        if not skip_pre:
            if j % (BAR8 if G == 8 else BAR) == 0 and (not last or LASTBAR):
                barrier(G, j, last)
            if j == (LATE + 24 if (LATE and G == 8) else 8) and G >= 4:
                e.i("ds_read_b32 v%d, v%d offset:%d" % (vTk, vT2, TICKOFF))
            if PLS:
                if (G == 8 and j == 20) or (G == 4 and j == 8):
                    read_scales()
        if j == 4 * G:
            do_softmax(G)
        wait_for(q, j)
        if j == 0:
            if not PLS:
                e.i("v_mov_b32 v%d, v%d" % (vVS, vVSn))
                e.i("v_mov_b32 v%d, v%d" % (vVS + 1, vVSn1))
        if j == (LATE + 16 if (LATE and G == 8) else 0):
            publish("%d" % G)
        if LATE and G == 8 and j == LATE:
            ticket("8l", WSC)
        compute(G, j)
        if G == 8 and j == FLJ:
            assert FLJ + 16 <= LATE
            flagload("8")
        issue(G, q, j, last)
        reduce_k(G, j)

    def dispatch(G):
        order = {8: (4, 2), 4: (2, 4), 2: (2, 4)}[G]
        if G == 2:
            e.i("s_cmp_eq_u32 s%d, 1" % sGn)
            e.i("s_cbranch_scc1 L_body2")
        for gn in order:
            e.i("s_cmp_eq_u32 s%d, %d" % (sGn, gn))
            e.i("s_cbranch_scc1 L_body%d" % (2 * gn))
        e.i("s_branch L_body2")

    def second(tag):
        e.i("s_cmp_lg_u32 s%d, 0" % sSw)
        e.i("s_cbranch_scc1 L_nt%s" % tag)
        e.i("s_xor_b32 s%d, s%d, 1" % (sPref, sCls))
        ticket(tag, False)

    def pretouch(q):
        if not PT:
            return
        assert PLS
        e.i("s_mov_b32 s%d, s%d" % (sK, pout))
        e.i("s_mov_b32 s%d, s%d" % (sK + 1, pout + 1))
        e.i("s_mov_b32 s%d, 8192" % (sK + 2))
        e.i("s_mov_b32 s%d, 0x00020000" % (sK + 3))
        e.i("s_lshl_b32 s%d, s%d, 9" % (sT1, sKVH))
        e.i("buffer_load_dword v%d, v%d, s[%d:%d], s%d offen" % (vVSn, vT2, sK, sK + 3, sT1))
        q.append(("G", 0))
        if PT >= 2:
            e.i("s_mov_b32 s%d, %d" % (sT1, MBO))
            e.i("buffer_load_dword v%d, v%d, s[%d:%d], s%d offen sc1" % (vVSn1, vT2, sWS, sWS + 3, sT1))
            q.append(("G", 1))

    assert LATE in (8, 16)
    lasts = []
    for G in (8, 4):
        e.label("L_body%d" % G)
        q = [("L", j) for j in range(16)]
        JD = 8 * G - 16
        for j in range(JD):
            step(G, q, j, False)
        barrier(G, JD, False)
        e.i("s_waitcnt lgkmcnt(0)")
        ql = list(q)
        decode(G, q)
        for j in range(JD, 8 * G):
            step(G, q, j, False, skip_pre=(j == JD))
        dispatch(G)
        lasts.append((G, ql, JD))
    G = 2
    e.label("L_body2")
    q = [("L", j) for j in range(16)]
    wait_for(q, 0)
    e.i("v_mov_b32 v%d, v%d" % (vVS, vVSn))
    e.i("v_mov_b32 v%d, v%d" % (vVS + 1, vVSn1))
    publish("2")
    e.i("s_barrier")
    e.i("ds_read_b32 v%d, v%d offset:%d" % (vTk, vT2, TICKOFF))
    compute(G, 0)
    e.i("s_waitcnt lgkmcnt(0)")
    ql = list(q)
    decode(G, q)
    issue(G, q, 0, False)
    for j in range(1, 16):
        step(G, q, j, False)
    dispatch(G)
    for (G_, ql_, JD) in lasts:
        e.label("L_last%d" % G_)
        second("s%d" % G_)
        for j in range(JD, 8 * G_):
            step(G_, ql_, j, True, skip_pre=(j == JD))
        e.i("s_branch L_sw")
    e.label("L_last2")
    second("s2")
    for j in range(1, 16):
        step(2, ql, j, True)
    e.label("L_sw")
    e.i("s_cmp_lg_u32 s%d, 0" % sSw)
    e.i("s_cbranch_scc1 L_epi")
    e.i("s_mov_b32 s%d, 1" % sSw)
    e.i("s_waitcnt vmcnt(0)")
    publish("w")
    e.i("s_barrier")
    e.i("ds_read_b32 v%d, v%d offset:%d" % (vTk, vT2, TICKOFF))
    e.i("s_waitcnt lgkmcnt(0)")
    decode(4, [], tag="w", fail="L_epi")
    for i in range(16):
        issue_next(i)
    dispatch(2)
    e.label("L_epi")
    if STAMP:
        e.i("s_memrealtime s[90:91]")
        e.i("s_getreg_b32 s92, hwreg(HW_REG_XCC_ID)")
        e.i("s_getreg_b32 s93, hwreg(HW_REG_HW_ID)")
        e.i("s_waitcnt lgkmcnt(0)")
        e.i("v_mov_b32 v%d, s88" % (A + 8))
        e.i("v_mov_b32 v%d, s90" % (A + 9))
        e.i("v_mov_b32 v%d, s92" % (A + 10))
        e.i("v_mov_b32 v%d, s93" % (A + 11))
        e.i("s_lshl_b32 s%d, s%d, 4" % (sT0, sGW))
        e.i("s_add_u32 s%d, s%d, %d" % (sT0, sT0, 8 << 20))
        e.i("v_mov_b32 v%d, 0" % (A + 12))
        e.i("buffer_store_dwordx4 v[%d:%d], v%d, s[%d:%d], s%d offen" % (A + 8, A + 11, A + 12, sWS, sWS + 3, sT0))
        if STAMP >= 2:
            e.i("s_memtime s[96:97]")
            e.i("s_waitcnt lgkmcnt(0)")
            e.i("v_writelane_b32 v%d, s96, 62" % vStamp)
            e.i("s_lshl_b32 s%d, s%d, 8" % (sT0, sGW))
            e.i("s_add_u32 s%d, s%d, %d" % (sT0, sT0, 9 << 20))
            e.i("v_lshlrev_b32 v%d, 2, v%d" % (A + 13, vLane))
            e.i("buffer_store_dword v%d, v%d, s[%d:%d], s%d offen" % (vStamp, A + 13, sWS, sWS + 3, sT0))
    e.i("v_permlane32_swap_b32 v%d, v%d" % (vL, vL + 1))
    e.i("v_permlane32_swap_b32 v%d, v%d" % (vZ, vZ + 1))
    e.i("v_add_f32 v%d, v%d, v%d" % (vL, vL, vL + 1))
    e.i("v_add_f32 v%d, v%d, v%d" % (vZ, vZ, vZ + 1))
    e.i("v_permlane16_swap_b32 v%d, v%d" % (vL, vZ))
    e.i("v_add_f32 v%d, v%d, v%d" % (vL, vL, vZ))
    for rr in (8, 4, 2, 1):
        e.i("v_add_f32_dpp v%d, v%d, v%d row_ror:%d row_mask:0xf bank_mask:0xf" % (vL, vL, vL, rr))
    e.i("v_readlane_b32 s%d, v%d, 0" % (sL0, vL))
    e.i("v_readlane_b32 s%d, v%d, 16" % (sZ0, vL))
    e.i("v_readlane_b32 s%d, v%d, 32" % (sL1, vL))
    e.i("v_readlane_b32 s%d, v%d, 48" % (sZ1, vL))
    for sc in range(16):
        e.i("v_permlane32_swap_b32 v%d, v%d" % (O + 2 * sc, O + 2 * sc + 1))
    for sc in range(16):
        e.i("v_add_f32 v%d, v%d, v%d" % (O + 2 * sc, O + 2 * sc, O + 2 * sc + 1))
    for sc in range(8):
        e.i("v_permlane16_swap_b32 v%d, v%d" % (O + 2 * sc, O + 2 * (sc + 8)))
    for sc in range(8):
        e.i("v_add_f32 v%d, v%d, v%d" % (O + 2 * sc, O + 2 * sc, O + 2 * (sc + 8)))
    for sc in range(4):
        e.i("v_add_f32_dpp v%d, v%d, v%d row_ror:8 row_mask:0xf bank_mask:0x3" % (A + sc, O + 2 * sc, O + 2 * sc))
    for sc in range(4):
        e.i("v_add_f32_dpp v%d, v%d, v%d row_ror:8 row_mask:0xf bank_mask:0xc" % (A + sc, O + 2 * (sc + 4), O + 2 * (sc + 4)))
    e.i("s_mov_b32 s%d, 0" % sEx)
    e.i("s_mov_b32 s%d, -1" % (sEx + 1))
    e.i("v_mov_b32 v%d, s%d" % (vT0, sZ0))
    e.i("v_mov_b32 v%d, s%d" % (vT1, sZ1))
    e.i("v_cndmask_b32 v%d, v%d, v%d, s[%d:%d]" % (vT0, vT0, vT1, sEx, sEx + 1))
    for sc in range(4):
        e.i("v_sub_f32 v%d, v%d, v%d" % (A + sc, A + sc, vT0))
    e.i("v_mov_b32 v%d, s%d" % (vT0, sC0))
    e.i("v_mov_b32 v%d, s%d" % (vT1, sC1))
    e.i("v_cndmask_b32 v%d, v%d, v%d, s[%d:%d]" % (vT0, vT0, vT1, sEx, sEx + 1))
    e.i("v_sub_f32 v%d, v%d, v%d" % (vP, vM, vT0))
    e.i("v_mov_b32 v%d, s%d" % (vT0, sL0))
    e.i("v_mov_b32 v%d, s%d" % (vT1, sL1))
    e.i("v_cndmask_b32 v%d, v%d, v%d, s[%d:%d]" % (vP + 1, vT0, vT1, sEx, sEx + 1))
    OB = WPW * 512
    MB = OB + WPW * 1024
    LDS = MB + WPW * 16 + 32 + 2 * VZD
    e.i("s_lshl_b32 s%d, s%d, 10" % (sT0, sWave))
    e.i("v_lshlrev_b32 v%d, 4, v%d" % (vT2, vLane))
    e.i("v_add_u32 v%d, s%d, v%d" % (vT0, sT0, vT2))
    e.i("ds_write_b128 v%d, v[%d:%d] offset:%d" % (vT0, A, A + 3, OB))
    e.i("s_lshl_b32 s%d, s%d, 4" % (sT0, sWave))
    e.i("v_lshrrev_b32 v%d, 5, v%d" % (vT3, vLane))
    e.i("v_lshlrev_b32 v%d, 3, v%d" % (vT3, vT3))
    e.i("v_add_u32 v%d, s%d, v%d" % (vT1, sT0, vT3))
    e.i("ds_write_b64 v%d, v[%d:%d] offset:%d" % (vT1, vP, vP + 1, MB))
    if MBX:
        e.i("v_lshrrev_b32 v%d, 5, v%d" % (vPP, vLane))
        e.i("s_lshl_b32 s%d, s%d, 1" % (sT0, sKVH))
        e.i("v_add_u32 v%d, s%d, v%d" % (vPP, sT0, vPP))
        e.i("v_and_b32 v%d, 31, v%d" % (vPP + 1, vLane))
        e.i("v_lshlrev_b32 v%d, 4, v%d" % (vPP + 1, vPP + 1))
        e.i("v_lshl_add_u32 v%d, v%d, 13, v%d" % (vPP + 1, vPP, vPP + 1))
        e.i("v_and_b32 v%d, 15, v%d" % (vVS, vLane))
        e.i("v_lshlrev_b32 v%d, 3, v%d" % (vVS, vVS))
        e.i("v_lshl_add_u32 v%d, v%d, 7, v%d" % (vPP, vPP, vVS))
        e.i("v_lshlrev_b32 v%d, 3, v%d" % (vVS, vLane))
        e.i("s_mov_b32 s%d, s%d" % (sK, pout))
        e.i("s_mov_b32 s%d, s%d" % (sK + 1, pout + 1))
        e.i("s_mov_b32 s%d, 8192" % (sK + 2))
        e.i("s_mov_b32 s%d, 0x00020000" % (sK + 3))
        e.i("s_mov_b32 s%d, %d" % (sEx, MBO + 4096))
        e.i("s_mov_b32 s%d, %d" % (sL0, MBO))
        e.i("s_lshl_b32 s%d, s%d, 9" % (sEx + 1, sKVH))
    e.i("s_waitcnt lgkmcnt(0)")
    if MBX:
        e.i("v_mov_b32 v%d, v%d" % (vP + 1, vPP + 1))
        e.i("v_mov_b32 v%d, 1" % vP)
        e.i("v_mov_b32 v%d, 0" % vM)
    if True:
        e.i("v_mov_b32 v%d, 0" % vT0)
        e.i("v_mov_b32 v%d, 1" % vT1)
        e.i("s_mov_b64 exec, 1")
        e.i("ds_add_rtn_u32 v%d, v%d, v%d offset:%d" % (vT1, vT0, vT1, CNTOFF))
        e.i("s_mov_b64 exec, -1")
        e.i("s_waitcnt lgkmcnt(0)")
        e.i("v_readfirstlane_b32 s%d, v%d" % (sT0, vT1))
        e.i("s_cmp_lg_u32 s%d, %d" % (sT0, WPW - 1))
        e.i("s_cbranch_scc1 L_done1")
    assert WPW <= 16
    for w in range(WPW):
        e.i("ds_read_b64 v[%d:%d], v%d offset:%d" % (QS + 2 * w, QS + 2 * w + 1, vT3, MB + 16 * w))
    OT = O
    assert O + 4 * WPW <= NV
    for w in range(WPW):
        e.i("ds_read_b128 v[%d:%d], v%d offset:%d" % (OT + 4 * w, OT + 4 * w + 3, vT2, OB + 1024 * w))
    e.i("s_waitcnt lgkmcnt(0)")
    e.i("v_mov_b32 v%d, v%d" % (vT0, QS))
    for w in range(1, WPW):
        e.i("v_max_f32 v%d, v%d, v%d" % (vT0, vT0, QS + 2 * w))
    for w in range(WPW):
        e.i("v_sub_f32 v%d, v%d, v%d" % (QS + 2 * w, QS + 2 * w, vT0))
    for w in range(WPW):
        e.i("v_exp_f32 v%d, v%d" % (QS + 2 * w, QS + 2 * w))
    e.i("v_mul_f32 v%d, v%d, v%d" % (vT1, QS, QS + 1))
    for w in range(1, WPW):
        e.i("v_fmac_f32 v%d, v%d, v%d" % (vT1, QS + 2 * w, QS + 2 * w + 1))
    for c in range(4):
        e.i("v_mul_f32 v%d, v%d, v%d" % (OT + c, OT + c, QS))
    for w in range(1, WPW):
        for c in range(4):
            e.i("v_fmac_f32 v%d, v%d, v%d" % (OT + c, OT + 4 * w + c, QS + 2 * w))
    MLB = 32 * NSPLIT * 512
    e.i("s_lshl_b32 s%d, s%d, %d" % (sT0, sKVH, LOG_NSPLIT + 1))
    e.i("s_add_u32 s%d, s%d, s%d" % (sT0, sT0, sSplit))
    e.i("v_lshrrev_b32 v%d, 5, v%d" % (vT3, vLane))
    e.i("v_lshlrev_b32 v%d, %d, v%d" % (vT3, LOG_NSPLIT, vT3))
    e.i("v_add_u32 v%d, s%d, v%d" % (vT3, sT0, vT3))
    e.i("v_and_b32 v%d, 31, v%d" % (vT2, vLane))
    e.i("v_lshlrev_b32 v%d, 4, v%d" % (vT2, vT2))
    e.i("v_lshl_add_u32 v%d, v%d, 9, v%d" % (vT2, vT3, vT2))
    scf = " sc1" if FUSE else ""
    if MBX:
        for r_ in (OT, OT + 1, OT + 2, OT + 3, vT0, vT1):
            e.i("v_max_u32 v%d, 1, v%d" % (r_, r_))
    if STAMP and FUSE:
        e.i("s_memrealtime s[12:13]")
    e.i("buffer_store_dwordx4 v[%d:%d], v%d, s[%d:%d], %s offen%s" % (OT, OT + 3, vT2, sWS, sWS + 3, ("s%d" % sL0) if MBX else "0", scf))
    e.i("v_lshlrev_b32 v%d, 3, v%d" % (vT3, vT3))
    e.i("s_mov_b32 s%d, %d" % (sT1, MLB + (MBO if MBX else 0)))
    e.i("buffer_store_dwordx2 v[%d:%d], v%d, s[%d:%d], s%d offen%s" % (vT0, vT1, vT3, sWS, sWS + 3, sT1, scf))
    if MBX:
        vA, vB, vC = vP, vP + 1, vPP
        vW, vS, vZm = vL, vL + 1, vZ
        e.i("s_mul_i32 s%d, s%d, %d" % (sT0, sKVH, CSTR))
        e.i("s_add_u32 s%d, s%d, %d" % (sT0, sT0, CB + 64 * CSTR))
        e.i("s_mov_b64 exec, 1")
        e.i("buffer_atomic_add v%d, v%d, s[%d:%d], s%d offen sc0" % (vA, vM, sWS, sWS + 3, sT0))
        e.i("s_mov_b64 exec, -1")

        def poll():
            e.i("buffer_load_dwordx2 v[%d:%d], v%d, s[%d:%d], s%d offen sc1" % (QS, QS + 1, vC, sWS, sWS + 3, sT1))
            for t in range(NSPLIT):
                e.i("buffer_load_dwordx4 v[%d:%d], v%d, s[%d:%d], %s offen offset:%d sc1" % (RING + 4 * t, RING + 4 * t + 3, vB, sWS, sWS + 3, "s%d" % (sL0 if t < 8 else sEx), (t % 8) * 512))

        def stamp_a():
            if STAMP:
                e.i("s_memrealtime s[16:17]")
                e.i("s_waitcnt lgkmcnt(0)")
                e.i("v_mov_b32 v%d, s12" % (A + 8))
                e.i("v_mov_b32 v%d, s12" % (A + 9))
                e.i("v_mov_b32 v%d, s16" % (A + 10))
                e.i("v_mov_b32 v%d, 0" % (A + 11))
                e.i("s_lshl_b32 s18, s2, 4")
                e.i("s_add_u32 s18, s18, %d" % (10 << 20))
                e.i("v_mov_b32 v%d, 0" % (A + 12))
                e.i("s_mov_b32 s19, 0")

        def stamp_b():
            if STAMP:
                e.i("buffer_store_dwordx4 v[%d:%d], v%d, s[%d:%d], s18 offen" % (A + 8, A + 11, A + 12, sWS, sWS + 3))

        if SPEC < 8:
            if SPEC > 0:
                e.i("s_cmp_lt_u32 s%d, %d" % (sXadd, len(GS) + SPEC))
                e.i("s_cbranch_scc1 L_nospec")
            poll()
            e.i("s_waitcnt vmcnt(%d)" % (NSPLIT + 1))
            stamp_a()
            e.i("v_readfirstlane_b32 s%d, v%d" % (sT0, vA))
            e.i("s_cmp_eq_u32 s%d, %d" % (sT0, NSPLIT - 1))
            e.i("s_cbranch_scc1 L_check")
            stamp_b()
            e.i("s_endpgm")
        if SPEC > 0:
            e.label("L_nospec")
            e.i("s_waitcnt vmcnt(0)")
            stamp_a()
            e.i("v_readfirstlane_b32 s%d, v%d" % (sT0, vA))
            e.i("s_cmp_eq_u32 s%d, %d" % (sT0, NSPLIT - 1))
            e.i("s_cbranch_scc1 L_poll")
            stamp_b()
            e.i("s_endpgm")
        e.label("L_poll")
        if STAMP:
            e.i("s_add_u32 s19, s19, 1")
        poll()
        e.label("L_check")
        e.i("s_waitcnt vmcnt(%d)" % NSPLIT)
        e.i("v_max_f32_dpp v%d, v%d, v%d row_ror:8 row_mask:0xf bank_mask:0xf" % (vS, QS, QS))
        e.i("v_min_u32 v%d, v%d, v%d" % (vZm, QS, QS + 1))
        for rr in (4, 2, 1):
            e.i("v_max_f32_dpp v%d, v%d, v%d row_ror:%d row_mask:0xf bank_mask:0xf" % (vS, vS, vS, rr))
        e.i("v_sub_f32 v%d, v%d, v%d" % (vW, QS, vS))
        e.i("v_exp_f32 v%d, v%d" % (vW, vW))
        e.i("v_mul_f32 v%d, v%d, v%d" % (vS, vW, QS + 1))
        for rr in (8, 4, 2, 1):
            e.i("v_add_f32_dpp v%d, v%d, v%d row_ror:%d row_mask:0xf bank_mask:0xf" % (vS, vS, vS, rr))
        e.i("v_rcp_f32 v%d, v%d" % (vS, vS))
        e.i("v_mul_f32 v%d, v%d, v%d" % (vW, vW, vS))
        for t in range(NSPLIT):
            if t % 4 == 0:
                e.i("s_waitcnt vmcnt(%d)" % (NSPLIT - 4 - t))
            r = RING + 4 * t
            e.i("v_min3_u32 v%d, v%d, v%d, v%d" % (vZm, vZm, r, r + 1))
            e.i("v_min3_u32 v%d, v%d, v%d, v%d" % (vZm, vZm, r + 2, r + 3))
            for c in range(4):
                e.i("v_%s_f32_dpp v%d, v%d, v%d row_newbcast:%d row_mask:0xf bank_mask:0xf" % ("mul" if t == 0 else "fmac", OT + c, vW, r + c, t))
        e.i("v_cmp_eq_u32 vcc, 0, v%d" % vZm)
        e.i("v_cvt_pk_bf16_f32 v%d, v%d, v%d" % (OT, OT, OT + 1))
        e.i("v_cvt_pk_bf16_f32 v%d, v%d, v%d" % (OT + 1, OT + 2, OT + 3))
        e.i("s_nop 2")
        e.i("s_cbranch_vccnz L_poll")
        e.i("buffer_store_dwordx2 v[%d:%d], v%d, s[%d:%d], s%d offen" % (OT, OT + 1, vVS, sK, sK + 3, sEx + 1))
        if STAMP:
            e.i("s_memrealtime s[16:17]")
            e.i("s_waitcnt lgkmcnt(0)")
            e.i("v_mov_b32 v%d, s16" % (A + 11))
            e.i("s_mul_i32 s19, s19, 100")
            e.i("v_add_u32 v%d, s19, v%d" % (A + 9, A + 9))
            stamp_b()
    elif FUSE:
        pass
        vA, vB, vC = vP, vP + 1, vPP
        e.i("s_lshl_b32 s%d, s%d, 9" % (sT0, sSplit))
        e.i("v_subrev_u32 v%d, s%d, v%d" % (vB, sT0, vT2))
        e.i("s_lshl_b32 s%d, s%d, 3" % (sT0, sSplit))
        e.i("v_subrev_u32 v%d, s%d, v%d" % (vC, sT0, vT3))
        if WSC:
            e.i("s_mul_i32 s%d, s%d, %d" % (sT0, sKVH, CSTR))
            e.i("s_add_u32 s%d, s%d, %d" % (sT0, sT0, CB + 64 * CSTR))
        else:
            e.i("s_lshl_b32 s%d, s%d, 2" % (sT0, sKVH))
            e.i("s_add_u32 s%d, s%d, 128" % (sT0, sT0))
        e.i("v_mov_b32 v%d, 1" % vA)
        e.i("v_mov_b32 v%d, 0" % vM)
        e.i("s_waitcnt vmcnt(0)")
        if STAMP:
            e.i("s_memrealtime s[14:15]")
        e.i("s_mov_b64 exec, 1")
        sCT = sWS if WSC else sDBG
        e.i("buffer_atomic_add v%d, v%d, s[%d:%d], s%d offen sc0" % (vA, vM, sCT, sCT + 3, sT0))
        e.i("s_mov_b64 exec, -1")
        e.i("s_waitcnt vmcnt(0)")
        if STAMP:
            e.i("s_memrealtime s[16:17]")
            e.i("s_waitcnt lgkmcnt(0)")
            e.i("v_mov_b32 v%d, s12" % (A + 8))
            e.i("v_mov_b32 v%d, s14" % (A + 9))
            e.i("v_mov_b32 v%d, s16" % (A + 10))
            e.i("v_mov_b32 v%d, 0" % (A + 11))
            e.i("s_lshl_b32 s18, s2, 4")
            e.i("s_add_u32 s18, s18, %d" % (10 << 20))
            e.i("v_mov_b32 v%d, 0" % (A + 12))
            e.i("buffer_store_dwordx4 v[%d:%d], v%d, s[%d:%d], s18 offen" % (A + 8, A + 11, A + 12, sWS, sWS + 3))
        e.i("v_readfirstlane_b32 s%d, v%d" % (sT0, vA))
        e.i("s_cmp_lg_u32 s%d, %d" % (sT0, NSPLIT - 1))
        e.i("s_cbranch_scc1 L_done1")
        for t in range(NSPLIT):
            e.i("buffer_load_dwordx2 v[%d:%d], v%d, s[%d:%d], s%d offen offset:%d sc1" % (QS + 2 * t, QS + 2 * t + 1, vC, sWS, sWS + 3, sT1, 8 * t))
        e.i("s_mov_b32 s%d, 4096" % sT0)
        for t in range(NSPLIT):
            e.i("buffer_load_dwordx4 v[%d:%d], v%d, s[%d:%d], %s offen offset:%d sc1" % (RING + 4 * t, RING + 4 * t + 3, vB, sWS, sWS + 3, "0" if t < 8 else "s%d" % sT0, (t % 8) * 512))
        e.i("s_mov_b32 s%d, s%d" % (sK, pout))
        e.i("s_mov_b32 s%d, s%d" % (sK + 1, pout + 1))
        e.i("s_mov_b32 s%d, 8192" % (sK + 2))
        e.i("s_mov_b32 s%d, 0x00020000" % (sK + 3))
        e.i("s_lshl_b32 s%d, s%d, 9" % (sT0, sKVH))
        e.i("v_lshlrev_b32 v%d, 3, v%d" % (vT2, vLane))
        e.i("s_waitcnt vmcnt(%d)" % NSPLIT)
        e.i("v_mov_b32 v%d, v%d" % (vT0, QS))
        for w in range(1, NSPLIT):
            e.i("v_max_f32 v%d, v%d, v%d" % (vT0, vT0, QS + 2 * w))
        for w in range(NSPLIT):
            e.i("v_sub_f32 v%d, v%d, v%d" % (QS + 2 * w, QS + 2 * w, vT0))
        for w in range(NSPLIT):
            e.i("v_exp_f32 v%d, v%d" % (QS + 2 * w, QS + 2 * w))
        e.i("v_mul_f32 v%d, v%d, v%d" % (vT1, QS, QS + 1))
        for w in range(1, NSPLIT):
            e.i("v_fmac_f32 v%d, v%d, v%d" % (vT1, QS + 2 * w, QS + 2 * w + 1))
        e.i("v_rcp_f32 v%d, v%d" % (vT1, vT1))
        e.i("s_waitcnt vmcnt(0)")
        for c in range(4):
            e.i("v_mul_f32 v%d, v%d, v%d" % (RING + c, RING + c, QS))
        for w in range(1, NSPLIT):
            for c in range(4):
                e.i("v_fmac_f32 v%d, v%d, v%d" % (RING + c, RING + 4 * w + c, QS + 2 * w))
        for c in range(4):
            e.i("v_mul_f32 v%d, v%d, v%d" % (RING + c, RING + c, vT1))
        e.i("v_cvt_pk_bf16_f32 v%d, v%d, v%d" % (RING, RING, RING + 1))
        e.i("v_cvt_pk_bf16_f32 v%d, v%d, v%d" % (RING + 1, RING + 2, RING + 3))
        e.i("buffer_store_dwordx2 v[%d:%d], v%d, s[%d:%d], s%d offen" % (RING, RING + 1, vT2, sK, sK + 3, sT0))
        if STAMP:
            e.i("s_memrealtime s[16:17]")
            e.i("s_waitcnt lgkmcnt(0)")
            e.i("v_mov_b32 v%d, s16" % (A + 8))
            e.i("v_mov_b32 v%d, 0" % (A + 12))
            e.i("buffer_store_dword v%d, v%d, s[%d:%d], s18 offen offset:12" % (A + 8, A + 12, sWS, sWS + 3))
    e.raw("L_done1:")
    e.i("s_endpgm")
    if WSC:
        e.label("L_init")
        e.i("s_cmp_lg_u32 s2, %d" % (NWG if WSC == 1 else 100000))
        e.i("s_cbranch_scc1 L_done1")
        e.i("s_load_dwordx4 s[60:63], s[0:1], 8")
        e.i("s_load_dwordx4 s[%d:%d], s[0:1], 64" % (sPtr + 16, sPtr + 19))
        e.i("v_lshrrev_b32 v6, 6, v0")
        e.i("v_mul_u32_u24 v2, %d, v0" % CSTR)
        e.i("v_readfirstlane_b32 s%d, v6" % sWave)
        e.i("v_lshlrev_b32 v6, 2, v6")
        e.i("v_mov_b32 v3, 0")
        e.i("v_mov_b32 v5, 1")
        for srd, n in ((sWS, 1 << 24), (sDBG, 256), (sK, 1 << 29)):
            e.i("s_mov_b32 s%d, %d" % (srd + 2, n))
            e.i("s_mov_b32 s%d, 0x00020000" % (srd + 3))
        e.i("s_mul_i32 s21, s%d, %d" % (sWave, 3 << 24))
        e.i("s_add_u32 s21, s21, %d" % ((2 << 24) + (2 << 21) + (7 << 18)))
        e.i("s_mov_b32 s20, 0")
        e.i("s_mov_b32 s22, 1")
        e.i("s_waitcnt lgkmcnt(0)")
        for srd, p_ in ((sWS, pws), (sDBG, pdbg)):
            e.i("s_mov_b32 s%d, s%d" % (srd, p_))
            e.i("s_mov_b32 s%d, s%d" % (srd + 1, p_ + 1))
        e.i("s_cmp_lt_u32 s%d, 2" % sWave)
        e.i("s_cselect_b32 s%d, s60, s62" % sK)
        e.i("s_cselect_b32 s%d, s61, s63" % (sK + 1))
        e.i("s_buffer_load_dword s40, s[%d:%d], s21 offset:%d" % (sK, sK + 3, 63 * 128))
        e.i("s_cmp_lg_u32 s%d, 0" % sWave)
        e.i("s_cbranch_scc1 L_pr")
        e.i("s_mov_b64 exec, 1")
        e.i("buffer_atomic_add v5, v3, s[%d:%d], 0 offen offset:4 sc0" % (sDBG, sDBG + 3))
        e.i("s_mov_b64 exec, -1")
        e.label("L_pr")
        for i in range(NP):
            if i == 2:
                e.i("s_cmp_lg_u32 s%d, 0" % sWave)
                e.i("s_cbranch_scc1 L_pr2")
                e.i("s_waitcnt vmcnt(0)")
                e.i("v_readfirstlane_b32 s22, v5")
                e.i("s_cmp_lg_u32 s22, 0")
                e.i("s_cbranch_scc1 L_pr2")
                e.i("s_mov_b32 s%d, %d" % (sT1, CB))
                e.i("buffer_store_dword v3, v2, s[%d:%d], s%d offen sc1" % (sWS, sWS + 3, sT1))
                e.i("s_mov_b32 s%d, %d" % (sT1, CB + 64 * CSTR))
                e.i("buffer_store_dword v3, v2, s[%d:%d], s%d offen sc1" % (sWS, sWS + 3, sT1))
                e.label("L_pr2")
            for cc in range(2):
                c = cc ^ (i & 1)
                p_ = i % 16
                l_ = ((i >> 4) * 4 + p_ * 37) % 64
                e.i("s_waitcnt lgkmcnt(0)")
                e.i("s_memtime s[26:27]")
                e.i("s_waitcnt lgkmcnt(0)")
                e.i("s_buffer_load_dword s40, s[%d:%d], s21 offset:%d" % (sK, sK + 3, (p_ << 14) + (c << 13) + l_ * 128))
                e.i("s_waitcnt lgkmcnt(0)")
                e.i("s_memtime s[28:29]")
                e.i("s_waitcnt lgkmcnt(0)")
                e.i("s_sub_u32 s30, s28, s26")
                e.i("s_min_u32 s30, s30, %d" % CLIP)
                e.i("%s s20, s20, s30" % ("s_sub_i32" if c else "s_add_i32"))
        e.i("v_mov_b32 v7, s20")
        e.i("ds_write_b32 v6, v7")
        e.i("s_waitcnt lgkmcnt(0)")
        e.i("s_barrier")
        e.i("s_cmp_lg_u32 s22, 0")
        e.i("s_cbranch_scc1 L_done1")
        e.i("ds_read_b128 v[8:11], v3")
        e.i("s_getreg_b32 s23, hwreg(HW_REG_XCC_ID, 2, 1)")
        e.i("s_waitcnt lgkmcnt(0)")
        e.i("v_add_u32 v8, v8, v9")
        e.i("v_add_u32 v10, v10, v11")
        e.i("v_readfirstlane_b32 s24, v8")
        e.i("v_readfirstlane_b32 s25, v10")
        e.i("s_cmp_gt_i32 s24, 0")
        e.i("s_cselect_b32 s24, 1, 0")
        e.i("s_cmp_gt_i32 s25, 0")
        e.i("s_cselect_b32 s25, 1, 0")
        e.i("s_xor_b32 s23, s23, s24")
        e.i("s_cmp_eq_u32 s24, s25")
        e.i("s_cselect_b32 s23, s23, 2")
        if FORCE >= 0:
            e.i("s_mov_b32 s23, %d" % FORCE)
        e.i("s_add_u32 s23, s23, 1")
        e.i("v_mov_b32 v4, s23")
        e.i("s_waitcnt vmcnt(0)")
        e.i("s_mov_b64 exec, 1")
        e.i("buffer_store_dword v4, v3, s[%d:%d], 0 offen sc1" % (sDBG, sDBG + 3))
        e.i("s_endpgm")
    k1 = e.text()


    hdr = open("cdna_kernels/%s.s.ref" % NAME).read().split("; Override launch geometry")[0]
    out = hdr
    if not LIST:
        out += "; @launch grid=(%d,1,1) block=(%d,1,1) lds=%d\n" % (NWG + (1 if WSC else 0), WPW * 64, LDS)
    else:
        out += "; @launch kernel=%s_kernel grid=(%d,1,1) block=(%d,1,1) lds=%d\n" % (NAME, NWG + (1 if WSC else 0), WPW * 64, LDS)
    out += '.amdgcn_target "amdgcn-amd-amdhsa--gfx950"\n.text\n'
    out += ".globl %s_kernel\n.p2align 8\n.type %s_kernel,@function\n" % (NAME, NAME)
    out += k1
    out += '.section .rodata,"a"\n'
    out += (".p2align 6\n.amdhsa_kernel %s\n  .amdhsa_next_free_vgpr %d\n  .amdhsa_next_free_sgpr %d\n"
            "  .amdhsa_accum_offset %d\n  .amdhsa_group_segment_fixed_size 0\n  .amdhsa_kernarg_size 80\n"
            "  .amdhsa_user_sgpr_count 2\n  .amdhsa_user_sgpr_kernarg_segment_ptr 1\n"
            "  .amdhsa_system_sgpr_workgroup_id_x 1\n.end_amdhsa_kernel\n") % (NAME + "_kernel", VG, 100, (VG + 3) // 4 * 4)
    mv = max([int(x) for x in re.findall(r"\bv(\d+)\b", k1)] + [int(x) for x in re.findall(r"v\[\d+:(\d+)\]", k1)])
    ms = max([int(x) for x in re.findall(r"\bs(\d+)\b", k1)] + [int(x) for x in re.findall(r"s\[\d+:(\d+)\]", k1)])
    assert mv < VG <= 256 and ms < 100, (mv, VG, ms)
    return out


def parse_gs(s):
    out = []
    for part in s.split(","):
        if "x" in part:
            v, n = part.split("x")
            out += [int(v)] * int(n)
        else:
            out.append(int(part))
    return out


if __name__ == "__main__":
    ap = argparse.ArgumentParser()
    ap.add_argument("--gs", default="4x58,2x4,1x16")
    ap.add_argument("--ns", type=int, default=3)
    ap.add_argument("--stamp", type=int, default=0)
    ap.add_argument("--wsc", type=int, default=1)
    ap.add_argument("--late", type=int, default=16)
    ap.add_argument("--bar8", type=int, default=8)
    ap.add_argument("--thr", type=int, default=1400)
    ap.add_argument("--inv", type=int, default=0)
    ap.add_argument("--numa", type=int, default=1)
    ap.add_argument("--skip", type=int, default=16)
    ap.add_argument("--np", type=int, default=10)
    ap.add_argument("--clip", type=int, default=3000)
    ap.add_argument("--force", type=int, default=-1)
    ap.add_argument("--flj", type=int, default=0)
    ap.add_argument("--fixr", type=int, default=0)
    ap.add_argument("-o", required=True)
    a_ = ap.parse_args()
    s = gen(GS=parse_gs(a_.gs), NS=a_.ns, STAMP=a_.stamp, WSC=a_.wsc, LATE=a_.late, BAR8=a_.bar8, THR=a_.thr, INV=a_.inv, NUMA=a_.numa, SKIP=a_.skip, NP=a_.np, CLIP=a_.clip, FORCE=a_.force, FLJ=a_.flj, FIXR=a_.fixr)
    open(a_.o, "w").write(s)
    print("wrote", a_.o, len(s), "bytes")
```

```python
import re
import sys
import struct
import argparse

NAME = "standalone__kv_cache_quant_int4_int2_kv_with_per_channel_or_per_token_scales__decode"


def f2u(x):
    return struct.unpack("<I", struct.pack("<f", x))[0]


REG_RE = re.compile(r"\b([vs])(\d+)\b|\b([vs])\[(\d+):(\d+)\]|\b(vcc)\b")


def regs_of(op):
    out = set()
    for m in REG_RE.finditer(op):
        if m.group(1):
            out.add((m.group(1), int(m.group(2))))
        elif m.group(3):
            for r in range(int(m.group(4)), int(m.group(5)) + 1):
                out.add((m.group(3), r))
        else:
            out.add(("vcc", 0))
    return out


TRANS = ("v_exp_f32", "v_log_f32", "v_rcp_f32", "v_rsq_f32", "v_sqrt_f32")


class Emit:
    def __init__(self):
        self.lines = []
        self.hist = []

    def raw(self, s):
        self.lines.append(s)

    def label(self, s):
        self.i("s_nop 4")
        self.lines.append(s + ":")
        self.hist = []

    def comment(self, s):
        self.lines.append("    ; " + s)

    def i(self, text):
        text = text.strip()
        mn = text.split()[0]
        rest = text[len(mn):].strip()
        ops = [o.strip() for o in rest.split(",")] if rest else []
        clean = []
        for o in ops:
            clean.append(o.split()[0] if o.split() else o)
        ops = clean
        is_valu = mn.startswith("v_")
        is_vmem = mn.startswith("buffer_") or mn.startswith("global_")
        is_dpp = "_dpp" in mn
        is_perm = mn.startswith("v_permlane")
        is_rl = mn.startswith("v_readlane") or mn.startswith("v_readfirstlane")
        writes, reads = set(), set()
        if is_valu:
            if is_perm:
                writes = regs_of(ops[0]) | regs_of(ops[1])
                reads = set(writes)
            else:
                writes = regs_of(ops[0])
                for o in ops[1:]:
                    reads |= regs_of(o)
                if "fmac" in mn or is_dpp:
                    reads |= regs_of(ops[0])
                if mn.startswith("v_cndmask") and len(ops) == 3:
                    reads.add(("vcc", 0))
        elif is_vmem:
            for o in ops:
                reads |= regs_of(o)
        elif mn.startswith("ds_"):
            for o in ops:
                reads |= regs_of(o)
        else:
            for o in ops:
                reads |= regs_of(o)
        need = 0
        for dist, h in enumerate(reversed(self.hist)):
            req = 0
            if h["valu"]:
                vw = {r for r in h["writes"] if r[0] == "v"}
                sw = {r for r in h["writes"] if r[0] in ("s", "vcc")}
                if (is_dpp or is_perm) and (vw & reads):
                    req = max(req, 2)
                if is_rl and (vw & reads):
                    req = max(req, 1)
                if is_valu and (sw & reads):
                    req = max(req, 4 if is_rl else 2)
                if is_vmem and (sw & reads):
                    req = max(req, 5)
                if (not is_valu) and (not is_vmem) and (sw & reads):
                    req = max(req, 4)
                if h["trans"] and is_valu and (vw & reads):
                    req = max(req, 1)
            if h["wide_store"] and is_valu and (h["reads"] & writes):
                req = max(req, 2)
            need = max(need, req - h["after"])
        if need > 0:
            self._push("s_nop %d" % (need - 1), need, dict(valu=False, writes=set(), reads=set(), trans=False, wide_store=False))
        wide = is_vmem and "store" in mn and ("x4" in mn or "x3" in mn)
        self._push(text, 1, dict(valu=is_valu, writes=writes, reads=reads, trans=mn.startswith(TRANS), wide_store=wide))

    def _push(self, text, states, info):
        if text.startswith("s_nop"):
            states = int(text.split()[1]) + 1
        for h in self.hist:
            h["after"] += states
        info["after"] = 0
        self.hist.append(info)
        self.hist = [h for h in self.hist if h["after"] < 8]
        self.lines.append("    " + text)

    def text(self):
        return "\n".join(self.lines) + "\n"


def gen(BAR=8, GS=None, NS=3, STAMP=0, LIST=1, WSC=1, CSTR=4096, LATE=16, NTF=' nt', BAR8=8, THR=1400, INV=0, NUMA=1, SKIP=16, NP=10, CLIP=3000, FORCE=-1, FLJ=-1, FIXR=0, MARG=110, LOW=800, NET=3, CONC=0, DBGS=0):
    EXACT = 1; LASTBAR = 1; MAPD = 1; FAKE = 0; FROT = 0; SPLIT8 = 1; GOFF = 0; PLS = 0; MBX = 0; SPEC = 0; MBR = 0; PT = 0; HLP = 0
    R = 16
    WPW = 4
    NWG = 256
    NSPLIT = 16
    LOG_WPW = 2
    LOG_NSPLIT = 4
    CSCALE = (128.0 ** -0.5) * 1.4426950408889634
    ntf = NTF
    assert BAR == 8 and (BAR8 in (2, 4, 8) or (BAR8 == 16 and LATE == 8))
    D0 = 16

    e = Emit()
    vLoff, vSoff, vLdsW, vLdsR = 0, 1, 2, 3
    vM = 4
    vT0, vT1, vT2 = 6, 7, 5
    vL = 8
    vZ = 10
    vVS = 12
    vP = 14
    vPP = 16
    vLane = 18
    vT3 = 19
    QS = 20
    O = 52
    A = 84
    RING = 100
    NV = RING + 4 * R
    vStamp = NV
    if STAMP >= 2:
        NV += 1
    vTk, vSL, vTab, vSoffD, vVSn, vVSn1, vFl = range(NV, NV + 7)
    NV += 7
    CB = 12 << 20
    MBXB = 32 * NSPLIT * 512 + 32 * NSPLIT * 8
    assert not MBX or (WSC and (len(GS) <= 60 or SPEC in (0, 8)))
    MBO = (CB + (256 << 10)) if MBR else 0
    assert not MBR or (MBX and 48 * CSTR <= (256 << 10))
    VG = max(NV, RING + 64)
    DT = 32
    assert LATE and WSC and NS >= 2
    assert sum(GS) == 8 * DT and all(x in (1, 2, 4) for x in GS) and all(GS[k] >= GS[k + 1] for k in range(len(GS) - 1))
    st = [0]
    for n_ in GS:
        st.append(st[-1] + n_)
    assert all(st[k] % GS[k] == 0 for k in range(len(GS)))
    NB = sum(1 for x in GS if x == 4)
    st = st[NB:]
    assert len(st) <= 61 and NB >= 4 * NS
    POW2 = DT & (DT - 1) == 0
    if not POW2:
        DSH = 16
        DM = (1 << DSH) // DT + 1
        assert all((u * DM) >> DSH == u // DT for u in range(8 * DT + 1))
    TICKOFF = WPW * 512 + WPW * 1024 + WPW * 16
    SCB = TICKOFF + 16
    PR = DT * 128
    VZD = 0
    if PLS:
        GOFF = 1
    CNTOFF = TICKOFF + 4
    RT = 64 * WPW
    GSTR = 16 * WPW
    GB = GSTR * 512
    NSL = 2

    def qs(sc):
        return "v[%d:%d]" % (QS + 2 * sc, QS + 2 * sc + 1)

    def o(sc):
        return "v[%d:%d]" % (O + 2 * sc, O + 2 * sc + 1)

    def a(i):
        return "v[%d:%d]" % (A + 2 * i, A + 2 * i + 1)

    def ring(slot):
        return RING + 4 * slot

    sK, sV, sVS, sVZ = 8, 12, 16, 20
    sQ, sKS, sKZ, sWS = 24, 28, 32, 36
    sX = 24
    sXoff, sGn, sXadd = 28, 29, 30
    sMaskE = 32
    sWoff = 34
    sFl = 35
    sPW = 31
    sKoff, sVoff, sSoff, sCnt = 40, 41, 42, 43
    sMask1, sMask0 = 44, 46
    sM0, sM1 = 48, 49
    sF = 50
    sC0, sC1 = 52, 53
    sWave, sGW, sKVH, sRB, sT0, sT1 = 54, 55, 56, 57, 58, 59
    sPtr = 60
    sL0, sZ0, sL1, sZ1 = 80, 81, 82, 83
    sSplit = 84
    sEx = 86
    sQi = 94
    sDBG = 4
    sCur, sTkt, sD0, sD1, sBar = 95, 85, 91, 92, 93
    sTm, sPref, sSw, sHold, sTprev, sCls, sReqC = 60, 62, 63, 64, 65, 66, 67
    sHB, sCid, sSub = 31, 93, 3
    sW8, sMix2, sLow, sGB = 72, 73, 68, 69
    vTok2 = vSL
    sFix = sCid

    def load(slot, srd, so, seg, extra=()):
        r = ring(slot)
        e.i("buffer_load_dwordx4 v[%d:%d], v%d, s[%d:%d], s%d offen offset:%d%s" % (r, r + 3, vLoff, srd, srd + 3, so, seg * 128, ntf))
        if seg == 3:
            for s_ in (so,) + tuple(extra):
                e.i("s_add_u32 s%d, s%d, s%d" % (s_, s_, sGB))

    def issue_own(G, j):
        if j < 4 * G:
            load(j % R, sK, sKoff, j % 4)
        else:
            load(j % R, sV, sVoff, j % 4)

    def issue_next(i):
        if i < 8:
            load(i % R, sK, sKoff, i % 4)
        else:
            load(i % R, sX, sXoff, i % 4, extra=(sKoff,))

    pq, pqk, pqv, pks, pkz, pvs, pvz, pout, pdbg, pws = [sPtr + 2 * k for k in range(10)]

    e.raw("%s_kernel:" % NAME)
    e.i("s_cmp_ge_u32 s2, %d" % NWG)
    e.i("s_cbranch_scc1 %s" % ("L_init" if WSC else "L_done1"))
    if STAMP:
        e.i("s_memrealtime s[88:89]")
    e.i("s_load_dwordx16 s[%d:%d], s[0:1], 0" % (sPtr, sPtr + 15))
    e.i("s_load_dwordx4 s[%d:%d], s[0:1], 64" % (sPtr + 16, sPtr + 19))
    e.i("v_lshrrev_b32 v%d, 6, v0" % vT0)
    e.i("v_and_b32 v%d, 63, v0" % vLane)
    e.i("v_readfirstlane_b32 s%d, v%d" % (sWave, vT0))
    e.i("v_lshrrev_b32 v%d, 3, v%d" % (vT0, vLane))
    e.i("v_and_b32 v%d, 7, v%d" % (vT1, vLane))
    e.i("v_lshlrev_b32 v%d, 9, v%d" % (vLoff, vT0))
    e.i("v_lshl_add_u32 v%d, v%d, 4, v%d" % (vLoff, vT1, vLoff))
    e.i("s_lshr_b32 s%d, s2, 3" % sQi)
    e.i("s_lshl_b32 s%d, s%d, 24" % (sRB, sQi))
    assert NS % 2 == 0 and len(GS) % 8 == 0 and not FIXR
    e.i("s_and_b32 s%d, s2, 7" % sSub)
    e.i("s_lshr_b32 s%d, s2, 7" % sT1)
    if INV:
        e.i("s_xor_b32 s%d, s%d, 1" % (sT1, sT1))
    e.i("s_lshl_b32 s%d, s%d, 3" % (sTkt, sWave))
    if FIXR:
        assert NS in (4, 8)
        e.i("s_lshl_b32 s%d, s%d, 1" % (sSub, sSub))
    e.i("s_lshl_b32 s%d, s%d, 12" % (sCur, sSub))
    e.i("s_lshr_b32 s%d, s%d, 1" % (sT0, sWave))
    e.i("s_lshl_b32 s%d, s%d, 5" % (sT0, sT0))
    e.i("s_and_b32 s%d, s%d, 1" % (sD1, sWave))
    e.i("s_lshl_b32 s%d, s%d, 3" % (sD1, sD1))
    e.i("s_add_u32 s%d, s%d, s%d" % (sD1, sD1, sT0))
    e.i("s_mov_b32 s%d, s%d" % (sD0, sT1))
    e.i("s_add_u32 s%d, s%d, s%d" % (sCur, sCur, sTkt))
    e.i("s_lshl_b32 s%d, s%d, 9" % (sKoff, sCur))
    e.i("s_lshl_b32 s%d, s%d, 9" % (sVoff, sCur))
    for srd in (sK, sV):
        e.i("s_mov_b32 s%d, %d" % (srd + 2, 32768 * 512))
        e.i("s_mov_b32 s%d, 0x00020000" % (srd + 3))
    e.i("v_lshrrev_b32 v%d, 2, v%d" % (vT2, vT1))
    e.i("v_and_b32 v%d, 2, v%d" % (vT3, vT1))
    e.i("v_add_u32 v%d, v%d, v%d" % (vT2, vT2, vT3))
    e.i("v_and_b32 v%d, 1, v%d" % (vT3, vT1))
    e.i("v_lshl_add_u32 v%d, v%d, 2, v%d" % (vT2, vT3, vT2))
    e.i("v_mov_b32 v%d, v%d" % (vSoff, vT2))
    e.i("v_lshlrev_b32 v%d, 1, v%d" % (vTok2, vT0))
    e.i("v_lshl_add_u32 v%d, v%d, 6, v%d" % (vSoffD, vT2, vTok2))
    e.i("s_lshl_b32 s%d, s%d, 9" % (sT0, sWave))
    e.i("v_lshlrev_b32 v%d, 6, v%d" % (vLdsR, vT0))
    e.i("v_add_u32 v%d, s%d, v%d" % (vLdsR, sT0, vLdsR))
    e.i("v_lshl_add_u32 v%d, v%d, 3, v%d" % (vLdsW, vT2, vLdsR))
    e.i("s_mov_b32 s%d, 0xcccccccc" % sMask1)
    e.i("s_mov_b32 s%d, 0xcccccccc" % (sMask1 + 1))
    e.i("s_mov_b32 s%d, 0xaaaaaaaa" % sMask0)
    e.i("s_mov_b32 s%d, 0xaaaaaaaa" % (sMask0 + 1))
    e.i("s_lshl_b32 s%d, s2, %d" % (sGW, LOG_WPW))
    e.i("s_add_u32 s%d, s%d, s%d" % (sGW, sGW, sWave))
    e.i("s_lshr_b32 s%d, s2, 4" % sKVH)
    e.i("s_and_b32 s%d, s2, %d" % (sSplit, NSPLIT - 1))
    e.i("s_cmp_eq_u32 s%d, 0" % sWave)
    e.i("s_cselect_b32 s%d, %d, 1000" % (sTkt, NS - 1 if FAKE != 1 else 1000))
    e.i("v_lshlrev_b32 v%d, 3, v%d" % (vT3, vT1))
    e.i("v_lshlrev_b32 v%d, 4, v%d" % (vT0, vLane))
    for srd, n in ((sVS, 65536), (sVZ, 65536), (sQ, 8192), (sKS, 8192), (sKZ, 8192), (sWS, 1 << 24), (sDBG, 256)):
        e.i("s_mov_b32 s%d, %d" % (srd + 2, n))
        e.i("s_mov_b32 s%d, 0x00020000" % (srd + 3))
    e.i("s_waitcnt lgkmcnt(0)")
    if STAMP >= 2:
        e.i("s_mov_b32 s98, 0")
        e.i("v_mov_b32 v%d, 0" % vStamp)
        e.i("s_memtime s[96:97]")
        e.i("s_waitcnt lgkmcnt(0)")
        e.i("v_writelane_b32 v%d, s96, 63" % vStamp)
        e.i("s_memrealtime s[96:97]")
        e.i("s_waitcnt lgkmcnt(0)")
        e.i("v_writelane_b32 v%d, s96, 61" % vStamp)
    for srd, p in ((sK, pqk), (sV, pqv)):
        e.i("s_add_u32 s%d, s%d, s%d" % (srd, p, sRB))
        e.i("s_addc_u32 s%d, s%d, 0" % (srd + 1, p + 1))
    e.i("s_lshl_b32 s%d, s%d, 16" % (sT0, sQi))
    for srd, p in ((sVS, pvs), (sVZ, pvz)):
        e.i("s_add_u32 s%d, s%d, s%d" % (srd, p, sT0))
        e.i("s_addc_u32 s%d, s%d, 0" % (srd + 1, p + 1))
    for srd, p in ((sQ, pq), (sKS, pks), (sKZ, pkz), (sWS, pws), (sDBG, pdbg)):
        e.i("s_mov_b32 s%d, s%d" % (srd, p))
        e.i("s_mov_b32 s%d, s%d" % (srd + 1, p + 1))
    e.i("s_lshl_b32 s%d, s%d, 9" % (sT0, sKVH))
    e.i("s_lshl_b32 s%d, s%d, 8" % (sT1, sQi))
    order = [("q", 0, 0), ("ks", 0, 0), ("kz", 0, 0)] + [("q", h, s_) for h in range(2) for s_ in range(4) if (h, s_) != (0, 0)] + [("ks", 0, s_) for s_ in range(1, 4)] + [("kz", 0, s_) for s_ in range(1, 4)]
    for kind, h, seg in order:
        if kind == "q":
            r = O + (h * 4 + seg) * 2
            e.i("buffer_load_dwordx2 v[%d:%d], v%d, s[%d:%d], s%d offen offset:%d" % (r, r + 1, vT3, sQ, sQ + 3, sT0, h * 256 + seg * 64))
        elif kind == "ks":
            r = O + 16 + seg * 2
            e.i("buffer_load_dwordx2 v[%d:%d], v%d, s[%d:%d], s%d offen offset:%d" % (r, r + 1, vT3, sKS, sKS + 3, sT1, seg * 64))
        else:
            r = O + 24 + seg * 2
            e.i("buffer_load_dwordx2 v[%d:%d], v%d, s[%d:%d], s%d offen offset:%d" % (r, r + 1, vT3, sKZ, sKZ + 3, sT1, seg * 64))
    e.i("s_and_b32 s%d, s2, 7" % sT0)
    e.i("s_lshl_b32 s%d, s%d, 13" % (sT0, sT0))
    e.i("s_mul_i32 s%d, s%d, %d" % (sT1, sWave, 1024 * NSL))
    e.i("s_add_u32 s%d, s%d, s%d" % (sT0, sT0, sT1))
    for k_ in range(NSL):
        e.i("buffer_load_dwordx4 v[%d:%d], v%d, s[%d:%d], s%d offen offset:%d" % (QS + 8 * k_, QS + 8 * k_ + 3, vT0, sVS, sVS + 3, sT0, 1024 * k_))
        e.i("buffer_load_dwordx4 v[%d:%d], v%d, s[%d:%d], s%d offen offset:%d" % (QS + 8 * k_ + 4, QS + 8 * k_ + 7, vT0, sVZ, sVZ + 3, sT0, 1024 * k_))
    e.i("s_lshl_b32 s%d, s%d, 1" % (sSoff, sCur))
    e.i("buffer_load_ushort v%d, v%d, s[%d:%d], s%d offen" % (vVSn, vSoffD, sVS, sVS + 3, sSoff))
    e.i("buffer_load_ushort v%d, v%d, s[%d:%d], s%d offen" % (vVSn1, vSoffD, sVZ, sVZ + 3, sSoff))
    e.i("s_mov_b32 s%d, %d" % (sGB, GB // 2))
    pool = []
    if PLS:
        assert NSL == 2
        PW = 4 if PR % 1024 == 0 else 2
        PB = 256 * PW
        free = list(range(QS + 16, QS + 32)) + list(range(A, A + 16))
        e.i("v_lshlrev_b32 v%d, %d, v%d" % (vVSn, PW.bit_length() + 1, vLane))
        e.i("s_mul_i32 s%d, s%d, %d" % (sT1, sWave, 2 * PR))
        e.i("v_add_u32 v%d, s%d, v%d" % (vVSn1, sT1, vVSn))
        e.i("s_lshl_b32 s%d, s%d, 14" % (sSoff, sWave))
        e.i("s_add_u32 s%d, s%d, %d" % (sSoff, sSoff, NS * 512))
        e.i("s_add_u32 s%d, s%d, 8192" % (sD0, sSoff))
        for rr in range(2):
            for k_ in range(PR // PB):
                for ai, srd in enumerate((sVS, sVZ)):
                    r0 = free[0]
                    assert free[:PW] == list(range(r0, r0 + PW))
                    del free[:PW]
                    e.i("buffer_load_dwordx%d v[%d:%d], v%d, s[%d:%d], s%d offen offset:%d" % (PW, r0, r0 + PW - 1, vVSn, srd, srd + 3, (sSoff, sD0)[rr], PB * k_))
                    pool.append((r0, SCB + 8192 + ai * VZD + rr * PR + PB * k_))
    for j in range(D0):
        issue_own(8, j)
    if WSC:
        e.i("s_mul_i32 s%d, s%d, %d" % (sQi, sQi, 2 * CSTR))
        e.i("s_add_u32 s%d, s%d, %d" % (sQi, sQi, CB))
    else:
        e.i("s_lshl_b32 s%d, s%d, 2" % (sQi, sQi))
    e.i("v_mov_b32 v%d, %d" % (vTab, st[-1]))
    for k_, v_ in enumerate(st[:-1]):
        if v_ <= 64:
            e.i("v_writelane_b32 v%d, %d, %d" % (vTab, v_, k_))
        else:
            e.i("s_mov_b32 s%d, %d" % (sT0, v_))
            e.i("v_writelane_b32 v%d, s%d, %d" % (vTab, sT0, k_))
    e.i("v_mov_b32 v%d, 0" % vT2)
    e.i("ds_write_b32 v%d, v%d offset:%d" % (vT2, vT2, CNTOFF))
    for r in (vL, vL + 1, vZ, vZ + 1):
        e.i("v_mov_b32 v%d, 0" % r)
    e.i("v_mov_b32 v%d, 0x%08x" % (vM, f2u(-3.0e38)))
    e.i("s_mov_b32 s%d, 0" % sCnt)
    e.i("s_mov_b32 s%d, 0x%08x" % (sT0, f2u(CSCALE)))
    e.i("s_waitcnt vmcnt(%d)" % D0)
    e.i("s_mov_b32 s%d, s%d" % (sX, sK))
    e.i("s_mov_b32 s%d, s%d" % (sX + 1, sK + 1))
    e.i("s_mov_b32 s%d, %d" % (sX + 2, 32768 * 512))
    e.i("s_mov_b32 s%d, 0x00020000" % (sX + 3))
    e.i("s_mov_b32 s%d, 4" % sGn)
    e.i("s_mov_b32 s%d, %d" % (sXadd, GB))
    e.i("s_mov_b32 s%d, 0xeeeeeeee" % sMaskE)
    e.i("s_mov_b32 s%d, 0xeeeeeeee" % (sMaskE + 1))
    e.i("s_sub_u32 s%d, s%d, %d" % (sFl, sTkt, 0 if LATE else 1))
    e.i("s_mov_b32 s%d, s%d" % (sWoff, sD1))
    e.i("s_mov_b32 s%d, s%d" % (sHB, sD0))
    e.i("s_mov_b32 s%d, 0" % sPref)
    e.i("s_mov_b32 s%d, 2" % sMix2)
    e.i("s_lshl_b32 s%d, s%d, 3" % (sW8, sWave))
    e.i("s_mov_b32 s%d, 0" % sSw)
    e.i("s_mov_b32 s%d, 0" % sHold)
    e.i("s_mov_b32 s70, 0")
    e.i("s_mov_b32 s%d, 0" % sTprev)
    e.i("s_mov_b32 s%d, 0" % sReqC)
    if PLS:
        e.i("s_lshl_b32 s%d, s%d, 4" % (sPW, sWave))
        e.i("s_add_u32 s%d, s%d, 8192" % (sPW, sPW))
        for r0, off in pool:
            e.i("ds_write_b%d v%d, v[%d:%d] offset:%d" % (32 * PW, vVSn1, r0, r0 + PW - 1, off))
        if any(r0 >= A for r0, _ in pool):
            e.i("s_waitcnt lgkmcnt(0)")
    for seg in range(4):
        for half in range(2):
            src = O + 16 + seg * 2 + half
            d0 = A + seg * 4 + half * 2
            e.i("v_lshlrev_b32 v%d, 16, v%d" % (d0, src))
            e.i("v_and_b32 v%d, 0xffff0000, v%d" % (d0 + 1, src))
    for k in range(16):
        e.i("v_mul_f32 v%d, s%d, v%d" % (A + k, sT0, A + k))
    e.i("s_waitcnt lgkmcnt(0)")
    for h in range(2):
        for seg in range(4):
            for half in range(2):
                src = O + (h * 4 + seg) * 2 + half
                sc0 = seg * 4 + half * 2
                e.i("v_lshlrev_b32 v%d, 16, v%d" % (QS + 2 * sc0 + h, src))
                e.i("v_and_b32 v%d, 0xffff0000, v%d" % (QS + 2 * (sc0 + 1) + h, src))
    for sc in range(16):
        for h in range(2):
            e.i("v_mul_f32 v%d, v%d, v%d" % (QS + 2 * sc + h, QS + 2 * sc + h, A + sc))
    for seg in range(4):
        for half in range(2):
            src = O + 24 + seg * 2 + half
            d0 = A + seg * 4 + half * 2
            e.i("v_lshlrev_b32 v%d, 16, v%d" % (d0, src))
            e.i("v_and_b32 v%d, 0xffff0000, v%d" % (d0 + 1, src))
    for h in range(2):
        t = vT0 + h
        e.i("v_mul_f32 v%d, v%d, v%d" % (t, QS + h, A))
        for sc in range(1, 16):
            e.i("v_fmac_f32 v%d, v%d, v%d" % (t, QS + 2 * sc + h, A + sc))
    for mod in ("quad_perm:[1,0,3,2]", "quad_perm:[2,3,0,1]", "row_half_mirror"):
        for h in range(2):
            t = vT0 + h
            e.i("v_add_f32_dpp v%d, v%d, v%d %s row_mask:0xf bank_mask:0xf" % (t, t, t, mod))
    e.i("v_readfirstlane_b32 s%d, v%d" % (sC0, vT0))
    e.i("v_readfirstlane_b32 s%d, v%d" % (sC1, vT1))
    for k in range(32):
        e.i("v_mov_b32 v%d, 0" % (O + k))
    FUSE = 1

    def stepA(x, y):
        for k in range(2):
            e.i("v_add_f32_dpp v%d, v%d, v%d row_half_mirror row_mask:0xf bank_mask:0x5" % (A + 2 * x + k, A + 2 * x + k, A + 2 * x + k))
        for k in range(2):
            e.i("v_add_f32_dpp v%d, v%d, v%d row_half_mirror row_mask:0xf bank_mask:0xa" % (A + 2 * x + k, A + 2 * y + k, A + 2 * y + k))

    def stepQ(x, y, mask, perm, out):
        for k in range(2):
            X, Y = A + 2 * x + k, A + 2 * y + k
            t = vT0 + k
            e.i("v_cndmask_b32 v%d, v%d, v%d, s[%d:%d]" % (t, Y, X, mask, mask + 1))
            e.i("v_cndmask_b32 v%d, v%d, v%d, s[%d:%d]" % (Y, X, Y, mask, mask + 1))
        for k in range(2):
            Y = A + 2 * y + k
            t = vT0 + k
            e.i("v_add_f32_dpp v%d, v%d, v%d %s row_mask:0xf bank_mask:0xf" % (out + k, t, Y, perm))

    def stepP(perm):
        for k in range(2):
            e.i("v_add_f32_dpp v%d, v%d, v%d %s row_mask:0xf bank_mask:0xf" % (A + k, A + k, A + k, perm))

    def softmax(G):
        S0, S1 = A, A + 1
        e.i("v_mov_b32 v%d, v%d" % (vT0, S0))
        e.i("v_mov_b32 v%d, v%d" % (vT1, S1))
        e.i("v_lshlrev_b32 v%d, 16, v%d" % (vVS, vVS))
        e.i("v_lshlrev_b32 v%d, 16, v%d" % (vVS + 1, vVS + 1))
        e.i("v_permlane32_swap_b32 v%d, v%d" % (vT0, vT1))
        e.i("v_max_f32 v%d, v%d, v%d" % (vT0, vT0, vT1))
        e.i("v_mov_b32 v%d, v%d" % (vT1, vT0))
        e.i("v_permlane16_swap_b32 v%d, v%d" % (vT0, vT1))
        e.i("v_max_f32 v%d, v%d, v%d" % (vT0, vT0, vT1))
        for rr in (8, 4, 2, 1):
            e.i("v_max_f32_dpp v%d, v%d, v%d row_ror:%d row_mask:0xf bank_mask:0xf" % (vT0, vT0, vT0, rr))
        e.i("v_max_f32 v%d, v%d, v%d" % (vT0, vT0, vM))
        e.i("v_sub_f32 v%d, v%d, v%d" % (vT1, vM, vT0))
        e.i("v_exp_f32 v%d, v%d" % (vT1, vT1))
        e.i("v_mov_b32 v%d, v%d" % (vM, vT0))
        e.i("v_readlane_b32 s%d, v%d, 0" % (sM0, vT0))
        e.i("v_readlane_b32 s%d, v%d, 32" % (sM1, vT0))
        e.i("v_readlane_b32 s%d, v%d, 0" % (sF, vT1))
        e.i("v_readlane_b32 s%d, v%d, 32" % (sF + 1, vT1))
        e.i("v_subrev_f32 v%d, s%d, v%d" % (vP, sM0, S0))
        e.i("v_subrev_f32 v%d, s%d, v%d" % (vP + 1, sM1, S1))
        e.i("v_exp_f32 v%d, v%d" % (vP, vP))
        e.i("v_exp_f32 v%d, v%d" % (vP + 1, vP + 1))
        if G < 8:
            mk = sMask0 if G == 4 else sMaskE
            for k in range(2):
                e.i("v_cndmask_b32 v%d, v%d, 0, s[%d:%d]" % (vP + k, vP + k, mk, mk + 1))
        P = "v[%d:%d]" % (vP, vP + 1)
        PP = "v[%d:%d]" % (vPP, vPP + 1)
        L = "v[%d:%d]" % (vL, vL + 1)
        Z = "v[%d:%d]" % (vZ, vZ + 1)
        VS = "v[%d:%d]" % (vVS, vVS + 1)
        F = "s[%d:%d]" % (sF, sF + 1)
        e.i("v_pk_mul_f32 %s, %s, %s" % (Z, Z, F))
        e.i("v_pk_mul_f32 %s, %s, %s op_sel:[0,0] op_sel_hi:[1,0]" % (PP, P, VS))
        e.i("v_pk_fma_f32 %s, %s, %s, %s" % (L, L, F, P))
        e.i("ds_write_b64 v%d, %s" % (vLdsW, PP))
        e.i("v_pk_fma_f32 %s, %s, %s, %s op_sel:[0,1,0] op_sel_hi:[1,1,1]" % (Z, PP, VS, Z))
        for k in range(G // 2):
            e.i("ds_read_b128 v[%d:%d], v%d offset:%d" % (A + 4 * k, A + 4 * k + 3, vLdsR, 16 * k))
        for sc in range(16):
            e.i("v_pk_mul_f32 %s, %s, %s" % (o(sc), o(sc), F))

    def publish(tag):
        e.i("s_cmp_lt_u32 s%d, s%d" % (sCnt, sTkt))
        e.i("s_cbranch_scc1 L_np%s" % tag)
        e.i("s_mov_b64 exec, 1")
        e.i("v_lshl_add_u32 v%d, v%d, 2, s%d" % (vT3, vT3, sReqC))
        e.i("ds_write_b32 v%d, v%d offset:%d" % (vT2, vT3, TICKOFF))
        e.i("s_mov_b64 exec, -1")
        e.i("s_waitcnt lgkmcnt(0)")
        e.label("L_np%s" % tag)

    def flagload(tag):
        e.i("s_cmp_lg_u32 s%d, s%d" % (sCnt, sFl))
        e.i("s_cbranch_scc1 L_nf%s" % tag)
        e.i("s_mov_b64 exec, 1")
        e.i("buffer_load_dword v%d, v%d, s[%d:%d], 0 offen sc1" % (vFl, vT2, sDBG, sDBG + 3))
        e.i("s_mov_b64 exec, -1")
        e.label("L_nf%s" % tag)

    def request(G, tag):
        e.i("s_lshl_b32 s%d, s%d, 9" % (sKoff, sCur))
        e.i("s_lshl_b32 s%d, s%d, 9" % (sVoff, sCur))
        e.i("s_add_u32 s%d, s%d, s%d" % (sXoff, sKoff, sXadd))
        if G == 8 and FLJ < 0:
            flagload(tag)
        e.i("s_cmp_eq_u32 s%d, 4" % sGn)
        e.i("s_cbranch_scc1 L_nt%s" % tag)
        ticket(tag, False)

    def ticket(tag, check):
        e.i("s_cmp_lt_u32 s%d, s%d" % (sCnt, sTkt))
        e.i("s_cbranch_scc1 L_nt%s" % tag)
        e.i("v_mov_b32 v%d, 1" % vT3)
        e.i("s_mov_b64 exec, 1")
        if check:
            e.i("v_readfirstlane_b32 s%d, v%d" % (sT0, vFl))
            e.i("s_cmp_lg_u32 s%d, 0" % sT0)
            e.i("s_cbranch_scc1 L_fo%s" % tag)
            e.i("v_mov_b32 v%d, 1" % vFl)
            e.i("buffer_atomic_add v%d, v%d, s[%d:%d], 0 offen offset:4 sc0" % (vFl, vT2, sDBG, sDBG + 3))
            e.i("s_waitcnt vmcnt(0)")
            e.i("v_readfirstlane_b32 s%d, v%d" % (sT0, vFl))
            e.i("s_cmp_lg_u32 s%d, 0" % sT0)
            e.i("s_cbranch_scc1 L_fs%s" % tag)
            e.i("s_mov_b64 exec, -1")
            e.i("v_mul_u32_u24 v%d, %d, v%d" % (vT0, CSTR, vLane))
            e.i("s_mov_b32 s%d, %d" % (sT0, CB))
            e.i("buffer_store_dword v%d, v%d, s[%d:%d], s%d offen sc1" % (vT2, vT0, sWS, sWS + 3, sT0))
            e.i("s_mov_b32 s%d, %d" % (sT0, CB + 64 * CSTR))
            e.i("buffer_store_dword v%d, v%d, s[%d:%d], s%d offen sc1" % (vT2, vT0, sWS, sWS + 3, sT0))
            if MBX:
                e.i("s_waitcnt vmcnt(0)")
                e.i("v_lshlrev_b32 v%d, 2, v%d" % (vT0, vLane))
                e.i("s_mov_b32 s%d, %d" % (sT0, MBO))
                e.label("L_fz%s" % tag)
                e.i("buffer_store_dword v%d, v%d, s[%d:%d], s%d offen sc1" % (vT2, vT0, sWS, sWS + 3, sT0))
                e.i("s_add_u32 s%d, s%d, 256" % (sT0, sT0))
                e.i("s_cmp_lt_u32 s%d, %d" % (sT0, MBO + MBXB))
                e.i("s_cbranch_scc1 L_fz%s" % tag)
            e.i("s_waitcnt vmcnt(0)")
            e.i("s_mov_b64 exec, 1")
            e.i("v_mov_b32 v%d, 3" % vFl)
            e.i("buffer_store_dword v%d, v%d, s[%d:%d], 0 offen sc1" % (vFl, vT2, sDBG, sDBG + 3))
            e.i("s_waitcnt vmcnt(0)")
            e.i("s_branch L_fo%s" % tag)
            e.label("L_fs%s" % tag)
            e.i("buffer_load_dword v%d, v%d, s[%d:%d], 0 offen sc1" % (vFl, vT2, sDBG, sDBG + 3))
            e.i("s_waitcnt vmcnt(0)")
            e.i("v_readfirstlane_b32 s%d, v%d" % (sT0, vFl))
            e.i("s_cmp_eq_u32 s%d, 0" % sT0)
            e.i("s_cbranch_scc1 L_fs%s" % tag)
            e.label("L_fo%s" % tag)
            e.i("s_cmp_lg_u32 s%d, %d" % (sCnt, NS - 1))
            e.i("s_cbranch_scc1 L_nd%s" % tag)
            e.i("v_readfirstlane_b32 s%d, v%d" % (sT0, vFl))
            e.i("s_getreg_b32 s%d, hwreg(HW_REG_XCC_ID, 2, 1)" % sT1)
            e.i("s_sub_u32 s%d, s%d, 1" % (sT0, sT0))
            e.i("s_xor_b32 s%d, s%d, s%d" % (sPref, sT0, sT1))
            e.i("s_and_b32 s%d, s%d, 1" % (sPref, sPref))
            e.i("s_and_b32 s%d, s%d, 2" % (sMix2, sT0))
            e.i("s_cselect_b32 s%d, 0, s%d" % (sPref, sPref))
            e.label("L_nd%s" % tag)
        if FAKE in (3, 4):
            if FAKE == 3:
                e.i("s_lshl_b32 s%d, s2, 12" % sT0)
            else:
                e.i("s_lshl_b32 s%d, s%d, 10" % (sT0, sQi))
            e.i("s_add_u32 s%d, s%d, %d" % (sT0, sT0, 12 << 20))
            e.i("buffer_atomic_add v%d, v%d, s[%d:%d], s%d offen sc0" % (vT3, vT2, sWS, sWS + 3, sT0))
        elif FAKE == 5:
            e.i("buffer_load_dword v%d, v%d, s[%d:%d], s%d offen sc1" % (vT3, vT2, sDBG, sDBG + 3, sQi))
        elif FAKE == 6:
            e.i("buffer_atomic_add v%d, v%d, s[%d:%d], s%d offen" % (vT3, vT2, sDBG, sDBG + 3, sQi))
        elif WSC:
            e.i("s_add_u32 s%d, s%d, s%d" % (sReqC, sPref, sMix2))
            e.i("s_mul_i32 s%d, s%d, %d" % (sT0, sPref, CSTR))
            e.i("s_add_u32 s%d, s%d, s%d" % (sT0, sT0, sQi))
            e.i("buffer_atomic_add v%d, v%d, s[%d:%d], s%d offen sc0" % (vT3, vT2, sWS, sWS + 3, sT0))
        else:
            e.i("buffer_atomic_add v%d, v%d, s[%d:%d], s%d offen sc0" % (vT3, vT2, sDBG, sDBG + 3, sQi))
        e.i("s_mov_b64 exec, -1")
        e.label("L_nt%s" % tag)

    def decode(G, q, tag=None, fail=None):
        tag = tag or "%d" % G
        fail = fail or "L_last%s" % tag
        e.i("v_readfirstlane_b32 s%d, v%d" % (sT0, vTk))
        if G == 8:
            e.i("s_add_u32 s%d, s%d, 1" % (sCnt, sCnt))
        e.i("s_and_b32 s%d, s%d, 3" % (sLow, sT0))
        e.i("s_lshr_b32 s%d, s%d, 2" % (sT0, sT0))
        e.i("s_bfe_u32 s%d, s%d, 0x10003" % (sD0, sT0))
        e.i("s_add_u32 s%d, s%d, 2" % (sD0, sD0))
        e.i("s_lshr_b32 s%d, s%d, 4" % (sT1, sT0))
        e.i("s_lshl_b32 s%d, s%d, 3" % (sT1, sT1))
        e.i("s_and_b32 s%d, s%d, 7" % (sD1, sT0))
        e.i("s_add_u32 s%d, s%d, s%d" % (sT1, sT1, sD1))
        e.i("s_cmp_ge_u32 s%d, 2" % sLow)
        e.i("s_cselect_b32 s%d, s%d, s%d" % (sT0, sT1, sT0))
        e.i("s_cselect_b32 s%d, s%d, s%d" % (sLow, sD0, sLow))
        e.i("s_add_u32 s%d, s%d, %d" % (sT0, sT0, 4 * NS))
        if G == 8:
            if FIXR:
                e.i("s_and_b32 s%d, s%d, %d" % (sT1, sCnt, NS // 2 - 1))
                e.i("s_lshl_b32 s%d, s%d, 3" % (sT1, sT1))
                e.i("s_lshr_b32 s%d, s%d, %d" % (sD0, sCnt, (NS // 2).bit_length() - 1))
                e.i("s_add_u32 s%d, s%d, s%d" % (sT1, sT1, sD0))
            else:
                e.i("s_lshr_b32 s%d, s%d, 1" % (sT1, sCnt))
                e.i("s_lshl_b32 s%d, s%d, 3" % (sT1, sT1))
                e.i("s_and_b32 s%d, s%d, 1" % (sFix, sCnt))
                e.i("s_add_u32 s%d, s%d, 2" % (sFix, sFix))
            e.i("s_add_u32 s%d, s%d, s%d" % (sT1, sT1, sSub))
            e.i("s_cmp_lt_u32 s%d, %d" % (sCnt, NS))
            e.i("s_cselect_b32 s%d, s%d, s%d" % (sT0, sT1, sT0))
            e.i("s_cselect_b32 s%d, s%d, s%d" % (sLow, sFix, sLow))
        e.i("s_and_b32 s%d, s%d, 1" % (sCls, sLow))
        e.i("s_lshl_b32 s%d, s%d, 2" % (sSoff, sT0))
        e.i("s_sub_i32 s%d, s%d, %d" % (sT0, sT0, NB))
        e.i("s_max_i32 s%d, s%d, 0" % (sT0, sT0))
        e.i("s_min_u32 s%d, s%d, 62" % (sT0, sT0))
        e.i("s_add_u32 s%d, s%d, 1" % (sT1, sT0))
        e.i("s_nop 3")
        e.i("v_readlane_b32 s%d, v%d, s%d" % (sD0, vTab, sT0))
        e.i("v_readlane_b32 s%d, v%d, s%d" % (sD1, vTab, sT1))
        e.i("s_sub_u32 s%d, s%d, s%d" % (sGn, sD1, sD0))
        e.i("s_cmp_lt_u32 s%d, %d" % (sSoff, 4 * NB))
        e.i("s_cselect_b32 s%d, s%d, s%d" % (sD0, sSoff, sD0))
        e.i("s_cselect_b32 s%d, 4, s%d" % (sGn, sGn))
        e.i("s_cmp_eq_u32 s%d, 0" % sGn)
        e.i("s_cbranch_scc1 %s" % fail)
        e.i("s_bfe_u32 s%d, s%d, 0x30002" % (sT0, sD0))
        e.i("s_xor_b32 s%d, s%d, s%d" % (sD1, sCls, sHB))
        e.i("s_xor_b32 s%d, s%d, s%d" % (sD1, sD1, sT0))
        e.i("s_and_b32 s%d, s%d, 1" % (sD1, sD1))
        e.i("s_lshl_b32 s%d, s%d, 4" % (sD1, sD1))
        e.i("s_add_u32 s%d, s%d, s%d" % (sD1, sD1, sWoff))
        e.i("s_lshl_b32 s%d, s%d, 8" % (sT1, sCls))
        e.i("s_add_u32 s%d, s%d, s%d" % (sT1, sT1, sW8))
        e.i("s_cmp_ge_u32 s%d, 2" % sLow)
        e.i("s_cselect_b32 s%d, s%d, s%d" % (sD1, sT1, sD1))
        e.i("s_cselect_b32 s%d, 14, 15" % sLow)
        e.i("s_lshl_b32 s%d, 1, s%d" % (sGB, sLow))
        e.i("s_lshl_b32 s%d, s%d, 12" % (sCur, sT0))
        e.i("s_add_u32 s%d, s%d, s%d" % (sCur, sCur, sD1))
        e.i("s_lshr_b32 s%d, s%d, 5" % (sT1, sD0))
        e.i("s_lshl_b32 s%d, s%d, 9" % (sT1, sT1))
        e.i("s_add_u32 s%d, s%d, s%d" % (sCur, sCur, sT1))
        e.i("s_lshr_b32 s%d, s%d, 8" % (sD1, sGB))
        e.i("s_and_b32 s%d, s%d, 3" % (sT1, sD0))
        e.i("s_mul_i32 s%d, s%d, s%d" % (sT1, sT1, sD1))
        e.i("s_add_u32 s%d, s%d, s%d" % (sCur, sCur, sT1))
        e.i("s_lshl_b32 s%d, s%d, 1" % (sT0, sGn))
        e.i("s_sub_u32 s%d, s%d, 1" % (sT0, sT0))
        e.i("v_and_b32 v%d, s%d, v%d" % (vSoffD, sT0, vSoff))
        e.i("v_mad_u32_u24 v%d, v%d, s%d, v%d" % (vSoffD, vSoffD, sD1, vTok2))
        e.i("s_lshl_b32 s%d, s%d, 1" % (sT1, sGB))
        e.i("s_lshl_b32 s%d, s%d, 1" % (sSoff, sCur))
        e.i("s_cmp_eq_u32 s%d, 1" % sGn)
        e.i("s_cselect_b32 s%d, s%d, s%d" % (sX, sV, sK))
        e.i("s_cselect_b32 s%d, s%d, s%d" % (sX + 1, sV + 1, sK + 1))
        e.i("s_cselect_b32 s%d, 0, s%d" % (sXadd, sT1))
        e.i("buffer_load_ushort v%d, v%d, s[%d:%d], s%d offen" % (vVSn, vSoffD, sVS, sVS + 3, sSoff))
        e.i("buffer_load_ushort v%d, v%d, s[%d:%d], s%d offen" % (vVSn1, vSoffD, sVZ, sVZ + 3, sSoff))
        q.append(("G", 0))
        q.append(("G", 1))
        request(G, tag)

    def wait_for(q, j):
        idx = q.index(("L", j))
        n_after = len(q) - idx - 1
        assert n_after <= 63
        e.i("s_waitcnt vmcnt(%d)" % n_after)
        del q[:idx + 1]

    def compute(G, j):
        r = ring(j % R)
        for c in range(4):
            e.i("v_cvt_f32_i32 v%d, v%d" % (r + c, r + c))
        isK = j < 4 * G
        jj = j if isK else j - 4 * G
        g, seg = jj // 4, jj % 4
        for c in range(4):
            pr = "v[%d:%d]" % (r + (c & 2), r + (c & 2) + 1)
            b = c & 1
            sc = seg * 4 + c
            if isK:
                if seg == 0 and c == 0:
                    e.i("v_pk_mul_f32 %s, %s, %s op_sel:[%d,0] op_sel_hi:[%d,1]" % (a(g), pr, qs(sc), b, b))
                else:
                    e.i("v_pk_fma_f32 %s, %s, %s, %s op_sel:[%d,0,0] op_sel_hi:[%d,1,1]" % (a(g), pr, qs(sc), a(g), b, b))
            else:
                e.i("v_pk_fma_f32 %s, %s, %s, %s op_sel:[%d,0,0] op_sel_hi:[%d,1,1]" % (o(sc), pr, a(g), o(sc), b, b))

    def issue(G, q, j, last):
        nj = j + 16
        if nj < 8 * G:
            issue_own(G, nj)
            q.append(("L", nj))
        elif not last:
            issue_next(nj - 8 * G)
            q.append(("N", nj - 8 * G))

    def reduce_k(G, j):
        if j < 4 * G and j % 4 == 3:
            g = j // 4
            if g % 2 == 1:
                stepA(g - 1, g)
            if g % 4 == 3:
                stepQ(g - 3, g - 1, sMask1, "quad_perm:[2,3,0,1]", A + 2 * (g - 3))
            if g == 7:
                stepQ(0, 4, sMask0, "quad_perm:[1,0,3,2]", A)
            if G == 4 and g == 3:
                stepP("quad_perm:[1,0,3,2]")
            if G == 2 and g == 1:
                stepP("quad_perm:[2,3,0,1]")
                stepP("quad_perm:[1,0,3,2]")

    def do_softmax(G):
        e.i("s_waitcnt lgkmcnt(0)")
        if STAMP == 2:
            e.i("s_memrealtime s[96:97]")
        softmax(G)
        e.i("s_waitcnt lgkmcnt(0)")
        if STAMP == 2:
            e.i("s_mov_b32 m0, s98")
            e.i("s_add_u32 s98, s98, 1")
            e.i("s_and_b32 s98, s98, 63")
            e.i("s_and_b32 s96, s96, 0xfffffffc")
            e.i("s_or_b32 s96, s96, %d" % {8: 0, 4: 1, 2: 2}[G])
            e.i("v_writelane_b32 v%d, s96, m0" % vStamp)

    def read_scales():
        e.i("ds_read_u16 v%d, v%d offset:%d" % (vVS, vSL, SCB))
        e.i("ds_read_u16 v%d, v%d offset:%d" % (vVS + 1, vSL, SCB + VZD))

    def net():
        e.i("s_waitcnt lgkmcnt(0)")
        sSum = 70
        e.i("s_sub_u32 s%d, s%d, s%d" % (sT1, sTm, sTprev))
        e.i("s_mov_b32 s%d, s%d" % (sTprev, sTm))
        e.i("s_add_u32 s%d, s%d, s%d" % (sD0, sSum, sT1))
        e.i("s_cmp_lt_u32 s%d, %d" % (sCnt, NS))
        e.i("s_cselect_b32 s%d, s%d, s%d" % (sSum, sD0, sSum))
        e.i("s_cselect_b32 s%d, 0, s%d" % (sT1, sT1))
        e.i("s_cmp_eq_u32 s%d, 0" % sCnt)
        e.i("s_cselect_b32 s%d, 0, s%d" % (sSum, sSum))
        e.i("s_mul_i32 s%d, s%d, %d" % (sT1, sT1, 10 * (NS - 1)))
        e.i("s_mul_i32 s%d, s%d, %d" % (sD0, sSum, NET))
        e.i("s_add_i32 s%d, s%d, 1" % (sHold, sHold))
        e.i("s_cmp_gt_u32 s%d, s%d" % (sT1, sD0))
        e.i("s_cselect_b32 s%d, s%d, 0" % (sHold, sHold))
        e.i("s_or_b32 s%d, s%d, s%d" % (sD0, sSw, sMix2))
        e.i("s_cselect_b32 s%d, 0, s%d" % (sHold, sHold))
        e.i("s_cmp_ge_i32 s%d, 2" % sHold)
        e.i("s_cselect_b32 s%d, 1, 0" % sT1)
        e.i("s_cselect_b32 s%d, -1, s%d" % (sHold, sHold))
        e.i("s_xor_b32 s%d, s%d, s%d" % (sPref, sPref, sT1))

    def barrier(G, j, last):
        e.i("s_barrier")

    def step(G, q, j, last, skip_pre=False):
        if not skip_pre:
            if j % (BAR8 if G == 8 else BAR) == 0 and (not last or LASTBAR):
                barrier(G, j, last)
            if j == (LATE + 24 if (LATE and G == 8) else 8) and G >= 4:
                e.i("ds_read_b32 v%d, v%d offset:%d" % (vTk, vT2, TICKOFF))
                if G == 8 and NET:
                    e.i("s_memrealtime s[%d:%d]" % (sTm, sTm + 1))
            if PLS:
                if (G == 8 and j == 20) or (G == 4 and j == 8):
                    read_scales()
        if j == 4 * G:
            do_softmax(G)
        if NET and G == 8 and j == LATE + 28:
            net()
        wait_for(q, j)
        if j == 0:
            if not PLS:
                e.i("v_mov_b32 v%d, v%d" % (vVS, vVSn))
                e.i("v_mov_b32 v%d, v%d" % (vVS + 1, vVSn1))
        if j == (LATE + 16 if (LATE and G == 8) else 0):
            publish("%d" % G)
        if LATE and G == 8 and j == LATE:
            ticket("8l", WSC)
        compute(G, j)
        if G == 8 and j == FLJ:
            assert FLJ + 16 <= LATE
            flagload("8")
        issue(G, q, j, last)
        reduce_k(G, j)

    def dispatch(G):
        order = {8: (4, 2), 4: (2, 4), 2: (2, 4)}[G]
        if G == 2:
            e.i("s_cmp_eq_u32 s%d, 1" % sGn)
            e.i("s_cbranch_scc1 L_body2")
        for gn in order:
            e.i("s_cmp_eq_u32 s%d, %d" % (sGn, gn))
            e.i("s_cbranch_scc1 L_body%d" % (2 * gn))
        e.i("s_branch L_body2")

    def second(tag):
        e.i("s_lshr_b32 s%d, s%d, 1" % (sT0, sLow))
        e.i("s_or_b32 s%d, s%d, s%d" % (sSw, sSw, sT0))
        e.i("s_cmp_lg_u32 s%d, 0" % sSw)
        e.i("s_cbranch_scc1 L_nt%s" % tag)
        e.i("s_xor_b32 s%d, s%d, 1" % (sPref, sCls))
        ticket(tag, False)

    def pretouch(q):
        if not PT:
            return
        assert PLS
        e.i("s_mov_b32 s%d, s%d" % (sK, pout))
        e.i("s_mov_b32 s%d, s%d" % (sK + 1, pout + 1))
        e.i("s_mov_b32 s%d, 8192" % (sK + 2))
        e.i("s_mov_b32 s%d, 0x00020000" % (sK + 3))
        e.i("s_lshl_b32 s%d, s%d, 9" % (sT1, sKVH))
        e.i("buffer_load_dword v%d, v%d, s[%d:%d], s%d offen" % (vVSn, vT2, sK, sK + 3, sT1))
        q.append(("G", 0))
        if PT >= 2:
            e.i("s_mov_b32 s%d, %d" % (sT1, MBO))
            e.i("buffer_load_dword v%d, v%d, s[%d:%d], s%d offen sc1" % (vVSn1, vT2, sWS, sWS + 3, sT1))
            q.append(("G", 1))

    assert LATE in (8, 16)
    lasts = []
    for G in (8, 4):
        e.label("L_body%d" % G)
        q = [("L", j) for j in range(16)]
        JD = 8 * G - 16
        for j in range(JD):
            step(G, q, j, False)
        barrier(G, JD, False)
        e.i("s_waitcnt lgkmcnt(0)")
        ql = list(q)
        decode(G, q)
        for j in range(JD, 8 * G):
            step(G, q, j, False, skip_pre=(j == JD))
        dispatch(G)
        lasts.append((G, ql, JD))
    G = 2
    e.label("L_body2")
    q = [("L", j) for j in range(16)]
    wait_for(q, 0)
    e.i("v_mov_b32 v%d, v%d" % (vVS, vVSn))
    e.i("v_mov_b32 v%d, v%d" % (vVS + 1, vVSn1))
    publish("2")
    e.i("s_barrier")
    e.i("ds_read_b32 v%d, v%d offset:%d" % (vTk, vT2, TICKOFF))
    compute(G, 0)
    e.i("s_waitcnt lgkmcnt(0)")
    ql = list(q)
    decode(G, q)
    issue(G, q, 0, False)
    for j in range(1, 16):
        step(G, q, j, False)
    dispatch(G)
    for (G_, ql_, JD) in lasts:
        e.label("L_last%d" % G_)
        second("s%d" % G_)
        for j in range(JD, 8 * G_):
            step(G_, ql_, j, True, skip_pre=(j == JD))
        e.i("s_branch L_sw")
    e.label("L_last2")
    second("s2")
    for j in range(1, 16):
        step(2, ql, j, True)
    e.label("L_sw")
    e.i("s_cmp_lg_u32 s%d, 0" % sSw)
    e.i("s_cbranch_scc1 L_epi")
    e.i("s_mov_b32 s%d, 1" % sSw)
    e.i("s_waitcnt vmcnt(0)")
    publish("w")
    e.i("s_barrier")
    e.i("ds_read_b32 v%d, v%d offset:%d" % (vTk, vT2, TICKOFF))
    e.i("s_waitcnt lgkmcnt(0)")
    decode(4, [], tag="w", fail="L_epi")
    for i in range(16):
        issue_next(i)
    dispatch(2)
    e.label("L_epi")
    if STAMP:
        e.i("s_memrealtime s[90:91]")
        e.i("s_getreg_b32 s92, hwreg(HW_REG_XCC_ID)")
        e.i("s_getreg_b32 s93, hwreg(HW_REG_HW_ID)")
        e.i("s_waitcnt lgkmcnt(0)")
        e.i("v_mov_b32 v%d, s88" % (A + 8))
        e.i("v_mov_b32 v%d, s90" % (A + 9))
        e.i("v_mov_b32 v%d, s92" % (A + 10))
        e.i("v_mov_b32 v%d, s93" % (A + 11))
        e.i("s_lshl_b32 s%d, s%d, 4" % (sT0, sGW))
        e.i("s_add_u32 s%d, s%d, %d" % (sT0, sT0, 8 << 20))
        e.i("v_mov_b32 v%d, 0" % (A + 12))
        e.i("buffer_store_dwordx4 v[%d:%d], v%d, s[%d:%d], s%d offen" % (A + 8, A + 11, A + 12, sWS, sWS + 3, sT0))
        if STAMP >= 2:
            e.i("s_memtime s[96:97]")
            e.i("s_waitcnt lgkmcnt(0)")
            e.i("v_writelane_b32 v%d, s96, 62" % vStamp)
            e.i("s_lshl_b32 s%d, s%d, 8" % (sT0, sGW))
            e.i("s_add_u32 s%d, s%d, %d" % (sT0, sT0, 9 << 20))
            e.i("v_lshlrev_b32 v%d, 2, v%d" % (A + 13, vLane))
            e.i("buffer_store_dword v%d, v%d, s[%d:%d], s%d offen" % (vStamp, A + 13, sWS, sWS + 3, sT0))
    e.i("v_permlane32_swap_b32 v%d, v%d" % (vL, vL + 1))
    e.i("v_permlane32_swap_b32 v%d, v%d" % (vZ, vZ + 1))
    e.i("v_add_f32 v%d, v%d, v%d" % (vL, vL, vL + 1))
    e.i("v_add_f32 v%d, v%d, v%d" % (vZ, vZ, vZ + 1))
    e.i("v_permlane16_swap_b32 v%d, v%d" % (vL, vZ))
    e.i("v_add_f32 v%d, v%d, v%d" % (vL, vL, vZ))
    for rr in (8, 4, 2, 1):
        e.i("v_add_f32_dpp v%d, v%d, v%d row_ror:%d row_mask:0xf bank_mask:0xf" % (vL, vL, vL, rr))
    e.i("v_readlane_b32 s%d, v%d, 0" % (sL0, vL))
    e.i("v_readlane_b32 s%d, v%d, 16" % (sZ0, vL))
    e.i("v_readlane_b32 s%d, v%d, 32" % (sL1, vL))
    e.i("v_readlane_b32 s%d, v%d, 48" % (sZ1, vL))
    for sc in range(16):
        e.i("v_permlane32_swap_b32 v%d, v%d" % (O + 2 * sc, O + 2 * sc + 1))
    for sc in range(16):
        e.i("v_add_f32 v%d, v%d, v%d" % (O + 2 * sc, O + 2 * sc, O + 2 * sc + 1))
    for sc in range(8):
        e.i("v_permlane16_swap_b32 v%d, v%d" % (O + 2 * sc, O + 2 * (sc + 8)))
    for sc in range(8):
        e.i("v_add_f32 v%d, v%d, v%d" % (O + 2 * sc, O + 2 * sc, O + 2 * (sc + 8)))
    for sc in range(4):
        e.i("v_add_f32_dpp v%d, v%d, v%d row_ror:8 row_mask:0xf bank_mask:0x3" % (A + sc, O + 2 * sc, O + 2 * sc))
    for sc in range(4):
        e.i("v_add_f32_dpp v%d, v%d, v%d row_ror:8 row_mask:0xf bank_mask:0xc" % (A + sc, O + 2 * (sc + 4), O + 2 * (sc + 4)))
    e.i("s_mov_b32 s%d, 0" % sEx)
    e.i("s_mov_b32 s%d, -1" % (sEx + 1))
    e.i("v_mov_b32 v%d, s%d" % (vT0, sZ0))
    e.i("v_mov_b32 v%d, s%d" % (vT1, sZ1))
    e.i("v_cndmask_b32 v%d, v%d, v%d, s[%d:%d]" % (vT0, vT0, vT1, sEx, sEx + 1))
    for sc in range(4):
        e.i("v_sub_f32 v%d, v%d, v%d" % (A + sc, A + sc, vT0))
    e.i("v_mov_b32 v%d, s%d" % (vT0, sC0))
    e.i("v_mov_b32 v%d, s%d" % (vT1, sC1))
    e.i("v_cndmask_b32 v%d, v%d, v%d, s[%d:%d]" % (vT0, vT0, vT1, sEx, sEx + 1))
    e.i("v_sub_f32 v%d, v%d, v%d" % (vP, vM, vT0))
    e.i("v_mov_b32 v%d, s%d" % (vT0, sL0))
    e.i("v_mov_b32 v%d, s%d" % (vT1, sL1))
    e.i("v_cndmask_b32 v%d, v%d, v%d, s[%d:%d]" % (vP + 1, vT0, vT1, sEx, sEx + 1))
    OB = WPW * 512
    MB = OB + WPW * 1024
    LDS = MB + WPW * 16 + 32 + 2 * VZD
    e.i("s_lshl_b32 s%d, s%d, 10" % (sT0, sWave))
    e.i("v_lshlrev_b32 v%d, 4, v%d" % (vT2, vLane))
    e.i("v_add_u32 v%d, s%d, v%d" % (vT0, sT0, vT2))
    e.i("ds_write_b128 v%d, v[%d:%d] offset:%d" % (vT0, A, A + 3, OB))
    e.i("s_lshl_b32 s%d, s%d, 4" % (sT0, sWave))
    e.i("v_lshrrev_b32 v%d, 5, v%d" % (vT3, vLane))
    e.i("v_lshlrev_b32 v%d, 3, v%d" % (vT3, vT3))
    e.i("v_add_u32 v%d, s%d, v%d" % (vT1, sT0, vT3))
    e.i("ds_write_b64 v%d, v[%d:%d] offset:%d" % (vT1, vP, vP + 1, MB))
    if MBX:
        e.i("v_lshrrev_b32 v%d, 5, v%d" % (vPP, vLane))
        e.i("s_lshl_b32 s%d, s%d, 1" % (sT0, sKVH))
        e.i("v_add_u32 v%d, s%d, v%d" % (vPP, sT0, vPP))
        e.i("v_and_b32 v%d, 31, v%d" % (vPP + 1, vLane))
        e.i("v_lshlrev_b32 v%d, 4, v%d" % (vPP + 1, vPP + 1))
        e.i("v_lshl_add_u32 v%d, v%d, 13, v%d" % (vPP + 1, vPP, vPP + 1))
        e.i("v_and_b32 v%d, 15, v%d" % (vVS, vLane))
        e.i("v_lshlrev_b32 v%d, 3, v%d" % (vVS, vVS))
        e.i("v_lshl_add_u32 v%d, v%d, 7, v%d" % (vPP, vPP, vVS))
        e.i("v_lshlrev_b32 v%d, 3, v%d" % (vVS, vLane))
        e.i("s_mov_b32 s%d, s%d" % (sK, pout))
        e.i("s_mov_b32 s%d, s%d" % (sK + 1, pout + 1))
        e.i("s_mov_b32 s%d, 8192" % (sK + 2))
        e.i("s_mov_b32 s%d, 0x00020000" % (sK + 3))
        e.i("s_mov_b32 s%d, %d" % (sEx, MBO + 4096))
        e.i("s_mov_b32 s%d, %d" % (sL0, MBO))
        e.i("s_lshl_b32 s%d, s%d, 9" % (sEx + 1, sKVH))
    e.i("s_waitcnt lgkmcnt(0)")
    if MBX:
        e.i("v_mov_b32 v%d, v%d" % (vP + 1, vPP + 1))
        e.i("v_mov_b32 v%d, 1" % vP)
        e.i("v_mov_b32 v%d, 0" % vM)
    if True:
        e.i("v_mov_b32 v%d, 0" % vT0)
        e.i("v_mov_b32 v%d, 1" % vT1)
        e.i("s_mov_b64 exec, 1")
        e.i("ds_add_rtn_u32 v%d, v%d, v%d offset:%d" % (vT1, vT0, vT1, CNTOFF))
        e.i("s_mov_b64 exec, -1")
        e.i("s_waitcnt lgkmcnt(0)")
        e.i("v_readfirstlane_b32 s%d, v%d" % (sT0, vT1))
        e.i("s_cmp_lg_u32 s%d, %d" % (sT0, WPW - 1))
        e.i("s_cbranch_scc1 L_done1")
    assert WPW <= 16
    for w in range(WPW):
        e.i("ds_read_b64 v[%d:%d], v%d offset:%d" % (QS + 2 * w, QS + 2 * w + 1, vT3, MB + 16 * w))
    OT = O
    assert O + 4 * WPW <= NV
    for w in range(WPW):
        e.i("ds_read_b128 v[%d:%d], v%d offset:%d" % (OT + 4 * w, OT + 4 * w + 3, vT2, OB + 1024 * w))
    e.i("s_waitcnt lgkmcnt(0)")
    e.i("v_mov_b32 v%d, v%d" % (vT0, QS))
    for w in range(1, WPW):
        e.i("v_max_f32 v%d, v%d, v%d" % (vT0, vT0, QS + 2 * w))
    for w in range(WPW):
        e.i("v_sub_f32 v%d, v%d, v%d" % (QS + 2 * w, QS + 2 * w, vT0))
    for w in range(WPW):
        e.i("v_exp_f32 v%d, v%d" % (QS + 2 * w, QS + 2 * w))
    e.i("v_mul_f32 v%d, v%d, v%d" % (vT1, QS, QS + 1))
    for w in range(1, WPW):
        e.i("v_fmac_f32 v%d, v%d, v%d" % (vT1, QS + 2 * w, QS + 2 * w + 1))
    for c in range(4):
        e.i("v_mul_f32 v%d, v%d, v%d" % (OT + c, OT + c, QS))
    for w in range(1, WPW):
        for c in range(4):
            e.i("v_fmac_f32 v%d, v%d, v%d" % (OT + c, OT + 4 * w + c, QS + 2 * w))
    MLB = 32 * NSPLIT * 512
    e.i("s_lshl_b32 s%d, s%d, %d" % (sT0, sKVH, LOG_NSPLIT + 1))
    e.i("s_add_u32 s%d, s%d, s%d" % (sT0, sT0, sSplit))
    e.i("v_lshrrev_b32 v%d, 5, v%d" % (vT3, vLane))
    e.i("v_lshlrev_b32 v%d, %d, v%d" % (vT3, LOG_NSPLIT, vT3))
    e.i("v_add_u32 v%d, s%d, v%d" % (vT3, sT0, vT3))
    e.i("v_and_b32 v%d, 31, v%d" % (vT2, vLane))
    e.i("v_lshlrev_b32 v%d, 4, v%d" % (vT2, vT2))
    e.i("v_lshl_add_u32 v%d, v%d, 9, v%d" % (vT2, vT3, vT2))
    scf = " sc1" if FUSE else ""
    if MBX:
        for r_ in (OT, OT + 1, OT + 2, OT + 3, vT0, vT1):
            e.i("v_max_u32 v%d, 1, v%d" % (r_, r_))
    if STAMP and FUSE:
        e.i("s_memrealtime s[12:13]")
    e.i("buffer_store_dwordx4 v[%d:%d], v%d, s[%d:%d], %s offen%s" % (OT, OT + 3, vT2, sWS, sWS + 3, ("s%d" % sL0) if MBX else "0", scf))
    e.i("v_lshlrev_b32 v%d, 3, v%d" % (vT3, vT3))
    e.i("s_mov_b32 s%d, %d" % (sT1, MLB + (MBO if MBX else 0)))
    e.i("buffer_store_dwordx2 v[%d:%d], v%d, s[%d:%d], s%d offen%s" % (vT0, vT1, vT3, sWS, sWS + 3, sT1, scf))
    if MBX:
        vA, vB, vC = vP, vP + 1, vPP
        vW, vS, vZm = vL, vL + 1, vZ
        e.i("s_mul_i32 s%d, s%d, %d" % (sT0, sKVH, CSTR))
        e.i("s_add_u32 s%d, s%d, %d" % (sT0, sT0, CB + 64 * CSTR))
        e.i("s_mov_b64 exec, 1")
        e.i("buffer_atomic_add v%d, v%d, s[%d:%d], s%d offen sc0" % (vA, vM, sWS, sWS + 3, sT0))
        e.i("s_mov_b64 exec, -1")

        def poll():
            e.i("buffer_load_dwordx2 v[%d:%d], v%d, s[%d:%d], s%d offen sc1" % (QS, QS + 1, vC, sWS, sWS + 3, sT1))
            for t in range(NSPLIT):
                e.i("buffer_load_dwordx4 v[%d:%d], v%d, s[%d:%d], %s offen offset:%d sc1" % (RING + 4 * t, RING + 4 * t + 3, vB, sWS, sWS + 3, "s%d" % (sL0 if t < 8 else sEx), (t % 8) * 512))

        def stamp_a():
            if STAMP:
                e.i("s_memrealtime s[16:17]")
                e.i("s_waitcnt lgkmcnt(0)")
                e.i("v_mov_b32 v%d, s12" % (A + 8))
                e.i("v_mov_b32 v%d, s12" % (A + 9))
                e.i("v_mov_b32 v%d, s16" % (A + 10))
                e.i("v_mov_b32 v%d, 0" % (A + 11))
                e.i("s_lshl_b32 s18, s2, 4")
                e.i("s_add_u32 s18, s18, %d" % (10 << 20))
                e.i("v_mov_b32 v%d, 0" % (A + 12))
                e.i("s_mov_b32 s19, 0")

        def stamp_b():
            if STAMP:
                e.i("buffer_store_dwordx4 v[%d:%d], v%d, s[%d:%d], s18 offen" % (A + 8, A + 11, A + 12, sWS, sWS + 3))

        if SPEC < 8:
            if SPEC > 0:
                e.i("s_cmp_lt_u32 s%d, %d" % (sXadd, len(GS) + SPEC))
                e.i("s_cbranch_scc1 L_nospec")
            poll()
            e.i("s_waitcnt vmcnt(%d)" % (NSPLIT + 1))
            stamp_a()
            e.i("v_readfirstlane_b32 s%d, v%d" % (sT0, vA))
            e.i("s_cmp_eq_u32 s%d, %d" % (sT0, NSPLIT - 1))
            e.i("s_cbranch_scc1 L_check")
            stamp_b()
            e.i("s_endpgm")
        if SPEC > 0:
            e.label("L_nospec")
            e.i("s_waitcnt vmcnt(0)")
            stamp_a()
            e.i("v_readfirstlane_b32 s%d, v%d" % (sT0, vA))
            e.i("s_cmp_eq_u32 s%d, %d" % (sT0, NSPLIT - 1))
            e.i("s_cbranch_scc1 L_poll")
            stamp_b()
            e.i("s_endpgm")
        e.label("L_poll")
        if STAMP:
            e.i("s_add_u32 s19, s19, 1")
        poll()
        e.label("L_check")
        e.i("s_waitcnt vmcnt(%d)" % NSPLIT)
        e.i("v_max_f32_dpp v%d, v%d, v%d row_ror:8 row_mask:0xf bank_mask:0xf" % (vS, QS, QS))
        e.i("v_min_u32 v%d, v%d, v%d" % (vZm, QS, QS + 1))
        for rr in (4, 2, 1):
            e.i("v_max_f32_dpp v%d, v%d, v%d row_ror:%d row_mask:0xf bank_mask:0xf" % (vS, vS, vS, rr))
        e.i("v_sub_f32 v%d, v%d, v%d" % (vW, QS, vS))
        e.i("v_exp_f32 v%d, v%d" % (vW, vW))
        e.i("v_mul_f32 v%d, v%d, v%d" % (vS, vW, QS + 1))
        for rr in (8, 4, 2, 1):
            e.i("v_add_f32_dpp v%d, v%d, v%d row_ror:%d row_mask:0xf bank_mask:0xf" % (vS, vS, vS, rr))
        e.i("v_rcp_f32 v%d, v%d" % (vS, vS))
        e.i("v_mul_f32 v%d, v%d, v%d" % (vW, vW, vS))
        for t in range(NSPLIT):
            if t % 4 == 0:
                e.i("s_waitcnt vmcnt(%d)" % (NSPLIT - 4 - t))
            r = RING + 4 * t
            e.i("v_min3_u32 v%d, v%d, v%d, v%d" % (vZm, vZm, r, r + 1))
            e.i("v_min3_u32 v%d, v%d, v%d, v%d" % (vZm, vZm, r + 2, r + 3))
            for c in range(4):
                e.i("v_%s_f32_dpp v%d, v%d, v%d row_newbcast:%d row_mask:0xf bank_mask:0xf" % ("mul" if t == 0 else "fmac", OT + c, vW, r + c, t))
        e.i("v_cmp_eq_u32 vcc, 0, v%d" % vZm)
        e.i("v_cvt_pk_bf16_f32 v%d, v%d, v%d" % (OT, OT, OT + 1))
        e.i("v_cvt_pk_bf16_f32 v%d, v%d, v%d" % (OT + 1, OT + 2, OT + 3))
        e.i("s_nop 2")
        e.i("s_cbranch_vccnz L_poll")
        e.i("buffer_store_dwordx2 v[%d:%d], v%d, s[%d:%d], s%d offen" % (OT, OT + 1, vVS, sK, sK + 3, sEx + 1))
        if STAMP:
            e.i("s_memrealtime s[16:17]")
            e.i("s_waitcnt lgkmcnt(0)")
            e.i("v_mov_b32 v%d, s16" % (A + 11))
            e.i("s_mul_i32 s19, s19, 100")
            e.i("v_add_u32 v%d, s19, v%d" % (A + 9, A + 9))
            stamp_b()
    elif FUSE:
        pass
        vA, vB, vC = vP, vP + 1, vPP
        e.i("s_lshl_b32 s%d, s%d, 9" % (sT0, sSplit))
        e.i("v_subrev_u32 v%d, s%d, v%d" % (vB, sT0, vT2))
        e.i("s_lshl_b32 s%d, s%d, 3" % (sT0, sSplit))
        e.i("v_subrev_u32 v%d, s%d, v%d" % (vC, sT0, vT3))
        if WSC:
            e.i("s_mul_i32 s%d, s%d, %d" % (sT0, sKVH, CSTR))
            e.i("s_add_u32 s%d, s%d, %d" % (sT0, sT0, CB + 64 * CSTR))
        else:
            e.i("s_lshl_b32 s%d, s%d, 2" % (sT0, sKVH))
            e.i("s_add_u32 s%d, s%d, 128" % (sT0, sT0))
        e.i("v_mov_b32 v%d, 1" % vA)
        e.i("v_mov_b32 v%d, 0" % vM)
        e.i("s_waitcnt vmcnt(0)")
        if STAMP:
            e.i("s_memrealtime s[14:15]")
        e.i("s_mov_b64 exec, 1")
        sCT = sWS if WSC else sDBG
        e.i("buffer_atomic_add v%d, v%d, s[%d:%d], s%d offen sc0" % (vA, vM, sCT, sCT + 3, sT0))
        e.i("s_mov_b64 exec, -1")
        e.i("s_waitcnt vmcnt(0)")
        if STAMP:
            e.i("s_memrealtime s[16:17]")
            e.i("s_waitcnt lgkmcnt(0)")
            e.i("v_mov_b32 v%d, s12" % (A + 8))
            e.i("v_mov_b32 v%d, s14" % (A + 9))
            e.i("v_mov_b32 v%d, s16" % (A + 10))
            e.i("v_mov_b32 v%d, 0" % (A + 11))
            e.i("s_lshl_b32 s18, s2, 4")
            e.i("s_add_u32 s18, s18, %d" % (10 << 20))
            e.i("v_mov_b32 v%d, 0" % (A + 12))
            e.i("buffer_store_dwordx4 v[%d:%d], v%d, s[%d:%d], s18 offen" % (A + 8, A + 11, A + 12, sWS, sWS + 3))
        e.i("v_readfirstlane_b32 s%d, v%d" % (sT0, vA))
        e.i("s_cmp_lg_u32 s%d, %d" % (sT0, NSPLIT - 1))
        e.i("s_cbranch_scc1 L_done1")
        for t in range(NSPLIT):
            e.i("buffer_load_dwordx2 v[%d:%d], v%d, s[%d:%d], s%d offen offset:%d sc1" % (QS + 2 * t, QS + 2 * t + 1, vC, sWS, sWS + 3, sT1, 8 * t))
        e.i("s_mov_b32 s%d, 4096" % sT0)
        for t in range(NSPLIT):
            e.i("buffer_load_dwordx4 v[%d:%d], v%d, s[%d:%d], %s offen offset:%d sc1" % (RING + 4 * t, RING + 4 * t + 3, vB, sWS, sWS + 3, "0" if t < 8 else "s%d" % sT0, (t % 8) * 512))
        e.i("s_mov_b32 s%d, s%d" % (sK, pout))
        e.i("s_mov_b32 s%d, s%d" % (sK + 1, pout + 1))
        e.i("s_mov_b32 s%d, 8192" % (sK + 2))
        e.i("s_mov_b32 s%d, 0x00020000" % (sK + 3))
        e.i("s_lshl_b32 s%d, s%d, 9" % (sT0, sKVH))
        e.i("v_lshlrev_b32 v%d, 3, v%d" % (vT2, vLane))
        e.i("s_waitcnt vmcnt(%d)" % NSPLIT)
        e.i("v_mov_b32 v%d, v%d" % (vT0, QS))
        for w in range(1, NSPLIT):
            e.i("v_max_f32 v%d, v%d, v%d" % (vT0, vT0, QS + 2 * w))
        for w in range(NSPLIT):
            e.i("v_sub_f32 v%d, v%d, v%d" % (QS + 2 * w, QS + 2 * w, vT0))
        for w in range(NSPLIT):
            e.i("v_exp_f32 v%d, v%d" % (QS + 2 * w, QS + 2 * w))
        e.i("v_mul_f32 v%d, v%d, v%d" % (vT1, QS, QS + 1))
        for w in range(1, NSPLIT):
            e.i("v_fmac_f32 v%d, v%d, v%d" % (vT1, QS + 2 * w, QS + 2 * w + 1))
        e.i("v_rcp_f32 v%d, v%d" % (vT1, vT1))
        e.i("s_waitcnt vmcnt(0)")
        for c in range(4):
            e.i("v_mul_f32 v%d, v%d, v%d" % (RING + c, RING + c, QS))
        for w in range(1, NSPLIT):
            for c in range(4):
                e.i("v_fmac_f32 v%d, v%d, v%d" % (RING + c, RING + 4 * w + c, QS + 2 * w))
        for c in range(4):
            e.i("v_mul_f32 v%d, v%d, v%d" % (RING + c, RING + c, vT1))
        e.i("v_cvt_pk_bf16_f32 v%d, v%d, v%d" % (RING, RING, RING + 1))
        e.i("v_cvt_pk_bf16_f32 v%d, v%d, v%d" % (RING + 1, RING + 2, RING + 3))
        e.i("buffer_store_dwordx2 v[%d:%d], v%d, s[%d:%d], s%d offen" % (RING, RING + 1, vT2, sK, sK + 3, sT0))
        if STAMP:
            e.i("s_memrealtime s[16:17]")
            e.i("s_waitcnt lgkmcnt(0)")
            e.i("v_mov_b32 v%d, s16" % (A + 8))
            e.i("v_mov_b32 v%d, 0" % (A + 12))
            e.i("buffer_store_dword v%d, v%d, s[%d:%d], s18 offen offset:12" % (A + 8, A + 12, sWS, sWS + 3))
    e.raw("L_done1:")
    e.i("s_endpgm")
    if WSC:
        e.label("L_init")
        e.i("s_cmp_lg_u32 s2, %d" % (NWG if WSC == 1 else 100000))
        e.i("s_cbranch_scc1 L_done1")
        e.i("s_load_dwordx4 s[60:63], s[0:1], 8")
        e.i("s_load_dwordx4 s[%d:%d], s[0:1], 64" % (sPtr + 16, sPtr + 19))
        e.i("v_lshrrev_b32 v6, 6, v0")
        e.i("v_mul_u32_u24 v2, %d, v0" % CSTR)
        e.i("v_readfirstlane_b32 s%d, v6" % sWave)
        e.i("v_lshlrev_b32 v6, 2, v6")
        e.i("v_mov_b32 v3, 0")
        e.i("v_mov_b32 v5, 1")
        for srd, n in ((sWS, 1 << 24), (sDBG, 256), (sK, 1 << 29)):
            e.i("s_mov_b32 s%d, %d" % (srd + 2, n))
            e.i("s_mov_b32 s%d, 0x00020000" % (srd + 3))
        e.i("s_and_b32 s21, s%d, 1" % sWave)
        e.i("s_lshl_b32 s21, s21, 24")
        assert NP <= 16
        PQ = [2 * ((16 * i) // NP) for i in range(NP)]
        PRG = [(3 * i) % 8 for i in range(NP)]
        for i in range(NP):
            e.i("s_add_u32 s%d, s21, %d" % (80 + i, (PQ[i] << 24) + (PRG[i] << 21) + (7 << 18)))
        e.i("s_mov_b32 s20, 0")
        e.i("s_mov_b32 s22, 1")
        e.i("s_waitcnt lgkmcnt(0)")
        for srd, p_ in ((sWS, pws), (sDBG, pdbg)):
            e.i("s_mov_b32 s%d, s%d" % (srd, p_))
            e.i("s_mov_b32 s%d, s%d" % (srd + 1, p_ + 1))
        e.i("s_cmp_lt_u32 s%d, 2" % sWave)
        e.i("s_cselect_b32 s%d, s60, s62" % sK)
        e.i("s_cselect_b32 s%d, s61, s63" % (sK + 1))
        for i in range(NP):
            e.i("s_buffer_load_dword s%d, s[%d:%d], s%d offset:%d" % (40 + i % 8, sK, sK + 3, 80 + i, (((i + 5) % 16) << 14) + ((i & 1) << 13)))
        e.i("s_cmp_lg_u32 s%d, 0" % sWave)
        e.i("s_cbranch_scc1 L_pr")
        e.i("s_mov_b64 exec, 1")
        e.i("buffer_atomic_add v5, v3, s[%d:%d], 0 offen offset:4 sc0" % (sDBG, sDBG + 3))
        e.i("s_mov_b64 exec, -1")
        e.label("L_pr")
        for k in range(CONC or NP):
            i = k % NP
            if k == 2:
                e.i("s_cmp_lg_u32 s%d, 0" % sWave)
                e.i("s_cbranch_scc1 L_pr2")
                e.i("s_waitcnt vmcnt(0)")
                e.i("v_readfirstlane_b32 s22, v5")
                e.i("s_cmp_lg_u32 s22, 0")
                e.i("s_cbranch_scc1 L_pr2")
                e.i("s_mov_b32 s%d, %d" % (sT1, CB))
                e.i("buffer_store_dword v3, v2, s[%d:%d], s%d offen sc1" % (sWS, sWS + 3, sT1))
                e.i("s_mov_b32 s%d, %d" % (sT1, CB + 64 * CSTR))
                e.i("buffer_store_dword v3, v2, s[%d:%d], s%d offen sc1" % (sWS, sWS + 3, sT1))
                e.label("L_pr2")
            if CONC:
                c = (k & 1) ^ ((k >> 1) & 1) ^ (k // NP)
                p_ = (k * 7 + 3 * (k // NP)) % 16
                if p_ == (i + 5) % 16:
                    p_ = (p_ + 8) % 16
                l_ = (k * 37 + 1) % 64
                b13 = c ^ (PRG[i] & 1) ^ (PQ[i] >> 4)
                e.i("s_waitcnt lgkmcnt(0)")
                e.i("s_mov_b32 s40, -1")
                e.i("s_buffer_load_dword s40, s[%d:%d], s%d offset:%d" % (sK, sK + 3, 80 + i, (p_ << 14) + (b13 << 13) + l_ * 128))
                e.i("s_buffer_load_dword s41, s[%d:%d], s%d offset:%d" % (sK, sK + 3, 80 + i, (p_ << 14) + ((b13 ^ 1) << 13) + l_ * 128))
                e.i("s_waitcnt lgkmcnt(1)")
                e.i("s_memtime s[26:27]")
                e.i("s_mov_b32 s42, s40")
                e.i("s_waitcnt lgkmcnt(0)")
                e.i("s_memtime s[28:29]")
                e.i("s_waitcnt lgkmcnt(0)")
                e.i("s_sub_u32 s30, s28, s26")
                e.i("s_min_u32 s30, s30, %d" % (CLIP // 2))
                e.i("s_sub_i32 s31, 0, s30")
                e.i("s_cmp_eq_u32 s42, -1")
                e.i("s_cselect_b32 s30, s30, s31")
                e.i("%s s20, s20, s30" % ("s_sub_i32" if c else "s_add_i32"))
                continue
            for cc in range(2):
                c = cc ^ (i & 1) ^ ((i >> 1) & 1)
                p_ = i % 16
                l_ = ((i >> 4) * 4 + p_ * 37) % 64
                e.i("s_waitcnt lgkmcnt(0)")
                e.i("s_memtime s[26:27]")
                e.i("s_waitcnt lgkmcnt(0)")
                b13 = c ^ (PRG[i] & 1) ^ (PQ[i] >> 4)
                e.i("s_buffer_load_dword s40, s[%d:%d], s%d offset:%d" % (sK, sK + 3, 80 + i, (p_ << 14) + (b13 << 13) + l_ * 128))
                e.i("s_waitcnt lgkmcnt(0)")
                e.i("s_memtime s[28:29]")
                e.i("s_waitcnt lgkmcnt(0)")
                e.i("s_sub_u32 s30, s28, s26")
                e.i("s_min_u32 s30, s30, %d" % CLIP)
                e.i("s_max_u32 s30, s30, %d" % LOW)
                e.i("%s s20, s20, s30" % ("s_sub_i32" if c else "s_add_i32"))
        e.i("v_mov_b32 v7, s20")
        e.i("ds_write_b32 v6, v7")
        e.i("s_waitcnt lgkmcnt(0)")
        e.i("s_barrier")
        e.i("s_cmp_lg_u32 s22, 0")
        e.i("s_cbranch_scc1 L_done1")
        e.i("ds_read_b128 v[8:11], v3")
        e.i("s_getreg_b32 s23, hwreg(HW_REG_XCC_ID, 2, 1)")
        e.i("s_waitcnt lgkmcnt(0)")
        e.i("v_add_u32 v8, v8, v9")
        e.i("v_add_u32 v10, v10, v11")
        e.i("v_readfirstlane_b32 s24, v8")
        e.i("v_readfirstlane_b32 s25, v10")
        TH = 2 * (CONC or NP) * MARG
        if DBGS:
            e.i("v_mov_b32 v9, v10")
            e.i("buffer_store_dwordx2 v[8:9], v3, s[%d:%d], 0 offen offset:8" % (sDBG, sDBG + 3))
        e.i("s_min_i32 s26, s24, s25")
        e.i("s_max_i32 s27, s24, s25")
        e.i("s_xor_b32 s24, s23, 1")
        e.i("s_cmp_lt_i32 s27, %d" % -TH)
        e.i("s_cselect_b32 s23, s23, 2")
        e.i("s_cmp_gt_i32 s26, %d" % TH)
        e.i("s_cselect_b32 s23, s24, s23")
        if FORCE >= 0:
            e.i("s_mov_b32 s23, %d" % FORCE)
        e.i("s_add_u32 s23, s23, 1")
        e.i("v_mov_b32 v4, s23")
        e.i("s_waitcnt vmcnt(0)")
        e.i("s_mov_b64 exec, 1")
        e.i("buffer_store_dword v4, v3, s[%d:%d], 0 offen sc1" % (sDBG, sDBG + 3))
        e.i("s_endpgm")
    k1 = e.text()


    hdr = open("cdna_kernels/%s.s.ref" % NAME).read().split("; Override launch geometry")[0]
    out = hdr
    if not LIST:
        out += "; @launch grid=(%d,1,1) block=(%d,1,1) lds=%d\n" % (NWG + (1 if WSC else 0), WPW * 64, LDS)
    else:
        out += "; @launch kernel=%s_kernel grid=(%d,1,1) block=(%d,1,1) lds=%d\n" % (NAME, NWG + (1 if WSC else 0), WPW * 64, LDS)
    out += '.amdgcn_target "amdgcn-amd-amdhsa--gfx950"\n.text\n'
    out += ".globl %s_kernel\n.p2align 8\n.type %s_kernel,@function\n" % (NAME, NAME)
    out += k1
    out += '.section .rodata,"a"\n'
    out += (".p2align 6\n.amdhsa_kernel %s\n  .amdhsa_next_free_vgpr %d\n  .amdhsa_next_free_sgpr %d\n"
            "  .amdhsa_accum_offset %d\n  .amdhsa_group_segment_fixed_size 0\n  .amdhsa_kernarg_size 80\n"
            "  .amdhsa_user_sgpr_count 2\n  .amdhsa_user_sgpr_kernarg_segment_ptr 1\n"
            "  .amdhsa_system_sgpr_workgroup_id_x 1\n.end_amdhsa_kernel\n") % (NAME + "_kernel", VG, 100, (VG + 3) // 4 * 4)
    mv = max([int(x) for x in re.findall(r"\bv(\d+)\b", k1)] + [int(x) for x in re.findall(r"v\[\d+:(\d+)\]", k1)])
    ms = max([int(x) for x in re.findall(r"\bs(\d+)\b", k1)] + [int(x) for x in re.findall(r"s\[\d+:(\d+)\]", k1)])
    assert mv < VG <= 256 and ms < 100, (mv, VG, ms)
    return out


def parse_gs(s):
    out = []
    for part in s.split(","):
        if "x" in part:
            v, n = part.split("x")
            out += [int(v)] * int(n)
        else:
            out.append(int(part))
    return out


if __name__ == "__main__":
    ap = argparse.ArgumentParser()
    ap.add_argument("--gs", default="4x58,2x4,1x16")
    ap.add_argument("--ns", type=int, default=3)
    ap.add_argument("--stamp", type=int, default=0)
    ap.add_argument("--wsc", type=int, default=1)
    ap.add_argument("--late", type=int, default=16)
    ap.add_argument("--bar8", type=int, default=8)
    ap.add_argument("--thr", type=int, default=1400)
    ap.add_argument("--inv", type=int, default=0)
    ap.add_argument("--numa", type=int, default=1)
    ap.add_argument("--skip", type=int, default=16)
    ap.add_argument("--np", type=int, default=10)
    ap.add_argument("--clip", type=int, default=3000)
    ap.add_argument("--force", type=int, default=-1)
    ap.add_argument("--flj", type=int, default=0)
    ap.add_argument("--fixr", type=int, default=0)
    ap.add_argument("--marg", type=int, default=110)
    ap.add_argument("--net", type=int, default=16)
    ap.add_argument("--conc", type=int, default=0)
    ap.add_argument("--dbgs", type=int, default=0)
    ap.add_argument("-o", required=True)
    a_ = ap.parse_args()
    s = gen(GS=parse_gs(a_.gs), NS=a_.ns, STAMP=a_.stamp, WSC=a_.wsc, LATE=a_.late, BAR8=a_.bar8, THR=a_.thr, INV=a_.inv, NUMA=a_.numa, SKIP=a_.skip, NP=a_.np, CLIP=a_.clip, FORCE=a_.force, FLJ=a_.flj, FIXR=a_.fixr, MARG=a_.marg, NET=a_.net, CONC=a_.conc, DBGS=a_.dbgs)
    open(a_.o, "w").write(s)
    print("wrote", a_.o, len(s), "bytes")
```
